```python
import torch

def _softmax(x, axis=-1):
    return torch.softmax(x, dim=axis)
def _gelu(x):
    return torch.nn.functional.gelu(x, approximate="tanh")
def _silu(x):
    return torch.nn.functional.silu(x)
def _sigmoid(x):
    return torch.sigmoid(x)
def _layernorm(x, axis=-1, eps=1e-5):
    m = x.mean(dim=axis, keepdim=True)
    v = x.var(dim=axis, keepdim=True, unbiased=False)
    return (x - m) / torch.sqrt(v + eps)
def _scatter_add(tgt, idx, src, axis=0):
    return tgt.clone().index_add_(axis, idx, src)
def _segment_sum(src, seg, n):
    out = torch.zeros((n,) + src.shape[1:], dtype=src.dtype)
    return out.index_add_(0, seg, src)
def _pad(x, pw):
    flat = tuple(v for pair in reversed(pw) for v in pair)
    return torch.nn.functional.pad(x, flat)

kernel_name = 'gated_mix__grouped_kv_mqa__ssm_conv_s4__prompt'

def setup_inputs():

    _w = (lambda a: (lambda t: t.to(torch.bfloat16) if t.is_floating_point() else t)(torch.as_tensor(a)))
    def _A_setup():
        B, S, D, H = 1, 2048, 448, 16
        Dh = D // H
        return {
            "x": _w((lambda *s: torch.randn(*s, dtype=torch.bfloat16) * 0.05)(B, S, D)),
            "wq": _w((lambda *s: torch.randn(*s, dtype=torch.bfloat16) * 1.6)(D, H * Dh)),
            "wk": _w((lambda *s: torch.randn(*s, dtype=torch.bfloat16) * 1.6)(D, Dh)),
            "wv": _w((lambda *s: torch.randn(*s, dtype=torch.bfloat16) * 0.05)(D, Dh)),
            "wo": _w((lambda *s: torch.randn(*s, dtype=torch.bfloat16) * 0.05)(H * Dh, D)),
        }
    _A_in = _A_setup()

    def _B_setup():
        B, L, D, N = 1, 2048, 448, 256
        A_re = -(lambda _x: torch.exp(torch.as_tensor(_x)))((lambda *s: torch.randn(*s, dtype=torch.bfloat16) * 3.2)(D, N))
        A_im = torch.pi * (lambda *s: torch.randn(*s, dtype=torch.bfloat16) * 0.05)(D, N)
        B_re = (lambda *s: torch.randn(*s, dtype=torch.bfloat16) * 0.2)(D, N)
        B_im = (lambda *s: torch.randn(*s, dtype=torch.bfloat16) * 0.2)(D, N)
        C_re = (lambda *s: torch.randn(*s, dtype=torch.bfloat16) * 0.2)(D, N)
        C_im = (lambda *s: torch.randn(*s, dtype=torch.bfloat16) * 0.2)(D, N)
        log_dt = (lambda *s: torch.randn(*s, dtype=torch.bfloat16) * 0.05)(D) * 0.5 - 4.0
        Dskip = (lambda *s: torch.randn(*s, dtype=torch.bfloat16) * 0.1)(D)
        return {
            "u": _w((lambda *s: torch.randn(*s, dtype=torch.bfloat16) * 0.05)(B, L, D)),
            "A_re": _w(A_re),
            "A_im": _w(A_im),
            "B_re": _w(B_re),
            "B_im": _w(B_im),
            "C_re": _w(C_re),
            "C_im": _w(C_im),
            "log_dt": _w(log_dt),
            "Dskip": _w(Dskip),
        }
    _B_in = _B_setup()

    return {
        "A_x": _A_in["x"],
        "A_wq": _A_in["wq"],
        "A_wk": _A_in["wk"],
        "A_wv": _A_in["wv"],
        "A_wo": _A_in["wo"],
        "B_u": _B_in["u"],
        "B_A_re": _B_in["A_re"],
        "B_A_im": _B_in["A_im"],
        "B_B_re": _B_in["B_re"],
        "B_B_im": _B_in["B_im"],
        "B_C_re": _B_in["C_re"],
        "B_C_im": _B_in["C_im"],
        "B_log_dt": _B_in["log_dt"],
        "B_Dskip": _B_in["Dskip"],
        "gate_w": _w((lambda *s: torch.randn(*s, dtype=torch.bfloat16) * 0.05)(448) * 16.0),
    }

def reference(A_x, A_wq, A_wk, A_wv, A_wo, B_u, B_A_re, B_A_im, B_B_re, B_B_im, B_C_re, B_C_im, B_log_dt, B_Dskip, gate_w):
    def _A_ref(x, wq, wk, wv, wo):
        B, S, D = x.shape
        H = 16
        Dh = D // H
        q = (lambda x, *d: x.permute(*d))((x @ wq).reshape(B, S, H, Dh), 0, 2, 1, 3)
        k = x @ wk
        v = x @ wv
        scores = torch.einsum("bhqd,bkd->bhqk", q, k) * (Dh ** -0.5)
        p = _softmax(scores, axis=-1)
        o = torch.einsum("bhqk,bkd->bhqd", p, v)
        return (lambda x, *d: x.permute(*d))(o, 0, 2, 1, 3).reshape(B, S, H * Dh) @ wo

    def _B_ref(u, A_re, A_im, B_re, B_im, C_re, C_im, log_dt, Dskip):
        Bsz, L, D = u.shape
        dt = torch.exp(log_dt)[:, None]
        A = A_re + 1j * A_im
        Bc = B_re + 1j * B_im
        Cc = C_re + 1j * C_im
        logdA = dt * A
        dB = dt * Bc
        l = (lambda x, dt: x.to(dt))(torch.arange(L), A_re.dtype)
        P = torch.exp(logdA[:, :, None] * l[None, None, :])
        K = torch.einsum("dn,dnl,dn->dl", Cc, P, dB).real
        L2 = 2 * L
        Kp = _pad(K, ((0, 0), (0, L)))
        up = (lambda x, *d: x.permute(*d))(u, 0, 2, 1)
        up = _pad(up, ((0, 0), (0, 0), (0, L)))
        Kf = (lambda x, axes=(-2,-1): torch.fft.rfft2(x.float(), dim=axes))(Kp[:, None, :], axes=(-2, -1))
        Uf = (lambda x, axes=(-2,-1): torch.fft.rfft2(x.float(), dim=axes))(up[:, :, None, :], axes=(-2, -1))
        Yf = Uf * Kf[None, :, :, :]
        y = (lambda x, s, axes=(-2,-1): torch.fft.irfft2(x, s=s, dim=axes).to(torch.bfloat16))(Yf, (1, L2), axes=(-2, -1))[:, :, 0, :L]
        y = (lambda x, *d: x.permute(*d))(y, 0, 2, 1) + u * Dskip[None, None, :]
        return y

    x = A_x
    g = _sigmoid((x * gate_w).sum(-1, keepdims=True))
    a = _A_ref(x, A_wq, A_wk, A_wv, A_wo)
    b = _B_ref(x, B_A_re, B_A_im, B_B_re, B_B_im, B_C_re, B_C_im, B_log_dt, B_Dskip)
    return g * a + (1 - g) * b
```

```python
import re, sys

TRANS = ("v_exp_f32", "v_log_f32", "v_rcp_f32", "v_rsq_f32", "v_sqrt_f32", "v_sin_f32", "v_cos_f32", "v_rcp_iflag_f32")


def regs_of(tok):
    tok = tok.strip()
    if tok.startswith("-"):
        tok = tok[1:]
    if tok.startswith("|") and tok.endswith("|"):
        tok = tok[1:-1]
    m = re.fullmatch(r"([vsa])(\d+)", tok)
    if m:
        return {(m.group(1), int(m.group(2)))}
    m = re.fullmatch(r"([vsa])\[(\d+):(\d+)\]", tok)
    if m:
        return {(m.group(1), i) for i in range(int(m.group(2)), int(m.group(3)) + 1)}
    if tok == "vcc":
        return {("s", "vcc_lo"), ("s", "vcc_hi")}
    if tok in ("vcc_lo", "vcc_hi"):
        return {("s", tok)}
    if tok == "exec":
        return {("s", "exec_lo"), ("s", "exec_hi")}
    if tok in ("exec_lo", "exec_hi"):
        return {("s", tok)}
    if tok == "m0":
        return {("s", "m0")}
    return set()


class Ins:
    def __init__(self, text):
        self.text = text
        t = text.split(";")[0].strip()
        self.label = None
        self.op = None
        self.rd = set()
        self.wr = set()
        self.kind = None
        self.target = None
        self.dpp = False
        self.srcC = set()
        self.srcAB = set()
        self.data = set()
        self.lds_dma = False
        self.ws = 1
        if not t:
            self.kind = "empty"
            self.ws = 0
            return
        if t.endswith(":"):
            self.label = t[:-1]
            self.kind = "label"
            self.ws = 0
            return
        if t.startswith("."):
            self.kind = "directive"
            self.ws = 0
            return
        parts = t.split(None, 1)
        op = parts[0]
        self.op = op
        rest = parts[1] if len(parts) > 1 else ""
        ops = [x.strip() for x in rest.split(",")] if rest else []
        ops = []
        depth = 0
        cur = ""
        for ch in rest:
            if ch == "[":
                depth += 1
            if ch == "]":
                depth -= 1
            if ch == "," and depth == 0:
                ops.append(cur.strip())
                cur = ""
            else:
                cur += ch
        if cur.strip():
            ops.append(cur.strip())
        mods = ""
        if ops:
            last = ops[-1].split(None, 1)
            ops[-1] = last[0]
            mods = last[1] if len(last) > 1 else ""
        self.ops = ops
        self.mods = mods
        R = [regs_of(o) for o in ops]
        base = op
        for suf in ("_e32", "_e64", "_dpp", "_sdwa"):
            if base.endswith(suf):
                base = base[: -len(suf)]
        self.base = base
        if op.startswith("v_mfma"):
            self.kind = "mfma"
            self.wr = R[0]
            self.srcAB = R[1] | R[2]
            self.srcC = R[3]
            self.rd = R[1] | R[2] | R[3]
            self.passes = 8 if "32x32x16" in op else 4
        elif op.startswith("v_"):
            self.kind = "valu"
            self.dpp = op.endswith("_dpp") or any(k in mods for k in ("quad_perm", "row_", "wave_"))
            if base.startswith("v_cmp"):
                self.wr = R[0]
                for r in R[1:]:
                    self.rd |= r
            elif base.startswith("v_permlane32_swap") or base.startswith("v_permlane16_swap"):
                self.wr = R[0] | R[1]
                self.rd = R[0] | R[1]
            elif base == "v_nop":
                pass
            else:
                self.wr = R[0]
                for r in R[1:]:
                    self.rd |= r
                if base in ("v_fmac_f32", "v_mac_f32", "v_pk_fmac_f16", "v_writelane_b32") or self.dpp or "dst_unused:UNUSED_PRESERVE" in mods:
                    self.rd |= R[0]
                if base in ("v_add_co_u32", "v_sub_co_u32", "v_addc_co_u32"):
                    self.wr |= R[1]
        elif op.startswith("ds_"):
            self.kind = "ds"
            if op.startswith("ds_read"):
                self.wr = R[0]
                self.rd = R[1]
            elif op.startswith("ds_write"):
                for r in R:
                    self.rd |= r
            elif op.startswith("ds_bpermute") or op.startswith("ds_permute") or op.startswith("ds_swizzle"):
                self.wr = R[0]
                for r in R[1:]:
                    self.rd |= r
            else:
                raise ValueError("unknown ds op " + t)
        elif op.startswith("buffer_"):
            self.kind = "vmem"
            if re.search(r"\blds\b", mods):
                self.lds_dma = True
                for r in R:
                    self.rd |= r
                self.rd |= {("s", "m0")}
            elif op.startswith("buffer_load"):
                self.wr = R[0]
                for r in R[1:]:
                    self.rd |= r
            elif op.startswith("buffer_store"):
                for r in R:
                    self.rd |= r
                self.data = R[0]
            elif op.startswith("buffer_atomic"):
                for r in R:
                    self.rd |= r
                if "sc0" in mods:
                    self.wr = R[0]
            else:
                raise ValueError("unknown buffer op " + t)
        elif op.startswith("global_"):
            self.kind = "vmem"
            if op.startswith("global_load"):
                self.wr = R[0]
                for r in R[1:]:
                    self.rd |= r
            else:
                for r in R:
                    self.rd |= r
                self.data = R[1]
        elif op.startswith("s_load") or op in ("s_memtime", "s_memrealtime"):
            self.kind = "smem"
            self.wr = R[0]
            for r in R[1:]:
                self.rd |= r
        elif op.startswith("s_"):
            self.kind = "salu"
            if op == "s_nop":
                self.ws = int(ops[0], 0) + 1
            elif op in ("s_waitcnt", "s_barrier", "s_setprio", "s_sleep", "s_endpgm"):
                pass
            elif op.startswith("s_cbranch") or op == "s_branch":
                self.target = ops[0]
                if "vcc" in op:
                    self.rd = regs_of("vcc")
                if "exec" in op:
                    self.rd = regs_of("exec")
            elif op.startswith("s_cmp") or op.startswith("s_bitcmp"):
                for r in R:
                    self.rd |= r
            else:
                self.wr = R[0]
                for r in R[1:]:
                    self.rd |= r
                if "saveexec" in op:
                    self.wr |= regs_of("exec")
                    self.rd |= regs_of("exec")
                if op in ("s_cmov_b32", "s_cmov_b64", "s_addk_i32", "s_bitset0_b32", "s_bitset1_b32"):
                    self.rd |= R[0]
        else:
            raise ValueError("cannot parse: " + t)

    def vw(self):
        return {r for r in self.wr if r[0] in "va"}

    def sw(self):
        return {r for r in self.wr if r[0] == "s"}


def need(p, c):
    n = 0
    pv = p.vw()
    if p.kind == "valu":
        sw = p.sw()
        if sw:
            if c.kind == "vmem" and (sw & c.rd):
                n = max(n, 5)
            if c.kind == "valu" and (sw & c.rd):
                n = max(n, 4 if c.base in ("v_readlane_b32", "v_writelane_b32") else 2)
            if c.kind in ("salu", "smem") and (sw & c.rd):
                n = max(n, 2)
        if pv:
            if c.kind == "valu":
                if c.dpp and (pv & c.rd):
                    n = max(n, 2)
                if c.base in ("v_readlane_b32", "v_readfirstlane_b32") and (pv & c.rd):
                    n = max(n, 1)
                if c.base.startswith("v_permlane") and (pv & c.rd):
                    n = max(n, 2)
                if p.base in TRANS and (pv & c.rd) and c.base not in TRANS:
                    n = max(n, 1)
                if ("dst_sel" in p.mods or p.base.endswith("_f16") and "op_sel" in p.mods) and (pv & (c.rd | c.wr)):
                    n = max(n, 1)
            if c.kind == "mfma" and (pv & c.rd):
                n = max(n, 2)
            if c.kind in ("ds", "vmem") and p.base in TRANS and (pv & c.rd):
                n = max(n, 1)
    if p.kind == "salu" and ("s", "m0") in p.wr and c.kind == "vmem" and c.lds_dma:
        n = max(n, 1)
    if p.kind == "vmem" and len(p.data) >= 3:
        if c.vw() & p.data:
            n = max(n, 2 if c.kind in ("valu", "mfma") else 1)
    if p.kind == "mfma":
        big = {8: 12, 4: 8}[p.passes]
        part = {8: 10, 4: 6}[p.passes]
        war = {8: 7, 4: 3}[p.passes]
        if c.kind == "mfma":
            if pv & c.srcAB:
                n = max(n, big)
            if pv & c.srcC:
                if not (c.srcC == pv and c.passes == p.passes):
                    n = max(n, part)
            elif pv & c.wr:
                n = max(n, part)
        elif c.kind in ("valu", "ds", "vmem"):
            if pv & (c.rd | c.wr):
                n = max(n, big)
            if c.kind == "valu" and (p.srcC & c.vw()):
                n = max(n, war)
    return n


def build_cfg(ins):
    labels = {x.label: i for i, x in enumerate(ins) if x.label}
    succ = [[] for _ in ins]
    for i, x in enumerate(ins):
        if x.op == "s_endpgm":
            continue
        if x.op == "s_branch":
            succ[i].append(labels[x.target])
            continue
        if x.target:
            succ[i].append(labels[x.target])
        if i + 1 < len(ins):
            succ[i].append(i + 1)
    pred = [[] for _ in ins]
    for i, s in enumerate(succ):
        for j in s:
            pred[j].append(i)
    return succ, pred


def fix_hazards(lines, verbose=True):
    total = 0
    while True:
        ins = [Ins(l) for l in lines]
        succ, pred = build_cfg(ins)
        fixes = {}
        for ci, c in enumerate(ins):
            if c.kind in ("empty", "label", "directive") or c.op == "s_nop":
                continue
            short = 0
            why = None
            stack = [(p, 0) for p in pred[ci]]
            seen = {}
            while stack:
                pi, d = stack.pop()
                if d >= 12:
                    continue
                if seen.get(pi, 99) <= d:
                    continue
                seen[pi] = d
                p = ins[pi]
                if p.op:
                    n = need(p, c)
                    if n - d > short:
                        short = n - d
                        why = p.text.strip()
                for q in pred[pi]:
                    stack.append((q, d + p.ws))
            if short > 0:
                fixes[ci] = (short, why)
        if not fixes:
            break
        ci = min(fixes)
        short, why = fixes[ci]
        if verbose:
            print("hazard: +%d before [%s] after [%s]" % (short, ins[ci].text.strip(), why), file=sys.stderr)
        lines = lines[:ci] + ["    s_nop %d" % (short - 1)] + lines[ci:]
        total += short
    return lines, total


def parse_wait(x):
    vm = lg = None
    m = re.search(r"vmcnt\((\d+)\)", x.text)
    if m:
        vm = int(m.group(1))
    m = re.search(r"lgkmcnt\((\d+)\)", x.text)
    if m:
        lg = int(m.group(1))
    return vm, lg


def check_waitcnt(lines):
    ins = [Ins(l) for l in lines]
    succ, pred = build_cfg(ins)
    errs = set()
    seen = set()
    stack = [(0, (), ())]
    steps = 0
    while stack:
        pc, vm, lg = stack.pop()
        while True:
            key = (pc, vm, lg)
            if key in seen:
                break
            seen.add(key)
            steps += 1
            if steps > 3000000:
                raise RuntimeError("waitcnt check explosion")
            x = ins[pc]
            if x.op:
                touched = x.rd | x.wr
                for q, nm in ((vm, "vmcnt"), (lg, "lgkmcnt")):
                    for e in q:
                        if e[0] & x.rd or (e[0] & x.wr and not (nm == "vmcnt" and x.kind == "vmem") and not (nm == "lgkmcnt" and x.kind == "ds" and not e[1])):
                            errs.add((pc, nm, x.text.strip()))
                if x.op == "s_waitcnt":
                    a, b = parse_wait(x)
                    if a is not None and len(vm) > a:
                        vm = vm[len(vm) - a:] if a > 0 else ()
                    if b is not None:
                        if b == 0:
                            lg = ()
                        elif not any(e[1] for e in lg):
                            if len(lg) > b:
                                lg = lg[len(lg) - b:]
                elif x.kind == "vmem":
                    vm = vm + ((frozenset(x.wr), False),)
                    if len(vm) > 63:
                        errs.add((pc, "vmcnt overflow", x.text.strip()))
                        vm = vm[-63:]
                elif x.kind == "ds":
                    lg = lg + ((frozenset(x.wr), False),)
                    while len(lg) > 40 and not lg[0][0]:
                        lg = lg[1:]
                elif x.kind == "smem":
                    lg = lg + ((frozenset(x.wr), True),)
            s = succ[pc]
            if not s:
                break
            for t in s[1:]:
                stack.append((t, vm, lg))
            pc = s[0]
    return sorted(errs)
```

```python
import sys, struct, math, os
sys.path.insert(0, os.path.dirname(os.path.abspath(__file__)))
import asmcheck

NAME = "gated_mix__grouped_kv_mqa__ssm_conv_s4__prompt"
OPT = dict(timing=0, force_fb=0, spin=400000)
for a in sys.argv[2:]:
    k, v = a.split("=")
    OPT[k] = int(v)

FLAG_KV = 0x1000
FLAG_O = 0x10000
FLAG_B = 0x30000
ALIVE = 0x50000
G1 = 0x60000
KV = 0x100000
OW = 0x200000
B2 = 0x400000
TSB = 0x800000
WS_BYTES = 0x1000000
NONCE_ADD = 0x9E3779B9

L = []


def e(s):
    for x in s.split("\n"):
        x = x.strip()
        if x:
            L.append(x if x.endswith(":") else "    " + x)


def f32(x):
    return struct.unpack("<I", struct.pack("<f", x))[0]


def vr(a, n=1):
    return "v%d" % a if n == 1 else "v[%d:%d]" % (a, a + n - 1)


def sr(a, n=1):
    return "s%d" % a if n == 1 else "s[%d:%d]" % (a, a + n - 1)


def srd(d, base, nbytes, add=None):
    if add is None:
        e("s_mov_b32 s%d, s%d" % (d, base))
        e("s_mov_b32 s%d, s%d" % (d + 1, base + 1))
    else:
        e("s_add_u32 s%d, s%d, %s" % (d, base, add))
        e("s_addc_u32 s%d, s%d, 0" % (d + 1, base + 1))
    e("s_mov_b32 s%d, 0x%x" % (d + 2, nbytes))
    e("s_mov_b32 s%d, 0x20000" % (d + 3))


def mfma(d, a, b, c):
    e("v_mfma_f32_32x32x16_bf16 %s, %s, %s, %s" % (vr(d, 16), vr(a, 4), vr(b, 4), "0" if c is None else vr(c, 16)))


P_X, P_WQ, P_WK, P_WV, P_WO = 16, 18, 20, 22, 24
P_ARE, P_AIM, P_BRE, P_BIM, P_CRE, P_CIM, P_LDT, P_DSK, P_GW, P_OUT, P_WS = 28, 30, 32, 34, 36, 38, 40, 42, 44, 46, 48
SX, SWS = 52, 56
S_WAVE, S_NONCE = 3, 4
V_LANE = 1
LOG2E = 1.4426950408889634

stamp_n = [0]


def stamp(idx):
    if OPT["timing"]:
        e("s_memrealtime s[96:97]")
        e("s_waitcnt lgkmcnt(0)")
        e("s_mov_b32 s%d, s96" % (80 + idx))


def stamp_flush():
    if OPT["timing"]:
        e("v_mov_b32 v2, 0")
        for k in range(12):
            e("v_mov_b32 v3, s%d" % (80 + k))
            e("v_cmp_eq_u32 vcc, %d, v%d" % (k, V_LANE))
            e("v_cndmask_b32 v2, v2, v3, vcc")
        e("s_lshl_b32 s96, s2, 2")
        e("s_add_u32 s96, s96, s3")
        e("s_lshl_b32 s96, s96, 6")
        e("s_add_u32 s96, s96, 0x%x" % TSB)
        e("v_lshlrev_b32 v3, 2, v%d" % V_LANE)
        e("v_cmp_gt_u32 vcc, 16, v%d" % V_LANE)
        e("s_and_saveexec_b64 s[98:99], vcc")
        e("buffer_store_dword v2, v3, s[%d:%d], s96 offen" % (SWS, SWS + 3))
        e("s_mov_b64 exec, s[98:99]")


def poll(tag, vaddr, vtmp, sleep=0, n=1, step=0):
    e("s_mov_b32 s5, 0")
    e("L_poll_%s:" % tag)
    for k in range(n):
        if k == 0:
            e("buffer_load_dword v%d, v%d, s[%d:%d], 0 offen sc1" % (vtmp, vaddr, SWS, SWS + 3))
        else:
            e("s_mov_b32 s6, 0x%x" % (k * step))
            e("buffer_load_dword v%d, v%d, s[%d:%d], s6 offen sc1" % (vtmp + k, vaddr, SWS, SWS + 3))
    e("s_waitcnt vmcnt(0)")
    e("v_cmp_ne_u32 vcc, s%d, v%d" % (S_NONCE, vtmp))
    for k in range(1, n):
        e("v_cmp_ne_u32 s[6:7], s%d, v%d" % (S_NONCE, vtmp + k))
        e("s_or_b64 vcc, vcc, s[6:7]")
    e("s_cmp_eq_u64 vcc, 0")
    e("s_cbranch_scc1 L_pollok_%s" % tag)
    if sleep:
        e("s_sleep %d" % sleep)
    e("s_add_u32 s5, s5, 1")
    e("s_cmp_lt_u32 s5, %d" % OPT["spin"])
    e("s_cbranch_scc1 L_poll_%s" % tag)
    e("L_pollok_%s:" % tag)


def flag_store(soff_reg, vtmp):
    e("v_mov_b32 v%d, s%d" % (vtmp, S_NONCE))
    e("s_mov_b32 exec_lo, 1")
    e("s_mov_b32 exec_hi, 0")
    e("buffer_store_dword v%d, off, s[%d:%d], s%d sc1" % (vtmp, SWS, SWS + 3, soff_reg))
    e("s_mov_b64 exec, -1")


def x_swizzle_addrs(vg, vr0, vr1, t0, t1):
    e("v_lshrrev_b32 v%d, 2, v1" % t0)
    e("v_mul_u32_u24 v%d, 896, v%d" % (vg, t0))
    e("v_lshrrev_b32 v%d, 4, v1" % t0)
    e("v_xor_b32 v%d, v%d, v1" % (t0, t0))
    e("v_and_b32 v%d, 3, v%d" % (t0, t0))
    e("v_lshl_add_u32 v%d, v%d, 4, v%d" % (vg, t0, vg))
    e("v_and_b32 v%d, 31, v1" % t0)
    e("v_lshlrev_b32 v%d, 6, v%d" % (vr0, t0))
    e("v_lshrrev_b32 v%d, 2, v1" % t0)
    e("v_lshrrev_b32 v%d, 5, v1" % t1)
    e("v_xor_b32 v%d, v%d, v%d" % (t0, t0, t1))
    e("v_and_b32 v%d, 3, v%d" % (t0, t0))
    e("v_lshl_add_u32 v%d, v%d, 4, v%d" % (vr0, t0, vr0))
    e("v_xor_b32 v%d, 32, v%d" % (vr1, vr0))


def tr_addr(vd, hmul, stride, t0, t1):
    e("v_lshrrev_b32 v%d, 5, v1" % t0)
    e("v_mul_u32_u24 v%d, %d, v%d" % (t0, hmul, t0))
    e("v_bfe_u32 v%d, v1, 2, 2" % t1)
    e("v_add_u32 v%d, v%d, v%d" % (t0, t0, t1))
    e("v_mul_u32_u24 v%d, %d, v%d" % (vd, stride, t0))
    e("v_and_b32 v%d, 16, v1" % t0)
    e("v_lshl_add_u32 v%d, v%d, 1, v%d" % (vd, t0, vd))
    e("v_and_b32 v%d, 3, v1" % t0)
    e("v_lshl_add_u32 v%d, v%d, 3, v%d" % (vd, t0, vd))


def prologue():
    e("s_cmp_ge_u32 s2, 512")
    e("s_cbranch_scc1 L_end")
    if OPT["timing"]:
        e("s_memrealtime s[96:97]")
    e("s_load_dwordx16 s[16:31], s[0:1], 0")
    e("s_load_dwordx16 s[32:47], s[0:1], 64")
    e("s_load_dwordx2 s[48:49], s[0:1], 136")
    e("v_and_b32 v1, 63, v0")
    e("v_lshrrev_b32 v2, 6, v0")
    e("v_readfirstlane_b32 s3, v2")
    e("s_cmp_ge_u32 s2, 256")
    e("s_cbranch_scc1 L_roleS")


A_IMG, A_XS, A_QX, A_INB = 0, 30720, 73728, 0
QF, OA, SS, PP, KVR = 64, 96, 160, 16, 192
V_G = 15


def role_a():
    S_HEAD, S_TT, S_X0, S_X1 = 8, 9, 10, 11
    SWQ, SG, SKV = 60, 64, 68
    XL = 128
    XF, WF, DQ = 16, 32, 48
    vXg, vXr0, vXr1, vXw, vWg, vWr, vGa, vGl = 2, 3, 4, 5, 6, 7, 8, 9
    vE, vG0, vG1 = 10, 11, 12
    e("s_and_b32 s5, s2, 7")
    e("s_lshr_b32 s6, s2, 3")
    e("s_lshr_b32 s7, s6, 4")
    e("s_lshl_b32 s5, s5, 1")
    e("s_add_u32 s5, s5, s7")
    e("s_and_b32 s%d, s6, 15" % S_HEAD)
    e("s_lshl_b32 s%d, s5, 2" % S_TT)
    e("s_add_u32 s%d, s%d, s3" % (S_TT, S_TT))
    e("s_mul_i32 s%d, s%d, 28672" % (S_X0, S_TT))
    e("s_add_u32 s%d, s%d, 14336" % (S_X1, S_X0))
    x_swizzle_addrs(vXg, vXr0, vXr1, 13, 14)
    e("v_lshrrev_b32 v13, 2, v1")
    e("v_mul_u32_u24 v%d, 896, v13" % vWg)
    e("v_and_b32 v13, 3, v1")
    e("v_lshl_add_u32 v%d, v13, 4, v%d" % (vWg, vWg))
    e("v_lshlrev_b32 v%d, 1, v1" % vGa)
    e("s_mul_i32 s12, s3, %d" % (112 * 896))
    e("s_mul_i32 s13, s%d, 56" % S_HEAD)
    e("s_add_u32 s12, s12, s13")
    e("s_mul_i32 s13, s3, %d" % (112 * 64))
    e("s_mul_i32 s14, s3, 224")
    e("s_waitcnt lgkmcnt(0)")
    if OPT["timing"]:
        e("s_mov_b32 s80, s96")
    srd(SWS, P_WS, WS_BYTES)
    e("buffer_load_dword v%d, off, s[%d:%d], 0 sc1" % (vE, SWS, SWS + 3))
    srd(SWQ, P_WQ, 448 * 896)
    e("s_mov_b32 m0, s13")
    srd(SX, P_X, 2048 * 896)
    for m in range(7):
        e("buffer_load_dwordx4 v%d, s[%d:%d], s12 offen lds" % (vWg, SWQ, SWQ + 3))
        if m < 6:
            e("s_add_u32 m0, m0, 1024")
            e("s_add_u32 s12, s12, 14336")
    srd(SG, P_GW, 896)
    e("buffer_load_ushort v%d, v%d, s[%d:%d], s14 offen" % (vG0, vGa, SG, SG + 3))
    e("buffer_load_ushort v%d, v%d, s[%d:%d], s14 offen offset:128" % (vG1, vGa, SG, SG + 3))
    for p in range(14):
        for rh in range(2):
            e("buffer_load_dwordx4 %s, v%d, s[%d:%d], s%d offen offset:%d" % (vr(XL + 8 * p + 4 * rh, 4), vXg, SX, SX + 3, S_X1 if rh else S_X0, 64 * p))
    e("s_lshl_b32 s15, s3, 11")
    e("s_add_u32 s15, s15, %d" % A_XS)
    e("v_add_u32 v%d, s15, v%d" % (vXr0, vXr0))
    e("v_add_u32 v%d, s15, v%d" % (vXr1, vXr1))
    e("v_lshlrev_b32 v13, 4, v1")
    e("v_add_u32 v%d, s15, v13" % vXw)
    tr_addr(vWr, 8, 64, 13, 14)
    e("v_lshlrev_b32 v13, 6, v1")
    e("v_add_u32 v%d, s13, v13" % vGl)
    e("s_add_u32 s12, s3, %d" % (KV >> 16))
    e("s_lshl_b32 s12, s12, 16")
    srd(SKV, P_WS, 65536, "s12")
    e("s_waitcnt vmcnt(28)")
    e("ds_write_b16 v%d, v%d offset:56" % (vGl, vG0))
    e("ds_write_b16 v%d, v%d offset:%d" % (vGl, vG1, 56 + 4096))
    e("v_readfirstlane_b32 s4, v%d" % vE)
    e("s_add_u32 s4, s4, 0x%x" % NONCE_ADD)
    e("s_waitcnt lgkmcnt(0)")
    e("s_barrier")
    stamp(1)

    def stage(p):
        b = p & 1
        e("s_waitcnt vmcnt(%d)" % (26 - 2 * p))
        e("ds_write_b128 v%d, %s" % (vXw, vr(XL + 8 * p, 4)))
        e("ds_write_b128 v%d, %s offset:1024" % (vXw, vr(XL + 8 * p + 4, 4)))
        for ee in range(2):
            e("ds_read_b128 %s, v%d" % (vr(XF + 8 * b + 4 * ee, 4), vXr1 if ee else vXr0))
            for q in range(2):
                e("ds_read_b64_tr_b16 %s, v%d offset:%d" % (vr(WF + 8 * b + 4 * ee + 2 * q, 2), vWr, (2 * p + ee) * 1024 + q * 256))

    stage(0)
    for p in range(14):
        b = p & 1
        if p < 13:
            stage(p + 1)
            e("s_waitcnt lgkmcnt(8)")
        else:
            e("s_waitcnt lgkmcnt(0)")
        mfma(DQ, WF + 8 * b, XF + 8 * b, None if p == 0 else DQ)
        mfma(DQ, WF + 8 * b + 4, XF + 8 * b + 4, DQ)
    e("s_cmp_lg_u32 s3, 0")
    e("s_cbranch_scc1 L_a_noalive")
    e("s_lshl_b32 s5, s2, 7")
    e("s_add_u32 s5, s5, 0x%x" % ALIVE)
    flag_store(5, 13)
    e("L_a_noalive:")
    e("s_mov_b32 s12, 0x%x" % f32(28 ** -0.5 * LOG2E))
    e("s_mov_b32 s14, 0")
    e("s_mov_b32 s15, -1")
    e("v_lshlrev_b32 v2, 4, v1")
    e("s_lshl_b32 s5, s3, 11")
    e("s_add_u32 s5, s5, %d" % A_QX)
    e("v_add_u32 v3, s5, v2")
    for i in range(1, 4):
        e("s_add_u32 s5, s3, %d" % i)
        e("s_and_b32 s5, s5, 3")
        e("s_lshl_b32 s6, s5, 11")
        e("s_add_u32 s6, s6, %d" % A_QX)
        e("v_add_u32 v%d, s6, v2" % (3 + i))
        e("s_mul_i32 s6, s5, 12288")
        e("s_add_u32 s6, s6, %d" % (A_INB + (i - 1) * 4096))
        e("v_add_u32 v%d, s6, v2" % (7 + i))
    e("s_mul_i32 s6, s3, 12288")
    e("v_add_u32 v11, s6, v2")
    e("v_mul_f32 v%d, 0x%x, v%d" % (V_G, f32(-LOG2E), DQ + 12))
    for k in range(8):
        e("v_pk_mul_f32 %s, %s, s[12:13] op_sel_hi:[1,0]" % (vr(DQ + 2 * k, 2), vr(DQ + 2 * k, 2)))
    e("v_exp_f32 v%d, v%d" % (V_G, V_G))
    for k in range(8):
        e("v_cvt_pk_bf16_f32 v%d, v%d, v%d" % (QF + k, DQ + 2 * k, DQ + 2 * k + 1))
    e("v_cndmask_b32 v%d, v%d, 0, s[14:15]" % (QF + 6, QF + 6))
    e("v_cndmask_b32 v%d, v%d, 0, s[14:15]" % (QF + 7, QF + 7))
    e("ds_write_b128 v3, %s" % vr(QF, 4))
    e("ds_write_b128 v3, %s offset:1024" % vr(QF + 4, 4))
    e("v_add_f32 v%d, 1.0, v%d" % (V_G, V_G))
    e("v_rcp_f32 v%d, v%d" % (V_G, V_G))
    e("s_lshl_b32 s5, s3, 13")
    e("s_add_u32 s5, s5, 0x%x" % FLAG_KV)
    e("v_lshlrev_b32 v12, 7, v1")
    e("v_add_u32 v12, s5, v12")
    e("s_waitcnt lgkmcnt(0)")
    e("s_barrier")
    for i in range(1, 4):
        e("ds_read_b128 %s, v%d" % (vr(QF + 8 * i, 4), 3 + i))
        e("ds_read_b128 %s, v%d offset:1024" % (vr(QF + 8 * i + 4, 4), 3 + i))
    for k in range(64):
        e("v_mov_b32 v%d, 0" % (OA + k))
    for k in range(8):
        e("v_mov_b32 v%d, 0" % (PP + 8 + k))
    for k in range(8):
        e("v_mov_b32 v%d, 0" % (KVR + 48 + 8 + k))
    stamp(2)
    poll("kv", 12, 13)
    stamp(3)

    def Kf(b, k):
        return KVR + 16 * b + 4 * k

    def Vf(b, k):
        return KVR + 16 * b + 8 + 4 * k

    def ld(reg, soff, off):
        e("buffer_load_dwordx4 %s, v2, s[%d:%d], %s offen offset:%d sc1" % (vr(reg, 4), SKV, SKV + 3, soff, off))

    S_OFF = 13
    for b in range(4):
        if b == 0:
            so = "0"
        else:
            e("s_mov_b32 s%d, %d" % (S_OFF, 4096 * b))
            so = "s%d" % S_OFF
        ld(Kf(b, 0), so, 0)
        ld(Kf(b, 1), so, 1024)
        if b < 3:
            ld(Vf(b, 0), so, 2048)
            ld(Vf(b, 1), so, 3072)
    e("s_setprio 1")
    e("s_waitcnt vmcnt(12) lgkmcnt(0)")
    mfma(SS, Kf(0, 0), QF, None)
    mfma(SS, Kf(0, 1), QF + 4, SS)

    def M1(n):
        mfma(SS + 16 * ((n + 1) & 1), Kf(((n + 1) >> 2) & 3, 0), QF + 8 * ((n + 1) & 3), None)

    e("s_nop 10")
    M1(0)
    e("L_attn:")
    for n in range(16):
        S = SS + 16 * (n & 1)
        Sn = SS + 16 * ((n + 1) & 1)
        P = PP + 8 * (n & 1)
        Pp = PP + 8 * ((n - 1) & 1)
        ip, bp = (n - 1) & 3, ((n - 1) >> 2) & 3
        i1, b1 = (n + 1) & 3, ((n + 1) >> 2) & 3

        def ex(a, b_):
            for r in range(a, b_):
                e("v_exp_f32 v%d, v%d" % (S + r, S + r))

        def cv(a, b_):
            for k in range(a, b_):
                e("v_cvt_pk_bf16_f32 v%d, v%d, v%d" % (P + k, S + 2 * k, S + 2 * k + 1))

        if n % 4 == 1:
            e("s_waitcnt vmcnt(10)")
        if n % 4 == 3:
            ld(Kf((n >> 2) & 3, 0), "s%d" % S_OFF, 0)
        ex(0, 4)
        mfma(OA + 16 * ip, Vf(bp, 0), Pp, OA + 16 * ip)
        if n % 4 == 1:
            ld(Vf(((n >> 2) + 3) & 3, 0), "s%d" % S_OFF, 2048)
        if n % 4 == 3:
            ld(Kf((n >> 2) & 3, 1), "s%d" % S_OFF, 1024)
        ex(4, 8)
        cv(0, 2)
        mfma(Sn, Kf(b1, 1), QF + 8 * i1 + 4, Sn)
        if n % 4 == 1:
            ld(Vf(((n >> 2) + 3) & 3, 1), "s%d" % S_OFF, 3072)
        ex(8, 12)
        cv(2, 4)
        mfma(OA + 16 * ip, Vf(bp, 1), Pp + 4, OA + 16 * ip)
        if n % 4 == 1:
            e("s_add_u32 s%d, s%d, 4096" % (S_OFF, S_OFF))
        if n % 4 == 2:
            e("s_waitcnt vmcnt(10)")
        if n == 15:
            e("s_cmp_lt_u32 s%d, %d" % (S_OFF, 4096 * 19))
        ex(12, 16)
        cv(4, 8)
        M1(n + 1)
    e("s_cbranch_scc1 L_attn")
    mfma(OA + 48, Vf(3, 0), PP + 8, OA + 48)
    mfma(OA + 48, Vf(3, 1), PP + 12, OA + 48)
    stamp(4)
    for i in range(1, 4):
        for q in range(4):
            e("ds_write_b128 v%d, %s offset:%d" % (7 + i, vr(OA + 16 * i + 4 * q, 4), q * 1024))
    e("s_waitcnt vmcnt(0) lgkmcnt(0)")
    e("s_barrier")
    T = 160
    for k in range(12):
        e("ds_read_b128 %s, v11 offset:%d" % (vr(T + 4 * k, 4), k * 1024))
    e("s_lshl_b32 s5, s%d, 4" % S_TT)
    e("s_add_u32 s5, s5, s%d" % S_HEAD)
    e("s_lshl_b32 s6, s5, 11")
    e("s_add_u32 s6, s6, 0x%x" % OW)
    e("s_lshl_b32 s7, s5, 7")
    e("s_add_u32 s7, s7, 0x%x" % FLAG_O)
    for i in range(3):
        e("s_waitcnt lgkmcnt(%d)" % (8 - 4 * i))
        for k in range(8):
            e("v_pk_add_f32 %s, %s, %s" % (vr(OA + 2 * k, 2), vr(OA + 2 * k, 2), vr(T + 16 * i + 2 * k, 2)))
    e("v_pk_mul_f32 v[4:5], %s, 0" % vr(OA, 2))
    for k in range(1, 8):
        e("v_pk_fma_f32 v[4:5], %s, 0, v[4:5]" % vr(OA + 2 * k, 2))
    e("s_mov_b32 s12, 0x%x" % f32(2.0 ** -60))
    e("s_mov_b32 s13, 0x%x" % f32(2.0 ** 60))
    e("v_cmp_nle_f32 s[72:73], s12, v%d" % (OA + 12))
    e("v_cmp_nge_f32 s[74:75], s13, v%d" % (OA + 12))
    e("v_cmp_u_f32 vcc, v4, v5")
    e("s_or_b32 s73, s73, s75")
    e("s_or_b32 s73, s73, vcc_hi")
    e("s_or_b32 s73, s73, vcc_lo")
    if OPT["force_fb"]:
        e("s_mov_b32 s73, 1")
    e("s_cmp_lg_u32 s73, 0")
    e("s_cbranch_scc1 L_fb")
    e("L_fin:")
    e("v_rcp_f32 v4, v%d" % (OA + 12))
    e("v_sub_f32 v6, 1.0, v%d" % V_G)
    e("v_mul_f32 v4, v4, v%d" % V_G)
    e("v_mov_b32 v5, v4")
    e("v_permlane32_swap_b32 v5, v4")
    for k in range(8):
        e("v_pk_mul_f32 %s, %s, v[4:5] op_sel_hi:[1,0]" % (vr(OA + 2 * k, 2), vr(OA + 2 * k, 2)))
    for k in range(8):
        e("v_cvt_pk_bf16_f32 v%d, v%d, v%d" % (32 + k, OA + 2 * k, OA + 2 * k + 1))
    e("v_cndmask_b32 v38, v38, 0, s[14:15]")
    e("v_cndmask_b32 v39, v39, 0, s[14:15]")
    e("buffer_store_dwordx4 v[32:35], v2, s[%d:%d], s6 offen sc1" % (SWS, SWS + 3))
    e("buffer_store_dwordx4 v[36:39], v2, s[%d:%d], s6 offen offset:1024 sc1" % (SWS, SWS + 3))
    e("s_cmp_lg_u32 s%d, 0" % S_HEAD)
    e("s_cbranch_scc1 L_a_nog")
    e("s_lshl_b32 s5, s%d, 7" % S_TT)
    e("s_add_u32 s5, s5, 0x%x" % (G1 - 128))
    e("v_lshlrev_b32 v7, 2, v1")
    e("s_mov_b32 exec_lo, 0")
    e("buffer_store_dword v6, v7, s[%d:%d], s5 offen sc1" % (SWS, SWS + 3))
    e("s_mov_b32 exec_lo, -1")
    e("L_a_nog:")
    e("s_waitcnt vmcnt(0)")
    flag_store(7, 8)
    stamp(5)
    stamp_flush()
    e("s_endpgm")

    SALL = 76
    e("L_fb:")
    srd(SALL, P_WS, 262144, "0x%x" % KV)
    e("v_mov_b32 v7, 0xff800000")
    e("s_mov_b32 s12, 0")
    e("L_fb1:")
    e("buffer_load_dwordx4 v[192:195], v2, s[%d:%d], s12 offen sc1" % (SALL, SALL + 3))
    e("buffer_load_dwordx4 v[196:199], v2, s[%d:%d], s12 offen offset:1024 sc1" % (SALL, SALL + 3))
    e("s_waitcnt vmcnt(0)")
    mfma(SS, 192, QF, None)
    mfma(SS, 196, QF + 4, SS)
    for k in range(8):
        e("v_max3_f32 v7, v7, v%d, v%d" % (SS + 2 * k, SS + 2 * k + 1))
    e("s_add_u32 s12, s12, 4096")
    e("s_cmp_lt_u32 s12, 262144")
    e("s_cbranch_scc1 L_fb1")
    e("v_mov_b32 v8, v7")
    e("v_permlane32_swap_b32 v8, v7")
    e("v_max_f32 v7, v7, v8")
    for k in range(16):
        e("v_mov_b32 v%d, 0" % (OA + k))
    e("s_mov_b32 s12, 0")
    e("L_fb2:")
    for k in range(4):
        e("buffer_load_dwordx4 %s, v2, s[%d:%d], s12 offen offset:%d sc1" % (vr(192 + 4 * k, 4), SALL, SALL + 3, 1024 * k))
    e("s_waitcnt vmcnt(0)")
    mfma(SS, 192, QF, None)
    mfma(SS, 196, QF + 4, SS)
    for k in range(16):
        e("v_sub_f32 v%d, v%d, v7" % (SS + k, SS + k))
    for k in range(16):
        e("v_exp_f32 v%d, v%d" % (SS + k, SS + k))
    for k in range(8):
        e("v_cvt_pk_bf16_f32 v%d, v%d, v%d" % (PP + k, SS + 2 * k, SS + 2 * k + 1))
    mfma(OA, 200, PP, OA)
    mfma(OA, 204, PP + 4, OA)
    e("s_add_u32 s12, s12, 4096")
    e("s_cmp_lt_u32 s12, 262144")
    e("s_cbranch_scc1 L_fb2")
    e("s_nop 8")
    e("s_branch L_fin")


S_STG = 16896
S_INB1 = 16896
S_WL = 49664
S_PX = 67584
KR0, KR1, XC0 = 0, 7680, 15360
XCS = 4160
S_CP = 48640
S_OF, S_G1, S_OT = 0, 32768, 40960


def cmul(d, x, m, t):
    e("v_pk_mul_f32 %s, %s, %s op_sel_hi:[1,0]" % (vr(t, 2), vr(x, 2), vr(m, 2)))
    e("v_pk_fma_f32 %s, %s, %s, %s op_sel:[1,1,0] op_sel_hi:[0,1,1] neg_lo:[1,0,0]" % (vr(d, 2), vr(x, 2), vr(m, 2), vr(t, 2)))


def role_s():
    S_ID, S_J = 8, 9
    SW, SWO, SOUT = 60, 64, 68
    vE = 10
    PRM = 240
    XG = 246
    e("L_roleS:")
    e("s_sub_u32 s%d, s2, 256" % S_ID)
    e("s_lshr_b32 s%d, s%d, 3" % (S_J, S_ID))
    vXg, vXr0, vXr1, vL16, vWr = 2, 3, 4, 5, 6
    x_swizzle_addrs(vXg, vXr0, vXr1, 13, 14)
    e("v_lshlrev_b32 v%d, 4, v1" % vL16)
    e("s_lshl_b32 s5, s%d, 10" % S_ID)
    e("s_lshl_b32 s6, s3, 8")
    e("s_add_u32 s5, s5, s6")
    e("v_lshlrev_b32 v7, 2, v1")
    e("v_add_u32 v7, s5, v7")
    e("s_and_b32 s10, s%d, 7" % S_ID)
    e("s_lshl_b32 s10, s10, 3")
    e("s_waitcnt lgkmcnt(0)")
    if OPT["timing"]:
        e("s_mov_b32 s80, s96")
    srd(SWS, P_WS, WS_BYTES)
    e("buffer_load_dword v%d, off, s[%d:%d], 0 sc1" % (vE, SWS, SWS + 3))
    srd(SX, P_X, 2048 * 896)
    e("s_cmp_lt_u32 s%d, 16" % S_J)
    e("s_cbranch_scc1 L_s_nokv1")
    S_TAU, S_KIND = 11, 12
    e("s_sub_u32 s5, s%d, 16" % S_J)
    e("s_lshr_b32 s5, s5, 1")
    e("s_add_u32 s%d, s10, s5" % S_TAU)
    e("s_and_b32 s%d, s%d, 1" % (S_KIND, S_J))
    e("s_cmp_eq_u32 s%d, 0" % S_KIND)
    e("s_cselect_b32 s%d, s%d, s%d" % (SW, P_WK, P_WV))
    e("s_cselect_b32 s%d, s%d, s%d" % (SW + 1, P_WK + 1, P_WV + 1))
    e("s_mov_b32 s%d, %d" % (SW + 2, 448 * 56))
    e("s_mov_b32 s%d, 0x20000" % (SW + 3))
    e("s_lshl_b32 s5, s3, 13")
    e("s_add_u32 s5, s5, 16896")
    e("s_cmp_eq_u32 s3, 0")
    e("s_cselect_b32 s13, 8192, s5")
    e("s_mul_i32 s14, s3, 7232")
    e("s_add_u32 s14, s14, %d" % S_WL)
    e("s_mul_i32 s5, s%d, 28672" % S_TAU)
    e("s_lshl_b32 s6, s3, 8")
    e("s_add_u32 s5, s5, s6")
    e("s_add_u32 s6, s5, 14336")
    e("s_mov_b32 m0, s13")
    for pp in range(4):
        for rh in range(2):
            e("buffer_load_dwordx4 v%d, s[%d:%d], s%d offen lds" % (vXg, SX, SX + 3, 6 if rh else 5))
            e("s_add_u32 m0, m0, 1024")
            if pp < 3:
                e("s_add_u32 s%d, s%d, 64" % (6 if rh else 5, 6 if rh else 5))
    e("s_mul_i32 s5, s3, 7168")
    e("s_mov_b32 m0, s14")
    e("s_add_u32 s6, s5, 4096")
    for m in range(4):
        e("buffer_load_dwordx4 v%d, s[%d:%d], s5 offen offset:%d lds" % (vL16, SW, SW + 3, 1024 * m))
    e("s_add_u32 m0, m0, 4096")
    for m in range(3):
        e("buffer_load_dwordx4 v%d, s[%d:%d], s6 offen offset:%d lds" % (vL16, SW, SW + 3, 1024 * m))
    e("L_s_nokv1:")
    e("s_cmp_ge_u32 s%d, 224" % S_ID)
    e("s_cbranch_scc1 L_s_noprm")
    for k, p in enumerate((P_ARE, P_AIM, P_BRE, P_BIM, P_CRE, P_CIM)):
        e("global_load_dword v%d, v7, s[%d:%d]" % (PRM + k, p, p + 1))
    e("s_lshl_b32 s5, s%d, 2" % S_ID)
    e("s_load_dword s72, s[%d:%d], s5" % (P_LDT, P_LDT + 1))
    e("s_load_dword s73, s[%d:%d], s5" % (P_DSK, P_DSK + 1))
    e("L_s_noprm:")
    e("s_cmp_lt_u32 s%d, 16" % S_J)
    e("s_cbranch_scc1 L_s_nokv2")
    tr_addr(vWr, 8, 56, 13, 14)
    e("v_add_u32 v%d, s14, v%d" % (vWr, vWr))
    e("v_add_u32 v%d, s13, v%d" % (vXr0, vXr0))
    e("v_add_u32 v%d, s13, v%d" % (vXr1, vXr1))
    e("s_lshl_b32 s5, s3, 11")
    e("v_add_u32 v8, s5, v%d" % vL16)
    XF, WF, DK = 64, 96, 48
    e("s_waitcnt vmcnt(0) lgkmcnt(0)")
    stamp(1)
    for s in range(8):
        e("ds_read_b128 %s, v%d offset:%d" % (vr(XF + 4 * s, 4), vXr1 if s & 1 else vXr0, (s >> 1) * 2048))
        for q in range(2):
            e("ds_read_b64_tr_b16 %s, v%d offset:%d" % (vr(WF + 4 * s + 2 * q, 2), vWr, s * 896 + q * 224))
    e("v_readfirstlane_b32 s4, v%d" % vE)
    e("s_add_u32 s4, s4, 0x%x" % NONCE_ADD)
    e("s_cmp_eq_u32 s%d, 0" % S_KIND)
    e("s_cbranch_scc0 L_s_kind1")
    for s in range(8):
        e("s_waitcnt lgkmcnt(%d)" % min(15, 21 - 3 * s))
        mfma(DK, WF + 4 * s, XF + 4 * s, None if s == 0 else DK)
    e("s_branch L_s_kindj")
    e("L_s_kind1:")
    for s in range(8):
        e("s_waitcnt lgkmcnt(%d)" % min(15, 21 - 3 * s))
        mfma(DK, XF + 4 * s, WF + 4 * s, None if s == 0 else DK)
    e("L_s_kindj:")
    e("s_cmp_eq_u32 s%d, 0" % S_KIND)
    e("s_cselect_b32 s74, 0, 0xe0000000")
    e("s_mov_b32 s75, s74")
    e("s_mov_b32 s76, s74")
    e("s_cselect_b32 s78, 0, 0x10000000")
    e("s_mov_b32 s79, s78")
    e("s_cselect_b32 s5, -1, 0")
    e("s_cmp_eq_u32 s3, 1")
    e("s_cselect_b32 s5, s5, 0")
    e("s_or_b32 s77, s74, s5")
    e("v_mov_b32 v9, 0x3f803f80")
    for q in range(4):
        e("ds_write_b128 v8, %s offset:%d" % (vr(DK + 4 * q, 4), (q >> 1) * S_INB1 + (q & 1) * 1024))
    e("s_waitcnt lgkmcnt(0)")
    e("s_barrier")
    e("s_cmp_ge_u32 s3, 2")
    e("s_cbranch_scc1 L_s_kvdone")
    e("s_mul_i32 s5, s3, %d" % S_INB1)
    e("v_add_u32 v8, s5, v%d" % vL16)
    for k in range(8):
        e("ds_read_b128 %s, v8 offset:%d" % (vr(64 + 4 * k, 4), k * 1024))
    e("s_lshl_b32 s5, s%d, 1" % S_TAU)
    e("s_add_u32 s5, s5, s%d" % S_KIND)
    e("s_lshl_b32 s5, s5, 1")
    e("s_add_u32 s5, s5, s3")
    e("s_lshl_b32 s6, s5, 10")
    e("s_add_u32 s6, s6, 0x%x" % KV)
    e("s_lshl_b32 s7, s5, 7")
    e("s_add_u32 s7, s7, 0x%x" % FLAG_KV)
    e("s_waitcnt lgkmcnt(4)")
    for k in range(4):
        e("v_pk_add_f32 %s, %s, %s" % (vr(64 + 2 * k, 2), vr(64 + 2 * k, 2), vr(72 + 2 * k, 2)))
    e("s_waitcnt lgkmcnt(0)")
    for k in range(4):
        e("v_pk_add_f32 %s, %s, %s" % (vr(80 + 2 * k, 2), vr(80 + 2 * k, 2), vr(88 + 2 * k, 2)))
    for k in range(4):
        e("v_pk_add_f32 %s, %s, %s" % (vr(64 + 2 * k, 2), vr(64 + 2 * k, 2), vr(80 + 2 * k, 2)))
    for k in range(4):
        e("v_cvt_pk_bf16_f32 v%d, v%d, v%d" % (72 + k, 64 + 2 * k, 65 + 2 * k))
    for k in range(4):
        e("v_cndmask_b32 v%d, v%d, 0, %s" % (72 + k, 72 + k, "s[74:75]" if k < 2 else "s[76:77]"))
    for k in range(4):
        e("v_cndmask_b32 v%d, v%d, v9, s[78:79]" % (72 + k, 72 + k))
    e("buffer_store_dwordx4 v[72:75], v%d, s[%d:%d], s6 offen sc1" % (vL16, SWS, SWS + 3))
    e("s_waitcnt vmcnt(0)")
    flag_store(7, 9)
    e("L_s_kvdone:")
    stamp(2)
    e("s_cmp_ge_u32 s%d, 224" % S_ID)
    e("s_cbranch_scc1 L_s_cons")
    e("s_branch L_s_kgen")
    e("L_s_nokv2:")
    e("s_waitcnt vmcnt(0) lgkmcnt(0)")
    e("v_readfirstlane_b32 s4, v%d" % vE)
    e("s_add_u32 s4, s4, 0x%x" % NONCE_ADD)
    e("L_s_kgen:")
    e("s_lshr_b32 s5, s3, 1")
    e("s_lshl_b32 s5, s5, 4")
    e("s_lshr_b32 s72, s72, s5")
    e("s_lshl_b32 s72, s72, 16")
    e("s_lshr_b32 s73, s73, s5")
    e("s_lshl_b32 s73, s73, 16")
    c_hi = struct.unpack("<f", struct.pack("<I", f32(LOG2E) & 0xFFFFFF00))[0]
    c_lo = (LOG2E - c_hi) * math.log(2.0)
    e("v_mov_b32 v8, s72")
    e("v_mul_f32 v9, 0x%x, v8" % f32(c_hi))
    e("v_exp_f32 v9, v9")
    e("v_mul_f32 v8, 0x%x, v8" % f32(c_lo))
    e("v_fma_f32 v9, v9, v8, v9")
    e("v_cvt_pk_bf16_f32 v9, v9, v9")
    e("v_and_b32 v9, 0xffff0000, v9")
    ZR, ZI = (16, 17), (18, 19)
    E1, E8, EG, WW, TT, XX = (20, 22), (24, 26), (28, 30), (32, 34), (36, 38), (40, 42)
    R2, R4, R6 = (44, 46), (48, 50), (52, 54)
    OUT = 56

    def unp(d, src, m):
        if m == 0:
            e("v_lshlrev_b32 v%d, 16, v%d" % (d, src))
        else:
            e("v_and_b32 v%d, 0xffff0000, v%d" % (d, src))

    for m in range(2):
        unp(ZR[m], PRM + 0, m)
        unp(ZI[m], PRM + 1, m)
    for m in range(2):
        e("v_mul_f32 v%d, v9, v%d" % (ZR[m], ZR[m]))
        e("v_mul_f32 v%d, v9, v%d" % (ZI[m], ZI[m]))
    for m in range(2):
        e("v_mul_f32 v%d, 0x%x, v%d" % (ZR[m], f32(LOG2E), ZR[m]))
        e("v_mul_f32 v%d, 0x%x, v%d" % (ZI[m], f32(1.0 / (2 * math.pi)), ZI[m]))

    def cexp(dst, mult, conj):
        for m in range(2):
            if mult != 1:
                e("v_mul_f32 v%d, 0x%x, v%d" % (TT[m], f32(mult), ZR[m]))
                e("v_mul_f32 v%d, 0x%x, v%d" % (TT[m] + 1, f32(mult), ZI[m]))
                e("v_fract_f32 v%d, v%d" % (TT[m] + 1, TT[m] + 1))
            else:
                e("v_mov_b32 v%d, v%d" % (TT[m], ZR[m]))
                e("v_fract_f32 v%d, v%d" % (TT[m] + 1, ZI[m]))
        for m in range(2):
            e("v_exp_f32 v%d, v%d" % (TT[m], TT[m]))
            e("v_cos_f32 v%d, v%d" % (dst[m], TT[m] + 1))
            e("v_sin_f32 v%d, v%d" % (dst[m] + 1, TT[m] + 1))
        for m in range(2):
            e("v_pk_mul_f32 %s, %s, %s op_sel_hi:[1,0]%s" % (vr(dst[m], 2), vr(dst[m], 2), vr(TT[m], 2), " neg_hi:[1,0]" if conj else ""))

    cexp(E8, 8, True)
    e("s_mul_i32 s13, s3, %d" % S_STG)
    e("v_lshlrev_b32 v8, 3, v1")
    e("v_add_u32 v8, s13, v8")
    e("v_and_b32 v11, 31, v1")
    e("v_mul_u32_u24 v11, 528, v11")
    e("v_lshrrev_b32 v12, 5, v1")
    e("v_lshl_add_u32 v11, v12, 4, v11")
    e("v_add_u32 v11, s13, v11")
    ring = [0]

    def put(row, src):
        o = OUT + 2 * (ring[0] & 3)
        ring[0] += 1
        for m in range(2):
            e("v_cvt_pk_bf16_f32 v%d, v%d, v%d" % (o + m, src[m], src[m] + 1))
        e("ds_write_b64 v8, %s offset:%d" % (vr(o, 2), row * 528))

    e("v_mov_b32 v%d, 0x3f80" % OUT)
    e("v_mov_b32 v%d, 0x3f80" % (OUT + 1))
    e("ds_write_b64 v8, %s" % vr(OUT, 2))
    ring[0] = 1
    put(1, E8)
    for j in range(2, 32):
        src = E8 if j == 2 else XX
        for m in range(2):
            e("v_pk_mul_f32 %s, %s, %s op_sel_hi:[1,0]" % (vr(TT[m], 2), vr(src[m], 2), vr(E8[m], 2)))
        for m in range(2):
            e("v_pk_fma_f32 %s, %s, %s, %s op_sel:[1,1,0] op_sel_hi:[0,1,1] neg_lo:[1,0,0]" % (vr(XX[m], 2), vr(src[m], 2), vr(E8[m], 2), vr(TT[m], 2)))
        put(j, XX)
    BF, AF, DD = 64, 128, 192
    for s in range(16):
        e("ds_read_b128 %s, v11 offset:%d" % (vr(BF + 4 * s, 4), s * 32))
    e("s_lshl_b32 s5, s3, 9")
    e("s_mul_i32 s5, s5, 896")
    e("s_lshl_b32 s6, s%d, 2" % S_ID)
    e("s_add_u32 s5, s5, s6")
    e("v_mul_u32_u24 v12, 896, v1")
    e("s_sub_u32 s6, s5, 896")
    e("v_mov_b32 v13, s6")
    e("buffer_load_dword v%d, v13, s[%d:%d], 0 offen" % (XG, SX, SX + 3))
    for c in range(8):
        e("buffer_load_dword v%d, v12, s[%d:%d], s5 offen" % (XG + 1 + c, SX, SX + 3))
        if c < 7:
            e("s_add_u32 s5, s5, %d" % (64 * 896))
    cexp(E1, 1, False)
    cexp(EG, 256, False)

    def mul2(dst, src, mu):
        for m in range(2):
            e("v_pk_mul_f32 %s, %s, %s op_sel_hi:[1,0]" % (vr(TT[m], 2), vr(src[m], 2), vr(mu[m], 2)))
        for m in range(2):
            e("v_pk_fma_f32 %s, %s, %s, %s op_sel:[1,1,0] op_sel_hi:[0,1,1] neg_lo:[1,0,0]" % (vr(dst[m], 2), vr(src[m], 2), vr(mu[m], 2), vr(TT[m], 2)))

    for m in range(2):
        unp(XX[m], PRM + 2, m)
        unp(XX[m] + 1, PRM + 3, m)
        unp(R2[m], PRM + 4, m)
        unp(R2[m] + 1, PRM + 5, m)
    for m in range(2):
        e("v_mul_f32 v%d, v9, v%d" % (XX[m], XX[m]))
        e("v_mul_f32 v%d, v9, v%d" % (XX[m] + 1, XX[m] + 1))
    mul2(WW, R2, XX)
    put(0, WW)
    mul2(XX, WW, E1); put(1, XX)
    mul2(R2, XX, E1); put(2, R2)
    mul2(XX, R2, E1); put(3, XX)
    mul2(R4, XX, E1); put(4, R4)
    mul2(XX, R4, E1); put(5, XX)
    mul2(R6, XX, E1); put(6, R6)
    mul2(XX, R6, E1); put(7, XX)
    for row in (8, 12, 9, 13, 10, 14, 11, 15):
        mul2(WW, WW, EG); put(row, WW)
    mul2(R2, R2, EG); put(16, R2)
    mul2(R4, R4, EG); put(17, R4)
    mul2(R6, R6, EG); put(18, R6)
    mul2(R4, R4, EG); put(20, R4)
    mul2(R4, R4, EG); put(19, R4)
    for s in range(16):
        e("ds_read_b128 %s, v11 offset:%d" % (vr(AF + 4 * s, 4), s * 32))
    e("s_mul_i32 s5, s3, 3072")
    e("s_add_u32 s5, s5, %d" % S_PX)
    e("v_add_u32 v12, s5, v%d" % vL16)
    e("s_xor_b32 s6, s3, 1")
    e("s_mul_i32 s6, s6, 3072")
    e("s_add_u32 s6, s6, %d" % S_PX)
    e("v_add_u32 v13, s6, v%d" % vL16)
    for s in range(16):
        e("s_waitcnt lgkmcnt(%d)" % (15 - s))
        mfma(DD, AF + 4 * s, BF + 4 * s, None if s == 0 else DD)
    e("s_lshr_b32 s5, s3, 1")
    e("s_mul_i32 s14, s5, %d" % KR1)
    e("v_sub_u32 v14, 223, v1")
    e("v_lshrrev_b32 v15, 2, v14")
    e("v_mul_u32_u24 v15, 80, v15")
    e("v_and_b32 v14, 3, v14")
    e("v_lshl_add_u32 v14, v14, 4, v15")
    e("v_add_u32 v14, s14, v14")
    e("v_mov_b32 v16, 0")
    e("v_mov_b32 v17, 0")
    e("v_mov_b32 v18, 0")
    e("v_mov_b32 v19, 0")
    e("v_add_u32 v15, s14, v%d" % vL16)
    e("s_mov_b32 s74, 0")
    e("s_mov_b32 s75, -1")
    e("s_mov_b32 s76, 0xaaaaaaaa")
    e("s_mov_b32 s77, 0xaaaaaaaa")
    for q in range(3):
        e("ds_write_b128 v12, %s offset:%d" % (vr(DD + 4 * q, 4), q * 1024))
    e("s_waitcnt lgkmcnt(0)")
    e("s_barrier")
    stamp(3)
    for q in range(3):
        e("ds_read_b128 %s, v13 offset:%d" % (vr(64 + 4 * q, 4), q * 1024))
    e("v_and_b32 v20, 1, v1")
    e("v_mul_u32_u24 v21, %d, v20" % (XCS - 2))
    e("v_lshl_add_u32 v21, v1, 1, v21")
    e("s_lshl_b32 s5, s3, 10")
    e("s_add_u32 s5, s5, %d" % (XC0 + 60))
    e("v_add_u32 v21, s5, v21")
    e("s_cmp_lg_u32 s3, 0")
    e("s_cbranch_scc1 L_s_nohead")
    e("v_bfe_u32 v22, v1, 2, 3")
    e("v_mul_u32_u24 v22, %d, v22" % XCS)
    e("v_and_b32 v23, 3, v1")
    e("v_lshl_add_u32 v22, v23, 4, v22")
    e("ds_write_b128 v22, v[16:19] offset:%d" % XC0)
    e("L_s_nohead:")
    e("s_mov_b32 s6, 0x05040100")
    e("s_mov_b32 s7, 0x07060302")
    e("s_waitcnt vmcnt(0)")
    for c in range(8):
        pv = 24 + 4 * (c & 1)
        if c == 0:
            e("v_mov_b32 v%d, v%d" % (pv, XG))
        else:
            e("v_mov_b32_dpp v%d, v%d wave_ror:1 row_mask:0xf bank_mask:0xf" % (pv, XG + c))
        e("v_mov_b32_dpp v%d, v%d wave_shr:1 row_mask:0xf bank_mask:0xf" % (pv, XG + 1 + c))
        e("v_perm_b32 v%d, v%d, v%d, s6" % (pv + 1, XG + 1 + c, pv))
        e("v_perm_b32 v%d, v%d, v%d, s7" % (pv + 2, XG + 1 + c, pv))
        for ch in range(2):
            for s2 in range(2):
                e("ds_write_b32 v21, v%d offset:%d" % (pv + 1 + ch, c * 128 + ch * 4 * XCS + s2 * (2 * XCS - 4)))
    e("s_waitcnt lgkmcnt(15)")
    for k in range(6):
        e("v_pk_add_f32 %s, %s, %s" % (vr(DD + 2 * k, 2), vr(DD + 2 * k, 2), vr(64 + 2 * k, 2)))
    D = lambda r: DD + r

    def nxt(dst, r):
        if r < 7:
            e("v_mov_b32_dpp v%d, v%d wave_rol:1 row_mask:0xf bank_mask:0xf" % (dst, D(r + 1)))
        e("v_mov_b32_dpp v%d, v%d wave_shl:1 row_mask:0xf bank_mask:0xf" % (dst, D(r)))

    def pk(d, lo, hi):
        e("v_cvt_pk_bf16_f32 v%d, v%d, v%d" % (d, lo, hi))

    e("s_bitcmp1_b32 s3, 0")
    e("s_cbranch_scc1 L_s_expB")
    e("ds_write_b128 v15, v[16:19] offset:5120")
    e("ds_write_b128 v15, v[16:19] offset:6144")
    e("v_mov_b32 v32, s73")
    e("v_cmp_eq_u32 vcc, 0, v1")
    e("v_cndmask_b32 v32, 0, v32, vcc")
    e("v_add_f32 v%d, v%d, v32" % (D(0), D(0)))
    e("v_and_b32 v33, 31, v1")
    e("v_sub_u32 v33, 255, v33")
    e("v_lshrrev_b32 v34, 2, v33")
    e("v_mul_u32_u24 v34, 80, v34")
    e("v_and_b32 v33, 3, v33")
    e("v_lshl_add_u32 v33, v33, 4, v34")
    e("v_add_u32 v33, s14, v33")
    e("v_add_u32 v34, 8, v33")
    e("v_cndmask_b32 v33, v34, v33, s[74:75]")
    pk(36, D(3), D(2))
    pk(37, D(1), D(0))
    e("ds_write_b64 v33, v[36:37]")
    nxt(40, 4)
    e("v_cndmask_b32 v41, v%d, v40, s[74:75]" % D(10))
    e("v_cndmask_b32 v42, v%d, v%d, s[74:75]" % (D(9), D(8)))
    e("v_cndmask_b32 v43, v%d, v%d, s[74:75]" % (D(8), D(4)))
    pk(44, 40, 41)
    pk(45, 42, 42)
    pk(46, 42, 43)
    pk(47, D(4), D(4))
    e("ds_write_b128 v14, v[44:47]")
    e("s_branch L_s_expJ")
    e("L_s_expB:")
    e("ds_write_b128 v15, v[16:19] offset:6656")
    e("v_subrev_u32 v14, 2560, v14")
    nxt(40, 5)
    e("v_cndmask_b32 v41, v%d, v40, s[76:77]" % D(5))
    e("v_cndmask_b32 v42, v%d, v40, s[74:75]" % D(11))
    e("v_cndmask_b32 v41, v%d, v41, s[74:75]" % D(11))
    e("v_cndmask_b32 v43, v%d, v%d, s[74:75]" % (D(11), D(5)))
    pk(44, 40, 40)
    pk(45, 42, 41)
    pk(46, 43, D(5))
    pk(47, D(5), D(5))
    e("ds_write_b128 v14, v[44:47] offset:1280")
    for r in (6, 7):
        o = 48 if r == 6 else 56
        nxt(o, r)
        e("v_cndmask_b32 v%d, v%d, v%d, s[76:77]" % (o + 1, D(r), o))
        pk(o + 4, o, o)
        pk(o + 5, o, o + 1)
        pk(o + 6, D(r), D(r))
        pk(o + 7, D(r), D(r))
        if r == 6:
            e("ds_write_b128 v14, %s" % vr(o + 4, 4))
        else:
            e("v_subrev_u32 v14, 1280, v14")
            e("s_mov_b32 exec_hi, 0")
            e("ds_write_b128 v14, %s" % vr(o + 4, 4))
            e("s_mov_b32 exec_hi, -1")
    e("L_s_expJ:")
    vX, vK = 8, 9
    e("v_and_b32 v10, 3, v1")
    e("v_mul_u32_u24 v%d, %d, v10" % (vX, XCS))
    e("v_bfe_u32 v10, v1, 2, 3")
    e("v_lshl_add_u32 v%d, v10, 3, v%d" % (vX, vX))
    e("v_lshrrev_b32 v10, 5, v1")
    e("v_lshl_add_u32 v%d, v10, 4, v%d" % (vX, vX))
    e("v_and_b32 v11, 31, v1")
    e("v_sub_u32 v11, 31, v11")
    e("v_mul_u32_u24 v%d, 80, v11" % vK)
    e("v_lshl_add_u32 v%d, v10, 4, v%d" % (vK, vK))
    e("s_lshr_b32 s5, s3, 1")
    e("s_mul_i32 s5, s5, %d" % (4 * XCS))
    e("s_add_u32 s5, s5, %d" % XC0)
    e("s_and_b32 s6, s3, 1")
    e("s_mul_i32 s7, s6, %d" % (48 * 32))
    e("s_add_u32 s5, s5, s7")
    e("v_add_u32 v%d, s5, v%d" % (vX, vX))
    e("s_mul_i32 s7, s6, %d" % (24 * 80))
    e("s_add_u32 s7, s7, s14")
    e("v_add_u32 v%d, s7, v%d" % (vK, vK))
    e("s_cmp_eq_u32 s6, 0")
    e("s_cselect_b32 s13, 6, 2")
    Y0, Y1, RG = 64, 80, 96
    for k in range(32):
        e("v_mov_b32 v%d, 0" % (Y0 + k))
    e("s_waitcnt lgkmcnt(0)")
    e("s_barrier")
    stamp(4)
    e("s_setprio 2")

    def rdx(st, sg):
        e("ds_read2_b64 %s, v%d offset0:%d offset1:%d" % (vr(RG + 12 * st, 4), vX, 4 * sg, 4 * sg + 1))

    def rdk(st, sg, tile):
        e("ds_read_b128 %s, v%d offset:%d" % (vr(RG + 12 * st + 4 + 4 * tile, 4), vK, 80 * (sg >> 1) + 32 * (sg & 1) + (0 if tile else 2560)))

    NST = 4
    for st in range(NST - 1):
        rdx(st, st); rdk(st, st, 0); rdk(st, st, 1)
    e("L_conv2:")
    for sg in range(8):
        st = sg % NST
        sn = (sg + NST - 1) % NST
        rdx(sn, sg + NST - 1); rdk(sn, sg + NST - 1, 0); rdk(sn, sg + NST - 1, 1)
        e("s_waitcnt lgkmcnt(%d)" % (3 * (NST - 1)))
        mfma(Y0, RG + 12 * st + 4, RG + 12 * st, Y0)
        if sg == 7:
            e("v_add_u32 v%d, 256, v%d" % (vX, vX))
            e("v_add_u32 v%d, 320, v%d" % (vK, vK))
            e("s_sub_u32 s13, s13, 1")
            e("s_cmp_lg_u32 s13, 0")
        mfma(Y1, RG + 12 * st + 8, RG + 12 * st, Y1)
    e("s_cbranch_scc1 L_conv2")
    e("s_bitcmp1_b32 s3, 0")
    e("s_cbranch_scc0 L_conv_done")
    e("s_mov_b32 s13, 8")
    e("s_waitcnt lgkmcnt(0)")
    e("L_conv1:")
    for sg in range(8):
        st = sg % NST
        sn = (sg + NST - 1) % NST
        rdx(sn, sg + NST - 1); rdk(sn, sg + NST - 1, 1)
        e("s_waitcnt lgkmcnt(%d)" % (2 * (NST - 1)))
        if sg == 7:
            e("v_add_u32 v%d, 256, v%d" % (vX, vX))
            e("v_add_u32 v%d, 320, v%d" % (vK, vK))
            e("s_sub_u32 s13, s13, 1")
            e("s_cmp_lg_u32 s13, 0")
        mfma(Y1, RG + 12 * st + 8, RG + 12 * st, Y1)
    e("s_cbranch_scc1 L_conv1")
    e("L_conv_done:")
    e("s_setprio 0")
    stamp(5)
    e("s_lshl_b32 s5, s3, 13")
    e("s_add_u32 s5, s5, %d" % S_CP)
    e("v_add_u32 v10, s5, v%d" % vL16)
    e("s_and_b32 s5, s3, 1")
    e("s_lshr_b32 s6, s3, 1")
    e("s_lshl_b32 s7, s5, 12")
    e("s_lshl_b32 s12, s6, 11")
    e("s_add_u32 s7, s7, s12")
    e("s_add_u32 s7, s7, %d" % S_CP)
    e("v_add_u32 v11, s7, v%d" % vL16)
    e("s_lshl_b32 s5, s5, 1")
    e("s_add_u32 s5, s5, s6")
    e("s_mul_i32 s5, s5, %d" % (16 * 224))
    e("s_add_u32 s5, s5, s%d" % S_ID)
    e("s_lshl_b32 s5, s5, 7")
    e("s_add_u32 s12, s5, 0x%x" % B2)
    e("v_lshrrev_b32 v12, 5, v1")
    e("v_mul_u32_u24 v12, %d, v12" % (4 * 224 * 128))
    e("v_and_b32 v13, 31, v1")
    e("v_lshl_add_u32 v12, v13, 2, v12")
    e("s_waitcnt lgkmcnt(0)")
    for k in range(8):
        e("ds_write_b128 v10, %s offset:%d" % (vr(Y0 + 4 * k, 4), k * 1024))
    e("s_waitcnt lgkmcnt(0)")
    e("s_barrier")
    for w in range(4):
        for q in range(2):
            e("ds_read_b128 %s, v11 offset:%d" % (vr(96 + 8 * w + 4 * q, 4), w * 8192 + q * 1024))
    e("s_lshl_b32 s7, s%d, 2" % S_ID)
    e("s_add_u32 s7, s7, s3")
    e("s_lshl_b32 s7, s7, 7")
    e("s_add_u32 s7, s7, 0x%x" % FLAG_B)
    e("s_waitcnt lgkmcnt(0)")
    e("s_barrier")
    for k in range(4):
        e("v_pk_add_f32 %s, %s, %s" % (vr(96 + 2 * k, 2), vr(96 + 2 * k, 2), vr(104 + 2 * k, 2)))
        e("v_pk_add_f32 %s, %s, %s" % (vr(112 + 2 * k, 2), vr(112 + 2 * k, 2), vr(120 + 2 * k, 2)))
    for k in range(8):
        e("v_cvt_pk_bf16_f32 v%d, v%d, v%d" % (128 + k, 96 + k, 112 + k))
    for k in range(8):
        e("buffer_store_dword v%d, v12, s[%d:%d], s12 offen sc1" % (128 + k, SWS, SWS + 3))
        if k < 7:
            e("s_add_u32 s12, s12, %d" % ((5 if k == 3 else 1) * 28672))
    e("s_waitcnt vmcnt(0)")
    flag_store(7, 13)
    stamp(6)
    e("L_s_cons:")
    S_TT, S_JG = 11, 12
    WO = 128
    e("s_lshr_b32 s5, s%d, 2" % S_J)
    e("s_add_u32 s%d, s10, s5" % S_TT)
    e("s_and_b32 s%d, s%d, 3" % (S_JG, S_J))
    srd(SWO, P_WO, 448 * 896)
    srd(SOUT, P_OUT, 2048 * 896)
    e("v_lshrrev_b32 v13, 2, v1")
    e("v_mul_u32_u24 v8, 896, v13")
    e("v_and_b32 v13, 3, v1")
    e("v_lshl_add_u32 v8, v13, 4, v8")
    tr_addr(9, 4, 64, 13, 14)
    e("s_mul_i32 s13, s3, 20480")
    e("v_add_u32 v9, s13, v9")
    e("s_mul_i32 s14, s%d, 224" % S_JG)
    e("s_mul_i32 s5, s3, 56")
    e("s_add_u32 s14, s14, s5")
    for ck in range(2):
        e("s_mov_b32 m0, s13")
        e("s_add_u32 s5, s14, %d" % (ck * 224 * 896))
        for m in range(15):
            e("buffer_load_dwordx4 v8, s[%d:%d], s5 offen lds" % (SWO, SWO + 3))
            if m < 14:
                e("s_add_u32 m0, m0, 1024")
                e("s_add_u32 s5, s5, 14336")
        e("s_waitcnt vmcnt(0)")
        for hd in range(8):
            for kp in range(2):
                for q in range(2):
                    e("ds_read_b64_tr_b16 %s, v9 offset:%d" % (vr(WO + 64 * ck + 8 * hd + 4 * kp + 2 * q, 2), (28 * hd + 16 * kp + 8 * q) * 64))
        e("s_waitcnt lgkmcnt(0)")
    e("s_barrier")
    stamp(7)
    e("s_cmp_lg_u32 s3, 0")
    e("s_cbranch_scc1 L_s_noalive")
    e("s_lshl_b32 s5, s2, 7")
    e("s_add_u32 s5, s5, 0x%x" % ALIVE)
    flag_store(5, 13)
    e("s_cmp_lg_u32 s2, 511")
    e("s_cbranch_scc1 L_s_noalive")
    e("v_lshlrev_b32 v13, 7, v1")
    e("v_add_u32 v13, 0x%x, v13" % ALIVE)
    poll("alive", 13, 16, sleep=8, n=8, step=8192)
    e("s_mov_b32 s5, 0")
    flag_store(5, 13)
    e("L_s_noalive:")
    e("s_mul_i32 s13, s%d, 56" % S_JG)
    e("s_mul_i32 s5, s3, 14")
    e("s_add_u32 s13, s13, s5")
    e("s_lshr_b32 s5, s%d, 5" % S_TT)
    e("s_bfe_u32 s6, s%d, 0x10004" % S_TT)
    e("s_lshl_b32 s6, s6, 1")
    e("s_add_u32 s5, s5, s6")
    e("s_lshl_b32 s6, s13, 2")
    e("s_add_u32 s5, s5, s6")
    e("s_lshl_b32 s5, s5, 7")
    e("s_add_u32 s5, s5, 0x%x" % FLAG_B)
    e("v_min_u32 v13, 13, v1")
    e("v_lshlrev_b32 v13, 9, v13")
    e("v_add_u32 v13, s5, v13")
    poll("b", 13, 14, sleep=4)
    BB = 24
    e("s_mul_i32 s5, s%d, 224" % S_TT)
    e("s_add_u32 s5, s5, s13")
    e("s_lshl_b32 s5, s5, 7")
    e("s_add_u32 s5, s5, 0x%x" % B2)
    e("v_lshrrev_b32 v10, 5, v1")
    e("v_and_b32 v11, 31, v1")
    e("v_lshlrev_b32 v13, 8, v10")
    e("v_lshl_add_u32 v13, v11, 2, v13")
    for q in range(4):
        if q == 3:
            e("s_mov_b32 exec_hi, 0")
        for p in range(2):
            e("buffer_load_dword v%d, v13, s[%d:%d], s5 offen offset:%d sc1" % (BB + 2 * q + p, SWS, SWS + 3, (4 * q + p) * 128))
    e("s_mov_b32 exec_hi, -1")
    e("s_lshl_b32 s5, s%d, 4" % S_TT)
    e("s_lshl_b32 s6, s3, 2")
    e("s_add_u32 s5, s5, s6")
    e("s_lshl_b32 s14, s5, 11")
    e("s_add_u32 s14, s14, 0x%x" % OW)
    e("s_add_u32 s15, s14, 4096")
    e("s_lshl_b32 s5, s5, 7")
    e("s_add_u32 s5, s5, 0x%x" % FLAG_O)
    e("v_and_b32 v13, 3, v1")
    e("v_lshlrev_b32 v13, 7, v13")
    e("v_add_u32 v13, s5, v13")
    e("s_lshl_b32 s5, s3, 13")
    e("v_add_u32 v12, s5, v%d" % vL16)
    e("v_lshlrev_b32 v14, 2, v11")
    e("s_lshl_b32 s72, s%d, 7" % S_TT)
    e("s_add_u32 s72, s72, 0x%x" % G1)
    e("v_mul_u32_u24 v15, 240, v11")
    e("v_lshl_add_u32 v15, v10, 3, v15")
    e("s_mul_i32 s5, s3, 56")
    e("s_add_u32 s5, s5, %d" % S_OT)
    e("v_add_u32 v15, s5, v15")
    for k in range(2):
        e("v_add_u32 v16, %d, v1" % (64 * k))
        e("v_mul_u32_u24 v17, 4682, v16")
        e("v_lshrrev_b32 v17, 16, v17")
        e("v_mul_u32_u24 v18, 14, v17")
        e("v_sub_u32 v16, v16, v18")
        e("v_mul_u32_u24 v18, 240, v17")
        e("v_lshl_add_u32 v%d, v16, 4, v18" % (20 + 2 * k))
        e("v_mul_u32_u24 v18, 896, v17")
        e("v_lshl_add_u32 v%d, v16, 4, v18" % (21 + 2 * k))
    e("s_mul_i32 s5, s3, %d" % (8 * 240))
    e("s_add_u32 s5, s5, %d" % S_OT)
    e("v_add_u32 v20, s5, v20")
    e("v_add_u32 v22, s5, v22")
    e("s_lshl_b32 s5, s%d, 2" % S_TT)
    e("s_add_u32 s5, s5, s3")
    e("s_mul_i32 s73, s5, %d" % (8 * 896))
    e("s_mul_i32 s5, s%d, 224" % S_JG)
    e("s_add_u32 s73, s73, s5")
    stamp(8)
    poll("o", 13, 16, sleep=1)
    stamp(9)
    e("s_setprio 3")
    OL = 32
    for k in range(8):
        e("buffer_load_dwordx4 %s, v%d, s[%d:%d], s%d offen offset:%d sc1" % (vr(OL + 4 * k, 4), vL16, SWS, SWS + 3, 14 + (k >> 2), (k & 3) * 1024))
    e("s_cmp_lg_u32 s3, 0")
    e("s_cbranch_scc1 L_s_nog")
    e("buffer_load_dword v16, v14, s[%d:%d], s72 offen sc1" % (SWS, SWS + 3))
    e("s_waitcnt vmcnt(0)")
    e("ds_write_b32 v14, v16 offset:%d" % S_G1)
    e("L_s_nog:")
    for k in range(8):
        e("s_waitcnt vmcnt(%d)" % (7 - k))
        e("ds_write_b128 v12, %s offset:%d" % (vr(OL + 4 * k, 4), k * 1024))
    e("s_waitcnt lgkmcnt(0)")
    e("s_barrier")
    DO, OF = 64, 80
    e("ds_read_b32 v16, v14 offset:%d" % S_G1)
    for k in range(7):
        e("ds_read_b128 %s, v%d offset:%d" % (vr(OF + 4 * k, 4), vL16, k * 1024))
    for k in range(32):
        if k + 7 < 32:
            e("ds_read_b128 %s, v%d offset:%d" % (vr(OF + 4 * ((k + 7) & 7), 4), vL16, (k + 7) * 1024))
        e("s_waitcnt lgkmcnt(%d)" % min(7, 31 - k))
        mfma(DO, WO + 4 * k, OF + 4 * (k & 7), None if k == 0 else DO)
        if k < 8:
            e("v_lshlrev_b32 v%d, 16, v%d" % (OL + 2 * k, BB + k))
            e("v_and_b32 v%d, 0xffff0000, v%d" % (OL + 2 * k + 1, BB + k))
    for k in range(8):
        e("v_pk_fma_f32 %s, %s, v[16:17], %s op_sel_hi:[1,0,1]" % (vr(DO + 2 * k, 2), vr(OL + 2 * k, 2), vr(DO + 2 * k, 2)))
    for k in range(8):
        e("v_cvt_pk_bf16_f32 v%d, v%d, v%d" % (OL + k, DO + 2 * k, DO + 2 * k + 1))
    for q in range(4):
        if q == 3:
            e("s_mov_b32 exec_hi, 0")
        e("ds_write_b64 v15, %s offset:%d" % (vr(OL + 2 * q, 2), 16 * q))
    e("s_mov_b32 exec_hi, -1")
    e("s_waitcnt lgkmcnt(0)")
    e("s_barrier")
    e("ds_read_b128 v[40:43], v20")
    e("ds_read_b128 v[44:47], v22")
    e("s_waitcnt lgkmcnt(1)")
    e("buffer_store_dwordx4 v[40:43], v21, s[%d:%d], s73 offen" % (SOUT, SOUT + 3))
    e("s_mov_b32 exec_hi, 0xffff")
    e("s_waitcnt lgkmcnt(0)")
    e("buffer_store_dwordx4 v[44:47], v23, s[%d:%d], s73 offen" % (SOUT, SOUT + 3))
    e("s_mov_b32 exec_hi, -1")
    if OPT["timing"]:
        e("s_waitcnt vmcnt(0)")
    stamp(10)
    stamp_flush()
    e("L_end:")
    e("s_endpgm")


prologue()
role_a()
role_s()

lines, nops = asmcheck.fix_hazards(L, verbose=bool(OPT.get("v", 0)))
errs = asmcheck.check_waitcnt(lines)
for er in errs:
    print("WAITCNT?", er, file=sys.stderr)
print("instructions: %d, wait states inserted: %d" % (len(lines), nops), file=sys.stderr)

ref = open("cdna_kernels/%s.s.ref" % NAME).read()
head = ref[: ref.index("; Override launch")]
text = head + """; Override launch geometry by editing the next line (default: block=256,
; grid=ceil(out_elems/256), lds=0). Harness parses it; keep it on one line.
; @launch grid=(512,1,1) block=(256,1,1) lds=81920
.amdgcn_target "amdgcn-amd-amdhsa--gfx950"
.text
.globl %s_kernel
.p2align 8
.type %s_kernel,@function
%s_kernel:
""" % (NAME, NAME, NAME) + "\n".join(lines) + """
.section .rodata,"a"
.p2align 6
.amdhsa_kernel %s_kernel
  .amdhsa_next_free_vgpr 256
  .amdhsa_next_free_sgpr 102
  .amdhsa_accum_offset 256
  .amdhsa_group_segment_fixed_size 0
  .amdhsa_kernarg_size 144
  .amdhsa_user_sgpr_count 2
  .amdhsa_user_sgpr_kernarg_segment_ptr 1
  .amdhsa_system_sgpr_workgroup_id_x 1
.end_amdhsa_kernel
""" % NAME
open(sys.argv[1], "w").write(text)
```

```python
import sys, struct, math, os
sys.path.insert(0, os.path.dirname(os.path.abspath(__file__)))
import asmcheck

NAME = "gated_mix__grouped_kv_mqa__ssm_conv_s4__prompt"
OPT = dict(timing=0, force_fb=0, spin=400000)
for a in sys.argv[2:]:
    k, v = a.split("=")
    OPT[k] = int(v)

FLAG_KV = 0x1000
FLAG_O = 0x10000
FLAG_B = 0x30000
ALIVE = 0x50000
G1 = 0x60000
KV = 0x100000
OW = 0x200000
B2 = 0x400000
TSB = 0x800000
WS_BYTES = 0x1000000
NONCE_ADD = 0x9E3779B9

L = []


def e(s):
    for x in s.split("\n"):
        x = x.strip()
        if x:
            L.append(x if x.endswith(":") else "    " + x)


def f32(x):
    return struct.unpack("<I", struct.pack("<f", x))[0]


def vr(a, n=1):
    return "v%d" % a if n == 1 else "v[%d:%d]" % (a, a + n - 1)


def sr(a, n=1):
    return "s%d" % a if n == 1 else "s[%d:%d]" % (a, a + n - 1)


def srd(d, base, nbytes, add=None):
    if add is None:
        e("s_mov_b32 s%d, s%d" % (d, base))
        e("s_mov_b32 s%d, s%d" % (d + 1, base + 1))
    else:
        e("s_add_u32 s%d, s%d, %s" % (d, base, add))
        e("s_addc_u32 s%d, s%d, 0" % (d + 1, base + 1))
    e("s_mov_b32 s%d, 0x%x" % (d + 2, nbytes))
    e("s_mov_b32 s%d, 0x20000" % (d + 3))


def mfma(d, a, b, c):
    e("v_mfma_f32_32x32x16_bf16 %s, %s, %s, %s" % (vr(d, 16), vr(a, 4), vr(b, 4), "0" if c is None else vr(c, 16)))


P_X, P_WQ, P_WK, P_WV, P_WO = 16, 18, 20, 22, 24
P_ARE, P_AIM, P_BRE, P_BIM, P_CRE, P_CIM, P_LDT, P_DSK, P_GW, P_OUT, P_WS = 28, 30, 32, 34, 36, 38, 40, 42, 44, 46, 48
SX, SWS = 52, 56
S_WAVE, S_NONCE = 3, 4
V_LANE = 1
LOG2E = 1.4426950408889634

stamp_n = [0]


def stamp(idx):
    if OPT["timing"]:
        e("s_memrealtime s[96:97]")
        e("s_waitcnt lgkmcnt(0)")
        e("s_mov_b32 s%d, s96" % (80 + idx))


def stamp_flush():
    if OPT["timing"]:
        e("s_memtime s[94:95]")
        e("s_memrealtime s[96:97]")
        e("s_waitcnt lgkmcnt(0)")
        e("s_sub_u32 s91, s94, s92")
        e("s_sub_u32 s92, s96, s80")
        e("s_mov_b32 s72, s50")
        e("s_mov_b32 s73, s51")
        e("s_mov_b32 s74, 256")
        e("s_mov_b32 s75, 0x20000")
        e("s_sub_u32 s94, 0, s80")
        e("v_mov_b32 v2, s94")
        e("v_mov_b32 v3, s96")
        e("s_mov_b32 exec_lo, 1")
        e("s_mov_b32 exec_hi, 0")
        e("buffer_atomic_umax v2, off, s[72:75], 0 sc1")
        e("buffer_atomic_umax v3, off, s[72:75], 0 offset:4 sc1")
        e("s_mov_b64 exec, -1")
        e("v_mov_b32 v2, 0")
        for k in range(13):
            e("v_mov_b32 v3, s%d" % (80 + k))
            e("v_cmp_eq_u32 vcc, %d, v%d" % (k, V_LANE))
            e("v_cndmask_b32 v2, v2, v3, vcc")
        e("s_lshl_b32 s96, s2, 2")
        e("s_add_u32 s96, s96, s3")
        e("s_lshl_b32 s96, s96, 6")
        e("s_add_u32 s96, s96, 0x%x" % TSB)
        e("v_lshlrev_b32 v3, 2, v%d" % V_LANE)
        e("v_cmp_gt_u32 vcc, 16, v%d" % V_LANE)
        e("s_and_saveexec_b64 s[98:99], vcc")
        e("buffer_store_dword v2, v3, s[%d:%d], s96 offen" % (SWS, SWS + 3))
        e("s_mov_b64 exec, s[98:99]")


def poll(tag, vaddr, vtmp, sleep=0, n=1, step=0):
    e("s_mov_b32 s5, 0")
    e("L_poll_%s:" % tag)
    for k in range(n):
        if k == 0:
            e("buffer_load_dword v%d, v%d, s[%d:%d], 0 offen sc1" % (vtmp, vaddr, SWS, SWS + 3))
        else:
            e("s_mov_b32 s6, 0x%x" % (k * step))
            e("buffer_load_dword v%d, v%d, s[%d:%d], s6 offen sc1" % (vtmp + k, vaddr, SWS, SWS + 3))
    e("s_waitcnt vmcnt(0)")
    e("v_cmp_ne_u32 vcc, s%d, v%d" % (S_NONCE, vtmp))
    for k in range(1, n):
        e("v_cmp_ne_u32 s[6:7], s%d, v%d" % (S_NONCE, vtmp + k))
        e("s_or_b64 vcc, vcc, s[6:7]")
    e("s_cmp_eq_u64 vcc, 0")
    e("s_cbranch_scc1 L_pollok_%s" % tag)
    if sleep:
        e("s_sleep %d" % sleep)
    e("s_add_u32 s5, s5, 1")
    e("s_cmp_lt_u32 s5, %d" % OPT["spin"])
    e("s_cbranch_scc1 L_poll_%s" % tag)
    e("L_pollok_%s:" % tag)


def flag_store(soff_reg, vtmp):
    e("v_mov_b32 v%d, s%d" % (vtmp, S_NONCE))
    e("s_mov_b32 exec_lo, 1")
    e("s_mov_b32 exec_hi, 0")
    e("buffer_store_dword v%d, off, s[%d:%d], s%d sc1" % (vtmp, SWS, SWS + 3, soff_reg))
    e("s_mov_b64 exec, -1")


def x_swizzle_addrs(vg, vr0, vr1, t0, t1):
    e("v_lshrrev_b32 v%d, 2, v1" % t0)
    e("v_mul_u32_u24 v%d, 896, v%d" % (vg, t0))
    e("v_lshrrev_b32 v%d, 4, v1" % t0)
    e("v_xor_b32 v%d, v%d, v1" % (t0, t0))
    e("v_and_b32 v%d, 3, v%d" % (t0, t0))
    e("v_lshl_add_u32 v%d, v%d, 4, v%d" % (vg, t0, vg))
    e("v_and_b32 v%d, 31, v1" % t0)
    e("v_lshlrev_b32 v%d, 6, v%d" % (vr0, t0))
    e("v_lshrrev_b32 v%d, 2, v1" % t0)
    e("v_lshrrev_b32 v%d, 5, v1" % t1)
    e("v_xor_b32 v%d, v%d, v%d" % (t0, t0, t1))
    e("v_and_b32 v%d, 3, v%d" % (t0, t0))
    e("v_lshl_add_u32 v%d, v%d, 4, v%d" % (vr0, t0, vr0))
    e("v_xor_b32 v%d, 32, v%d" % (vr1, vr0))


def tr_addr(vd, hmul, stride, t0, t1):
    e("v_lshrrev_b32 v%d, 5, v1" % t0)
    e("v_mul_u32_u24 v%d, %d, v%d" % (t0, hmul, t0))
    e("v_bfe_u32 v%d, v1, 2, 2" % t1)
    e("v_add_u32 v%d, v%d, v%d" % (t0, t0, t1))
    e("v_mul_u32_u24 v%d, %d, v%d" % (vd, stride, t0))
    e("v_and_b32 v%d, 16, v1" % t0)
    e("v_lshl_add_u32 v%d, v%d, 1, v%d" % (vd, t0, vd))
    e("v_and_b32 v%d, 3, v1" % t0)
    e("v_lshl_add_u32 v%d, v%d, 3, v%d" % (vd, t0, vd))


def prologue():
    e("s_cmp_ge_u32 s2, 512")
    e("s_cbranch_scc1 L_end")
    if OPT["timing"]:
        e("s_memrealtime s[96:97]")
        e("s_memtime s[92:93]")
        e("s_load_dwordx2 s[50:51], s[0:1], 128")
    e("s_load_dwordx16 s[16:31], s[0:1], 0")
    e("s_load_dwordx16 s[32:47], s[0:1], 64")
    e("s_load_dwordx2 s[48:49], s[0:1], 136")
    e("v_and_b32 v1, 63, v0")
    e("v_lshrrev_b32 v2, 6, v0")
    e("v_readfirstlane_b32 s3, v2")
    e("s_cmp_ge_u32 s2, 256")
    e("s_cbranch_scc1 L_roleS")


A_IMG, A_XS, A_QX, A_INB = 0, 30720, 73728, 0
QF, OA, SS, PP, KVR = 64, 96, 160, 16, 192
V_G = 15


def role_a():
    S_HEAD, S_TT, S_X0, S_X1 = 8, 9, 10, 11
    SWQ, SG, SKV = 60, 64, 68
    XL = 128
    XF, WF, DQ = 16, 32, 48
    vXg, vXr0, vXr1, vXw, vWg, vWr, vGa, vGl = 2, 3, 4, 5, 6, 7, 8, 9
    vE, vG0, vG1 = 10, 11, 12
    e("s_and_b32 s5, s2, 7")
    e("s_lshr_b32 s6, s2, 3")
    e("s_lshr_b32 s7, s6, 4")
    e("s_lshl_b32 s5, s5, 1")
    e("s_add_u32 s5, s5, s7")
    e("s_and_b32 s%d, s6, 15" % S_HEAD)
    e("s_lshl_b32 s%d, s5, 2" % S_TT)
    e("s_add_u32 s%d, s%d, s3" % (S_TT, S_TT))
    e("s_mul_i32 s%d, s%d, 28672" % (S_X0, S_TT))
    e("s_add_u32 s%d, s%d, 14336" % (S_X1, S_X0))
    x_swizzle_addrs(vXg, vXr0, vXr1, 13, 14)
    e("v_lshrrev_b32 v13, 2, v1")
    e("v_mul_u32_u24 v%d, 896, v13" % vWg)
    e("v_and_b32 v13, 3, v1")
    e("v_lshl_add_u32 v%d, v13, 4, v%d" % (vWg, vWg))
    e("v_lshlrev_b32 v%d, 1, v1" % vGa)
    e("s_mul_i32 s12, s3, %d" % (112 * 896))
    e("s_mul_i32 s13, s%d, 56" % S_HEAD)
    e("s_add_u32 s12, s12, s13")
    e("s_mul_i32 s13, s3, %d" % (112 * 64))
    e("s_mul_i32 s14, s3, 224")
    e("s_waitcnt lgkmcnt(0)")
    if OPT["timing"]:
        e("s_mov_b32 s80, s96")
    srd(SWS, P_WS, WS_BYTES)
    e("buffer_load_dword v%d, off, s[%d:%d], 0 sc1" % (vE, SWS, SWS + 3))
    srd(SWQ, P_WQ, 448 * 896)
    e("s_mov_b32 m0, s13")
    srd(SX, P_X, 2048 * 896)
    for m in range(7):
        e("buffer_load_dwordx4 v%d, s[%d:%d], s12 offen lds" % (vWg, SWQ, SWQ + 3))
        if m < 6:
            e("s_add_u32 m0, m0, 1024")
            e("s_add_u32 s12, s12, 14336")
    srd(SG, P_GW, 896)
    e("buffer_load_ushort v%d, v%d, s[%d:%d], s14 offen" % (vG0, vGa, SG, SG + 3))
    e("buffer_load_ushort v%d, v%d, s[%d:%d], s14 offen offset:128" % (vG1, vGa, SG, SG + 3))
    for p in range(14):
        for rh in range(2):
            e("buffer_load_dwordx4 %s, v%d, s[%d:%d], s%d offen offset:%d" % (vr(XL + 8 * p + 4 * rh, 4), vXg, SX, SX + 3, S_X1 if rh else S_X0, 64 * p))
    e("s_lshl_b32 s15, s3, 11")
    e("s_add_u32 s15, s15, %d" % A_XS)
    e("v_add_u32 v%d, s15, v%d" % (vXr0, vXr0))
    e("v_add_u32 v%d, s15, v%d" % (vXr1, vXr1))
    e("v_lshlrev_b32 v13, 4, v1")
    e("v_add_u32 v%d, s15, v13" % vXw)
    tr_addr(vWr, 8, 64, 13, 14)
    e("v_lshlrev_b32 v13, 6, v1")
    e("v_add_u32 v%d, s13, v13" % vGl)
    e("s_add_u32 s12, s3, %d" % (KV >> 16))
    e("s_lshl_b32 s12, s12, 16")
    srd(SKV, P_WS, 65536, "s12")
    e("s_waitcnt vmcnt(28)")
    e("ds_write_b16 v%d, v%d offset:56" % (vGl, vG0))
    e("ds_write_b16 v%d, v%d offset:%d" % (vGl, vG1, 56 + 4096))
    e("v_readfirstlane_b32 s4, v%d" % vE)
    e("s_add_u32 s4, s4, 0x%x" % NONCE_ADD)
    e("s_waitcnt lgkmcnt(0)")
    e("s_barrier")
    stamp(1)

    def stage(p):
        b = p & 1
        e("s_waitcnt vmcnt(%d)" % (26 - 2 * p))
        e("ds_write_b128 v%d, %s" % (vXw, vr(XL + 8 * p, 4)))
        e("ds_write_b128 v%d, %s offset:1024" % (vXw, vr(XL + 8 * p + 4, 4)))
        for ee in range(2):
            e("ds_read_b128 %s, v%d" % (vr(XF + 8 * b + 4 * ee, 4), vXr1 if ee else vXr0))
            for q in range(2):
                e("ds_read_b64_tr_b16 %s, v%d offset:%d" % (vr(WF + 8 * b + 4 * ee + 2 * q, 2), vWr, (2 * p + ee) * 1024 + q * 256))

    stage(0)
    for p in range(14):
        b = p & 1
        if p < 13:
            stage(p + 1)
            e("s_waitcnt lgkmcnt(8)")
        else:
            e("s_waitcnt lgkmcnt(0)")
        mfma(DQ, WF + 8 * b, XF + 8 * b, None if p == 0 else DQ)
        mfma(DQ, WF + 8 * b + 4, XF + 8 * b + 4, DQ)
    e("s_cmp_lg_u32 s3, 0")
    e("s_cbranch_scc1 L_a_noalive")
    e("s_lshl_b32 s5, s2, 7")
    e("s_add_u32 s5, s5, 0x%x" % ALIVE)
    flag_store(5, 13)
    e("L_a_noalive:")
    e("s_mov_b32 s12, 0x%x" % f32(28 ** -0.5 * LOG2E))
    e("s_mov_b32 s14, 0")
    e("s_mov_b32 s15, -1")
    e("v_lshlrev_b32 v2, 4, v1")
    e("s_lshl_b32 s5, s3, 11")
    e("s_add_u32 s5, s5, %d" % A_QX)
    e("v_add_u32 v3, s5, v2")
    for i in range(1, 4):
        e("s_add_u32 s5, s3, %d" % i)
        e("s_and_b32 s5, s5, 3")
        e("s_lshl_b32 s6, s5, 11")
        e("s_add_u32 s6, s6, %d" % A_QX)
        e("v_add_u32 v%d, s6, v2" % (3 + i))
        e("s_mul_i32 s6, s5, 12288")
        e("s_add_u32 s6, s6, %d" % (A_INB + (i - 1) * 4096))
        e("v_add_u32 v%d, s6, v2" % (7 + i))
    e("s_mul_i32 s6, s3, 12288")
    e("v_add_u32 v11, s6, v2")
    e("v_mul_f32 v%d, 0x%x, v%d" % (V_G, f32(-LOG2E), DQ + 12))
    for k in range(8):
        e("v_pk_mul_f32 %s, %s, s[12:13] op_sel_hi:[1,0]" % (vr(DQ + 2 * k, 2), vr(DQ + 2 * k, 2)))
    e("v_exp_f32 v%d, v%d" % (V_G, V_G))
    for k in range(8):
        e("v_cvt_pk_bf16_f32 v%d, v%d, v%d" % (QF + k, DQ + 2 * k, DQ + 2 * k + 1))
    e("v_cndmask_b32 v%d, v%d, 0, s[14:15]" % (QF + 6, QF + 6))
    e("v_cndmask_b32 v%d, v%d, 0, s[14:15]" % (QF + 7, QF + 7))
    e("ds_write_b128 v3, %s" % vr(QF, 4))
    e("ds_write_b128 v3, %s offset:1024" % vr(QF + 4, 4))
    e("v_add_f32 v%d, 1.0, v%d" % (V_G, V_G))
    e("v_rcp_f32 v%d, v%d" % (V_G, V_G))
    e("s_lshl_b32 s5, s3, 13")
    e("s_add_u32 s5, s5, 0x%x" % FLAG_KV)
    e("v_lshlrev_b32 v12, 7, v1")
    e("v_add_u32 v12, s5, v12")
    e("s_waitcnt lgkmcnt(0)")
    e("s_barrier")
    for i in range(1, 4):
        e("ds_read_b128 %s, v%d" % (vr(QF + 8 * i, 4), 3 + i))
        e("ds_read_b128 %s, v%d offset:1024" % (vr(QF + 8 * i + 4, 4), 3 + i))
    for k in range(64):
        e("v_mov_b32 v%d, 0" % (OA + k))
    for k in range(8):
        e("v_mov_b32 v%d, 0" % (PP + 8 + k))
    for k in range(8):
        e("v_mov_b32 v%d, 0" % (KVR + 48 + 8 + k))
    stamp(2)
    poll("kv", 12, 13)
    stamp(3)

    def Kf(b, k):
        return KVR + 16 * b + 4 * k

    def Vf(b, k):
        return KVR + 16 * b + 8 + 4 * k

    def ld(reg, soff, off):
        e("buffer_load_dwordx4 %s, v2, s[%d:%d], %s offen offset:%d sc1" % (vr(reg, 4), SKV, SKV + 3, soff, off))

    S_OFF = 13
    for b in range(4):
        if b == 0:
            so = "0"
        else:
            e("s_mov_b32 s%d, %d" % (S_OFF, 4096 * b))
            so = "s%d" % S_OFF
        ld(Kf(b, 0), so, 0)
        ld(Kf(b, 1), so, 1024)
        if b < 3:
            ld(Vf(b, 0), so, 2048)
            ld(Vf(b, 1), so, 3072)
    e("s_setprio 1")
    e("s_waitcnt vmcnt(12) lgkmcnt(0)")
    mfma(SS, Kf(0, 0), QF, None)
    mfma(SS, Kf(0, 1), QF + 4, SS)

    def M1(n):
        mfma(SS + 16 * ((n + 1) & 1), Kf(((n + 1) >> 2) & 3, 0), QF + 8 * ((n + 1) & 3), None)

    e("s_nop 10")
    M1(0)
    e("L_attn:")
    for n in range(16):
        S = SS + 16 * (n & 1)
        Sn = SS + 16 * ((n + 1) & 1)
        P = PP + 8 * (n & 1)
        Pp = PP + 8 * ((n - 1) & 1)
        ip, bp = (n - 1) & 3, ((n - 1) >> 2) & 3
        i1, b1 = (n + 1) & 3, ((n + 1) >> 2) & 3

        def ex(a, b_):
            for r in range(a, b_):
                e("v_exp_f32 v%d, v%d" % (S + r, S + r))

        def cv(a, b_):
            for k in range(a, b_):
                e("v_cvt_pk_bf16_f32 v%d, v%d, v%d" % (P + k, S + 2 * k, S + 2 * k + 1))

        if n % 4 == 1:
            e("s_waitcnt vmcnt(10)")
        if n % 4 == 3:
            ld(Kf((n >> 2) & 3, 0), "s%d" % S_OFF, 0)
        ex(0, 4)
        mfma(OA + 16 * ip, Vf(bp, 0), Pp, OA + 16 * ip)
        if n % 4 == 1:
            ld(Vf(((n >> 2) + 3) & 3, 0), "s%d" % S_OFF, 2048)
        if n % 4 == 3:
            ld(Kf((n >> 2) & 3, 1), "s%d" % S_OFF, 1024)
        ex(4, 8)
        cv(0, 2)
        mfma(Sn, Kf(b1, 1), QF + 8 * i1 + 4, Sn)
        if n % 4 == 1:
            ld(Vf(((n >> 2) + 3) & 3, 1), "s%d" % S_OFF, 3072)
        ex(8, 12)
        cv(2, 4)
        mfma(OA + 16 * ip, Vf(bp, 1), Pp + 4, OA + 16 * ip)
        if n % 4 == 1:
            e("s_add_u32 s%d, s%d, 4096" % (S_OFF, S_OFF))
        if n % 4 == 2:
            e("s_waitcnt vmcnt(10)")
        if n == 15:
            e("s_cmp_lt_u32 s%d, %d" % (S_OFF, 4096 * 19))
        ex(12, 16)
        cv(4, 8)
        M1(n + 1)
    e("s_cbranch_scc1 L_attn")
    mfma(OA + 48, Vf(3, 0), PP + 8, OA + 48)
    mfma(OA + 48, Vf(3, 1), PP + 12, OA + 48)
    stamp(4)
    for i in range(1, 4):
        for q in range(4):
            e("ds_write_b128 v%d, %s offset:%d" % (7 + i, vr(OA + 16 * i + 4 * q, 4), q * 1024))
    e("s_waitcnt vmcnt(0) lgkmcnt(0)")
    e("s_barrier")
    T = 160
    for k in range(12):
        e("ds_read_b128 %s, v11 offset:%d" % (vr(T + 4 * k, 4), k * 1024))
    e("s_lshl_b32 s5, s%d, 4" % S_TT)
    e("s_add_u32 s5, s5, s%d" % S_HEAD)
    e("s_lshl_b32 s6, s5, 11")
    e("s_add_u32 s6, s6, 0x%x" % OW)
    e("s_lshl_b32 s7, s5, 7")
    e("s_add_u32 s7, s7, 0x%x" % FLAG_O)
    for i in range(3):
        e("s_waitcnt lgkmcnt(%d)" % (8 - 4 * i))
        for k in range(8):
            e("v_pk_add_f32 %s, %s, %s" % (vr(OA + 2 * k, 2), vr(OA + 2 * k, 2), vr(T + 16 * i + 2 * k, 2)))
    e("v_pk_mul_f32 v[4:5], %s, 0" % vr(OA, 2))
    for k in range(1, 8):
        e("v_pk_fma_f32 v[4:5], %s, 0, v[4:5]" % vr(OA + 2 * k, 2))
    e("s_mov_b32 s12, 0x%x" % f32(2.0 ** -60))
    e("s_mov_b32 s13, 0x%x" % f32(2.0 ** 60))
    e("v_cmp_nle_f32 s[72:73], s12, v%d" % (OA + 12))
    e("v_cmp_nge_f32 s[74:75], s13, v%d" % (OA + 12))
    e("v_cmp_u_f32 vcc, v4, v5")
    e("s_or_b32 s73, s73, s75")
    e("s_or_b32 s73, s73, vcc_hi")
    e("s_or_b32 s73, s73, vcc_lo")
    if OPT["force_fb"]:
        e("s_mov_b32 s73, 1")
    e("s_cmp_lg_u32 s73, 0")
    e("s_cbranch_scc1 L_fb")
    e("L_fin:")
    e("v_rcp_f32 v4, v%d" % (OA + 12))
    e("v_sub_f32 v6, 1.0, v%d" % V_G)
    e("v_mul_f32 v4, v4, v%d" % V_G)
    e("v_mov_b32 v5, v4")
    e("v_permlane32_swap_b32 v5, v4")
    for k in range(8):
        e("v_pk_mul_f32 %s, %s, v[4:5] op_sel_hi:[1,0]" % (vr(OA + 2 * k, 2), vr(OA + 2 * k, 2)))
    for k in range(8):
        e("v_cvt_pk_bf16_f32 v%d, v%d, v%d" % (32 + k, OA + 2 * k, OA + 2 * k + 1))
    e("v_cndmask_b32 v38, v38, 0, s[14:15]")
    e("v_cndmask_b32 v39, v39, 0, s[14:15]")
    e("buffer_store_dwordx4 v[32:35], v2, s[%d:%d], s6 offen sc1" % (SWS, SWS + 3))
    e("buffer_store_dwordx4 v[36:39], v2, s[%d:%d], s6 offen offset:1024 sc1" % (SWS, SWS + 3))
    e("s_cmp_lg_u32 s%d, 0" % S_HEAD)
    e("s_cbranch_scc1 L_a_nog")
    e("s_lshl_b32 s5, s%d, 7" % S_TT)
    e("s_add_u32 s5, s5, 0x%x" % (G1 - 128))
    e("v_lshlrev_b32 v7, 2, v1")
    e("s_mov_b32 exec_lo, 0")
    e("buffer_store_dword v6, v7, s[%d:%d], s5 offen sc1" % (SWS, SWS + 3))
    e("s_mov_b32 exec_lo, -1")
    e("L_a_nog:")
    e("s_waitcnt vmcnt(0)")
    flag_store(7, 8)
    stamp(5)
    stamp_flush()
    e("s_endpgm")

    SALL = 76
    e("L_fb:")
    srd(SALL, P_WS, 262144, "0x%x" % KV)
    e("v_mov_b32 v7, 0xff800000")
    e("s_mov_b32 s12, 0")
    e("L_fb1:")
    e("buffer_load_dwordx4 v[192:195], v2, s[%d:%d], s12 offen sc1" % (SALL, SALL + 3))
    e("buffer_load_dwordx4 v[196:199], v2, s[%d:%d], s12 offen offset:1024 sc1" % (SALL, SALL + 3))
    e("s_waitcnt vmcnt(0)")
    mfma(SS, 192, QF, None)
    mfma(SS, 196, QF + 4, SS)
    for k in range(8):
        e("v_max3_f32 v7, v7, v%d, v%d" % (SS + 2 * k, SS + 2 * k + 1))
    e("s_add_u32 s12, s12, 4096")
    e("s_cmp_lt_u32 s12, 262144")
    e("s_cbranch_scc1 L_fb1")
    e("v_mov_b32 v8, v7")
    e("v_permlane32_swap_b32 v8, v7")
    e("v_max_f32 v7, v7, v8")
    for k in range(16):
        e("v_mov_b32 v%d, 0" % (OA + k))
    e("s_mov_b32 s12, 0")
    e("L_fb2:")
    for k in range(4):
        e("buffer_load_dwordx4 %s, v2, s[%d:%d], s12 offen offset:%d sc1" % (vr(192 + 4 * k, 4), SALL, SALL + 3, 1024 * k))
    e("s_waitcnt vmcnt(0)")
    mfma(SS, 192, QF, None)
    mfma(SS, 196, QF + 4, SS)
    for k in range(16):
        e("v_sub_f32 v%d, v%d, v7" % (SS + k, SS + k))
    for k in range(16):
        e("v_exp_f32 v%d, v%d" % (SS + k, SS + k))
    for k in range(8):
        e("v_cvt_pk_bf16_f32 v%d, v%d, v%d" % (PP + k, SS + 2 * k, SS + 2 * k + 1))
    mfma(OA, 200, PP, OA)
    mfma(OA, 204, PP + 4, OA)
    e("s_add_u32 s12, s12, 4096")
    e("s_cmp_lt_u32 s12, 262144")
    e("s_cbranch_scc1 L_fb2")
    e("s_nop 8")
    e("s_branch L_fin")


S_STG = 16896
S_INB1 = 16896
S_WL = 49664
S_PX = 67584
KR0, KR1, XC0 = 0, 7680, 15360
XCS = 4160
S_CP = 48640
S_OF, S_G1, S_OT = 0, 32768, 40960


def cmul(d, x, m, t):
    e("v_pk_mul_f32 %s, %s, %s op_sel_hi:[1,0]" % (vr(t, 2), vr(x, 2), vr(m, 2)))
    e("v_pk_fma_f32 %s, %s, %s, %s op_sel:[1,1,0] op_sel_hi:[0,1,1] neg_lo:[1,0,0]" % (vr(d, 2), vr(x, 2), vr(m, 2), vr(t, 2)))


def role_s():
    S_ID, S_J = 8, 9
    SW, SWO, SOUT = 60, 64, 68
    vE = 10
    PRM = 240
    XG = 246
    e("L_roleS:")
    e("s_sub_u32 s%d, s2, 256" % S_ID)
    e("s_lshr_b32 s%d, s%d, 3" % (S_J, S_ID))
    vXg, vXr0, vXr1, vL16, vWr = 2, 3, 4, 5, 6
    x_swizzle_addrs(vXg, vXr0, vXr1, 13, 14)
    e("v_lshlrev_b32 v%d, 4, v1" % vL16)
    e("s_lshl_b32 s5, s%d, 10" % S_ID)
    e("s_lshl_b32 s6, s3, 8")
    e("s_add_u32 s5, s5, s6")
    e("v_lshlrev_b32 v7, 2, v1")
    e("v_add_u32 v7, s5, v7")
    e("s_and_b32 s10, s%d, 7" % S_ID)
    e("s_lshl_b32 s10, s10, 3")
    e("s_waitcnt lgkmcnt(0)")
    if OPT["timing"]:
        e("s_mov_b32 s80, s96")
    srd(SWS, P_WS, WS_BYTES)
    e("buffer_load_dword v%d, off, s[%d:%d], 0 sc1" % (vE, SWS, SWS + 3))
    srd(SX, P_X, 2048 * 896)
    e("s_cmp_lt_u32 s%d, 16" % S_J)
    e("s_cbranch_scc1 L_s_nokv1")
    S_TAU, S_KIND = 11, 12
    e("s_sub_u32 s5, s%d, 16" % S_J)
    e("s_lshr_b32 s5, s5, 1")
    e("s_add_u32 s%d, s10, s5" % S_TAU)
    e("s_and_b32 s%d, s%d, 1" % (S_KIND, S_J))
    e("s_cmp_eq_u32 s%d, 0" % S_KIND)
    e("s_cselect_b32 s%d, s%d, s%d" % (SW, P_WK, P_WV))
    e("s_cselect_b32 s%d, s%d, s%d" % (SW + 1, P_WK + 1, P_WV + 1))
    e("s_mov_b32 s%d, %d" % (SW + 2, 448 * 56))
    e("s_mov_b32 s%d, 0x20000" % (SW + 3))
    e("s_lshl_b32 s5, s3, 13")
    e("s_add_u32 s5, s5, 16896")
    e("s_cmp_eq_u32 s3, 0")
    e("s_cselect_b32 s13, 8192, s5")
    e("s_mul_i32 s14, s3, 7232")
    e("s_add_u32 s14, s14, %d" % S_WL)
    e("s_mul_i32 s5, s%d, 28672" % S_TAU)
    e("s_lshl_b32 s6, s3, 8")
    e("s_add_u32 s5, s5, s6")
    e("s_add_u32 s6, s5, 14336")
    e("s_mov_b32 m0, s13")
    for pp in range(4):
        for rh in range(2):
            e("buffer_load_dwordx4 v%d, s[%d:%d], s%d offen lds" % (vXg, SX, SX + 3, 6 if rh else 5))
            e("s_add_u32 m0, m0, 1024")
            if pp < 3:
                e("s_add_u32 s%d, s%d, 64" % (6 if rh else 5, 6 if rh else 5))
    e("s_mul_i32 s5, s3, 7168")
    e("s_mov_b32 m0, s14")
    e("s_add_u32 s6, s5, 4096")
    for m in range(4):
        e("buffer_load_dwordx4 v%d, s[%d:%d], s5 offen offset:%d lds" % (vL16, SW, SW + 3, 1024 * m))
    e("s_add_u32 m0, m0, 4096")
    for m in range(3):
        e("buffer_load_dwordx4 v%d, s[%d:%d], s6 offen offset:%d lds" % (vL16, SW, SW + 3, 1024 * m))
    e("L_s_nokv1:")
    e("s_cmp_ge_u32 s%d, 224" % S_ID)
    e("s_cbranch_scc1 L_s_noprm")
    for k, p in enumerate((P_ARE, P_AIM, P_BRE, P_BIM, P_CRE, P_CIM)):
        e("global_load_dword v%d, v7, s[%d:%d]" % (PRM + k, p, p + 1))
    e("s_lshl_b32 s5, s%d, 2" % S_ID)
    e("s_load_dword s72, s[%d:%d], s5" % (P_LDT, P_LDT + 1))
    e("s_load_dword s73, s[%d:%d], s5" % (P_DSK, P_DSK + 1))
    e("L_s_noprm:")
    e("s_cmp_lt_u32 s%d, 16" % S_J)
    e("s_cbranch_scc1 L_s_nokv2")
    tr_addr(vWr, 8, 56, 13, 14)
    e("v_add_u32 v%d, s14, v%d" % (vWr, vWr))
    e("v_add_u32 v%d, s13, v%d" % (vXr0, vXr0))
    e("v_add_u32 v%d, s13, v%d" % (vXr1, vXr1))
    e("s_lshl_b32 s5, s3, 11")
    e("v_add_u32 v8, s5, v%d" % vL16)
    XF, WF, DK = 64, 96, 48
    e("s_waitcnt vmcnt(0) lgkmcnt(0)")
    stamp(1)
    for s in range(8):
        e("ds_read_b128 %s, v%d offset:%d" % (vr(XF + 4 * s, 4), vXr1 if s & 1 else vXr0, (s >> 1) * 2048))
        for q in range(2):
            e("ds_read_b64_tr_b16 %s, v%d offset:%d" % (vr(WF + 4 * s + 2 * q, 2), vWr, s * 896 + q * 224))
    e("v_readfirstlane_b32 s4, v%d" % vE)
    e("s_add_u32 s4, s4, 0x%x" % NONCE_ADD)
    e("s_cmp_eq_u32 s%d, 0" % S_KIND)
    e("s_cbranch_scc0 L_s_kind1")
    for s in range(8):
        e("s_waitcnt lgkmcnt(%d)" % min(15, 21 - 3 * s))
        mfma(DK, WF + 4 * s, XF + 4 * s, None if s == 0 else DK)
    e("s_branch L_s_kindj")
    e("L_s_kind1:")
    for s in range(8):
        e("s_waitcnt lgkmcnt(%d)" % min(15, 21 - 3 * s))
        mfma(DK, XF + 4 * s, WF + 4 * s, None if s == 0 else DK)
    e("L_s_kindj:")
    e("s_cmp_eq_u32 s%d, 0" % S_KIND)
    e("s_cselect_b32 s74, 0, 0xe0000000")
    e("s_mov_b32 s75, s74")
    e("s_mov_b32 s76, s74")
    e("s_cselect_b32 s78, 0, 0x10000000")
    e("s_mov_b32 s79, s78")
    e("s_cselect_b32 s5, -1, 0")
    e("s_cmp_eq_u32 s3, 1")
    e("s_cselect_b32 s5, s5, 0")
    e("s_or_b32 s77, s74, s5")
    e("v_mov_b32 v9, 0x3f803f80")
    for q in range(4):
        e("ds_write_b128 v8, %s offset:%d" % (vr(DK + 4 * q, 4), (q >> 1) * S_INB1 + (q & 1) * 1024))
    e("s_waitcnt lgkmcnt(0)")
    e("s_barrier")
    e("s_cmp_ge_u32 s3, 2")
    e("s_cbranch_scc1 L_s_kvdone")
    e("s_mul_i32 s5, s3, %d" % S_INB1)
    e("v_add_u32 v8, s5, v%d" % vL16)
    for k in range(8):
        e("ds_read_b128 %s, v8 offset:%d" % (vr(64 + 4 * k, 4), k * 1024))
    e("s_lshl_b32 s5, s%d, 1" % S_TAU)
    e("s_add_u32 s5, s5, s%d" % S_KIND)
    e("s_lshl_b32 s5, s5, 1")
    e("s_add_u32 s5, s5, s3")
    e("s_lshl_b32 s6, s5, 10")
    e("s_add_u32 s6, s6, 0x%x" % KV)
    e("s_lshl_b32 s7, s5, 7")
    e("s_add_u32 s7, s7, 0x%x" % FLAG_KV)
    e("s_waitcnt lgkmcnt(4)")
    for k in range(4):
        e("v_pk_add_f32 %s, %s, %s" % (vr(64 + 2 * k, 2), vr(64 + 2 * k, 2), vr(72 + 2 * k, 2)))
    e("s_waitcnt lgkmcnt(0)")
    for k in range(4):
        e("v_pk_add_f32 %s, %s, %s" % (vr(80 + 2 * k, 2), vr(80 + 2 * k, 2), vr(88 + 2 * k, 2)))
    for k in range(4):
        e("v_pk_add_f32 %s, %s, %s" % (vr(64 + 2 * k, 2), vr(64 + 2 * k, 2), vr(80 + 2 * k, 2)))
    for k in range(4):
        e("v_cvt_pk_bf16_f32 v%d, v%d, v%d" % (72 + k, 64 + 2 * k, 65 + 2 * k))
    for k in range(4):
        e("v_cndmask_b32 v%d, v%d, 0, %s" % (72 + k, 72 + k, "s[74:75]" if k < 2 else "s[76:77]"))
    for k in range(4):
        e("v_cndmask_b32 v%d, v%d, v9, s[78:79]" % (72 + k, 72 + k))
    e("buffer_store_dwordx4 v[72:75], v%d, s[%d:%d], s6 offen sc1" % (vL16, SWS, SWS + 3))
    e("s_waitcnt vmcnt(0)")
    flag_store(7, 9)
    e("L_s_kvdone:")
    stamp(2)
    e("s_cmp_ge_u32 s%d, 224" % S_ID)
    e("s_cbranch_scc1 L_s_cons")
    e("s_branch L_s_kgen")
    e("L_s_nokv2:")
    e("s_waitcnt vmcnt(0) lgkmcnt(0)")
    e("v_readfirstlane_b32 s4, v%d" % vE)
    e("s_add_u32 s4, s4, 0x%x" % NONCE_ADD)
    e("L_s_kgen:")
    e("s_lshr_b32 s5, s3, 1")
    e("s_lshl_b32 s5, s5, 4")
    e("s_lshr_b32 s72, s72, s5")
    e("s_lshl_b32 s72, s72, 16")
    e("s_lshr_b32 s73, s73, s5")
    e("s_lshl_b32 s73, s73, 16")
    c_hi = struct.unpack("<f", struct.pack("<I", f32(LOG2E) & 0xFFFFFF00))[0]
    c_lo = (LOG2E - c_hi) * math.log(2.0)
    e("v_mov_b32 v8, s72")
    e("v_mul_f32 v9, 0x%x, v8" % f32(c_hi))
    e("v_exp_f32 v9, v9")
    e("v_mul_f32 v8, 0x%x, v8" % f32(c_lo))
    e("v_fma_f32 v9, v9, v8, v9")
    e("v_cvt_pk_bf16_f32 v9, v9, v9")
    e("v_and_b32 v9, 0xffff0000, v9")
    ZR, ZI = (16, 17), (18, 19)
    E1, E8, EG, WW, TT, XX = (20, 22), (24, 26), (28, 30), (32, 34), (36, 38), (40, 42)
    R2, R4, R6 = (44, 46), (48, 50), (52, 54)
    OUT = 56

    def unp(d, src, m):
        if m == 0:
            e("v_lshlrev_b32 v%d, 16, v%d" % (d, src))
        else:
            e("v_and_b32 v%d, 0xffff0000, v%d" % (d, src))

    for m in range(2):
        unp(ZR[m], PRM + 0, m)
        unp(ZI[m], PRM + 1, m)
    for m in range(2):
        e("v_mul_f32 v%d, v9, v%d" % (ZR[m], ZR[m]))
        e("v_mul_f32 v%d, v9, v%d" % (ZI[m], ZI[m]))
    for m in range(2):
        e("v_mul_f32 v%d, 0x%x, v%d" % (ZR[m], f32(LOG2E), ZR[m]))
        e("v_mul_f32 v%d, 0x%x, v%d" % (ZI[m], f32(1.0 / (2 * math.pi)), ZI[m]))

    def cexp(dst, mult, conj):
        for m in range(2):
            if mult != 1:
                e("v_mul_f32 v%d, 0x%x, v%d" % (TT[m], f32(mult), ZR[m]))
                e("v_mul_f32 v%d, 0x%x, v%d" % (TT[m] + 1, f32(mult), ZI[m]))
                e("v_fract_f32 v%d, v%d" % (TT[m] + 1, TT[m] + 1))
            else:
                e("v_mov_b32 v%d, v%d" % (TT[m], ZR[m]))
                e("v_fract_f32 v%d, v%d" % (TT[m] + 1, ZI[m]))
        for m in range(2):
            e("v_exp_f32 v%d, v%d" % (TT[m], TT[m]))
            e("v_cos_f32 v%d, v%d" % (dst[m], TT[m] + 1))
            e("v_sin_f32 v%d, v%d" % (dst[m] + 1, TT[m] + 1))
        for m in range(2):
            e("v_pk_mul_f32 %s, %s, %s op_sel_hi:[1,0]%s" % (vr(dst[m], 2), vr(dst[m], 2), vr(TT[m], 2), " neg_hi:[1,0]" if conj else ""))

    cexp(E8, 8, True)
    e("s_mul_i32 s13, s3, %d" % S_STG)
    e("v_lshlrev_b32 v8, 3, v1")
    e("v_add_u32 v8, s13, v8")
    e("v_and_b32 v11, 31, v1")
    e("v_mul_u32_u24 v11, 528, v11")
    e("v_lshrrev_b32 v12, 5, v1")
    e("v_lshl_add_u32 v11, v12, 4, v11")
    e("v_add_u32 v11, s13, v11")
    ring = [0]

    def put(row, src):
        o = OUT + 2 * (ring[0] & 3)
        ring[0] += 1
        for m in range(2):
            e("v_cvt_pk_bf16_f32 v%d, v%d, v%d" % (o + m, src[m], src[m] + 1))
        e("ds_write_b64 v8, %s offset:%d" % (vr(o, 2), row * 528))

    e("v_mov_b32 v%d, 0x3f80" % OUT)
    e("v_mov_b32 v%d, 0x3f80" % (OUT + 1))
    e("ds_write_b64 v8, %s" % vr(OUT, 2))
    ring[0] = 1
    put(1, E8)
    for j in range(2, 32):
        src = E8 if j == 2 else XX
        for m in range(2):
            e("v_pk_mul_f32 %s, %s, %s op_sel_hi:[1,0]" % (vr(TT[m], 2), vr(src[m], 2), vr(E8[m], 2)))
        for m in range(2):
            e("v_pk_fma_f32 %s, %s, %s, %s op_sel:[1,1,0] op_sel_hi:[0,1,1] neg_lo:[1,0,0]" % (vr(XX[m], 2), vr(src[m], 2), vr(E8[m], 2), vr(TT[m], 2)))
        put(j, XX)
    BF, AF, DD = 64, 128, 192
    for s in range(16):
        e("ds_read_b128 %s, v11 offset:%d" % (vr(BF + 4 * s, 4), s * 32))
    e("s_lshl_b32 s5, s3, 9")
    e("s_mul_i32 s5, s5, 896")
    e("s_lshl_b32 s6, s%d, 2" % S_ID)
    e("s_add_u32 s5, s5, s6")
    e("v_mul_u32_u24 v12, 896, v1")
    e("s_sub_u32 s6, s5, 896")
    e("v_mov_b32 v13, s6")
    e("buffer_load_dword v%d, v13, s[%d:%d], 0 offen" % (XG, SX, SX + 3))
    for c in range(8):
        e("buffer_load_dword v%d, v12, s[%d:%d], s5 offen" % (XG + 1 + c, SX, SX + 3))
        if c < 7:
            e("s_add_u32 s5, s5, %d" % (64 * 896))
    cexp(E1, 1, False)
    cexp(EG, 256, False)

    def mul2(dst, src, mu):
        for m in range(2):
            e("v_pk_mul_f32 %s, %s, %s op_sel_hi:[1,0]" % (vr(TT[m], 2), vr(src[m], 2), vr(mu[m], 2)))
        for m in range(2):
            e("v_pk_fma_f32 %s, %s, %s, %s op_sel:[1,1,0] op_sel_hi:[0,1,1] neg_lo:[1,0,0]" % (vr(dst[m], 2), vr(src[m], 2), vr(mu[m], 2), vr(TT[m], 2)))

    for m in range(2):
        unp(XX[m], PRM + 2, m)
        unp(XX[m] + 1, PRM + 3, m)
        unp(R2[m], PRM + 4, m)
        unp(R2[m] + 1, PRM + 5, m)
    for m in range(2):
        e("v_mul_f32 v%d, v9, v%d" % (XX[m], XX[m]))
        e("v_mul_f32 v%d, v9, v%d" % (XX[m] + 1, XX[m] + 1))
    mul2(WW, R2, XX)
    put(0, WW)
    mul2(XX, WW, E1); put(1, XX)
    mul2(R2, XX, E1); put(2, R2)
    mul2(XX, R2, E1); put(3, XX)
    mul2(R4, XX, E1); put(4, R4)
    mul2(XX, R4, E1); put(5, XX)
    mul2(R6, XX, E1); put(6, R6)
    mul2(XX, R6, E1); put(7, XX)
    for row in (8, 12, 9, 13, 10, 14, 11, 15):
        mul2(WW, WW, EG); put(row, WW)
    mul2(R2, R2, EG); put(16, R2)
    mul2(R4, R4, EG); put(17, R4)
    mul2(R6, R6, EG); put(18, R6)
    mul2(R4, R4, EG); put(20, R4)
    mul2(R4, R4, EG); put(19, R4)
    for s in range(16):
        e("ds_read_b128 %s, v11 offset:%d" % (vr(AF + 4 * s, 4), s * 32))
    e("s_mul_i32 s5, s3, 3072")
    e("s_add_u32 s5, s5, %d" % S_PX)
    e("v_add_u32 v12, s5, v%d" % vL16)
    e("s_xor_b32 s6, s3, 1")
    e("s_mul_i32 s6, s6, 3072")
    e("s_add_u32 s6, s6, %d" % S_PX)
    e("v_add_u32 v13, s6, v%d" % vL16)
    for s in range(16):
        e("s_waitcnt lgkmcnt(%d)" % (15 - s))
        mfma(DD, AF + 4 * s, BF + 4 * s, None if s == 0 else DD)
    e("s_lshr_b32 s5, s3, 1")
    e("s_mul_i32 s14, s5, %d" % KR1)
    e("v_sub_u32 v14, 223, v1")
    e("v_lshrrev_b32 v15, 2, v14")
    e("v_mul_u32_u24 v15, 80, v15")
    e("v_and_b32 v14, 3, v14")
    e("v_lshl_add_u32 v14, v14, 4, v15")
    e("v_add_u32 v14, s14, v14")
    e("v_mov_b32 v16, 0")
    e("v_mov_b32 v17, 0")
    e("v_mov_b32 v18, 0")
    e("v_mov_b32 v19, 0")
    e("v_add_u32 v15, s14, v%d" % vL16)
    e("s_mov_b32 s74, 0")
    e("s_mov_b32 s75, -1")
    e("s_mov_b32 s76, 0xaaaaaaaa")
    e("s_mov_b32 s77, 0xaaaaaaaa")
    for q in range(3):
        e("ds_write_b128 v12, %s offset:%d" % (vr(DD + 4 * q, 4), q * 1024))
    e("s_waitcnt lgkmcnt(0)")
    e("s_barrier")
    stamp(3)
    for q in range(3):
        e("ds_read_b128 %s, v13 offset:%d" % (vr(64 + 4 * q, 4), q * 1024))
    e("v_and_b32 v20, 1, v1")
    e("v_mul_u32_u24 v21, %d, v20" % (XCS - 2))
    e("v_lshl_add_u32 v21, v1, 1, v21")
    e("s_lshl_b32 s5, s3, 10")
    e("s_add_u32 s5, s5, %d" % (XC0 + 60))
    e("v_add_u32 v21, s5, v21")
    e("s_cmp_lg_u32 s3, 0")
    e("s_cbranch_scc1 L_s_nohead")
    e("v_bfe_u32 v22, v1, 2, 3")
    e("v_mul_u32_u24 v22, %d, v22" % XCS)
    e("v_and_b32 v23, 3, v1")
    e("v_lshl_add_u32 v22, v23, 4, v22")
    e("ds_write_b128 v22, v[16:19] offset:%d" % XC0)
    e("L_s_nohead:")
    e("s_mov_b32 s6, 0x05040100")
    e("s_mov_b32 s7, 0x07060302")
    e("s_waitcnt vmcnt(0)")
    for c in range(8):
        pv = 24 + 4 * (c & 1)
        if c == 0:
            e("v_mov_b32 v%d, v%d" % (pv, XG))
        else:
            e("v_mov_b32_dpp v%d, v%d wave_ror:1 row_mask:0xf bank_mask:0xf" % (pv, XG + c))
        e("v_mov_b32_dpp v%d, v%d wave_shr:1 row_mask:0xf bank_mask:0xf" % (pv, XG + 1 + c))
        e("v_perm_b32 v%d, v%d, v%d, s6" % (pv + 1, XG + 1 + c, pv))
        e("v_perm_b32 v%d, v%d, v%d, s7" % (pv + 2, XG + 1 + c, pv))
        for ch in range(2):
            for s2 in range(2):
                e("ds_write_b32 v21, v%d offset:%d" % (pv + 1 + ch, c * 128 + ch * 4 * XCS + s2 * (2 * XCS - 4)))
    e("s_waitcnt lgkmcnt(15)")
    for k in range(6):
        e("v_pk_add_f32 %s, %s, %s" % (vr(DD + 2 * k, 2), vr(DD + 2 * k, 2), vr(64 + 2 * k, 2)))
    D = lambda r: DD + r

    def nxt(dst, r):
        if r < 7:
            e("v_mov_b32_dpp v%d, v%d wave_rol:1 row_mask:0xf bank_mask:0xf" % (dst, D(r + 1)))
        e("v_mov_b32_dpp v%d, v%d wave_shl:1 row_mask:0xf bank_mask:0xf" % (dst, D(r)))

    def pk(d, lo, hi):
        e("v_cvt_pk_bf16_f32 v%d, v%d, v%d" % (d, lo, hi))

    e("s_bitcmp1_b32 s3, 0")
    e("s_cbranch_scc1 L_s_expB")
    e("ds_write_b128 v15, v[16:19] offset:5120")
    e("ds_write_b128 v15, v[16:19] offset:6144")
    e("v_mov_b32 v32, s73")
    e("v_cmp_eq_u32 vcc, 0, v1")
    e("v_cndmask_b32 v32, 0, v32, vcc")
    e("v_add_f32 v%d, v%d, v32" % (D(0), D(0)))
    e("v_and_b32 v33, 31, v1")
    e("v_sub_u32 v33, 255, v33")
    e("v_lshrrev_b32 v34, 2, v33")
    e("v_mul_u32_u24 v34, 80, v34")
    e("v_and_b32 v33, 3, v33")
    e("v_lshl_add_u32 v33, v33, 4, v34")
    e("v_add_u32 v33, s14, v33")
    e("v_add_u32 v34, 8, v33")
    e("v_cndmask_b32 v33, v34, v33, s[74:75]")
    pk(36, D(3), D(2))
    pk(37, D(1), D(0))
    e("ds_write_b64 v33, v[36:37]")
    nxt(40, 4)
    e("v_cndmask_b32 v41, v%d, v40, s[74:75]" % D(10))
    e("v_cndmask_b32 v42, v%d, v%d, s[74:75]" % (D(9), D(8)))
    e("v_cndmask_b32 v43, v%d, v%d, s[74:75]" % (D(8), D(4)))
    pk(44, 40, 41)
    pk(45, 42, 42)
    pk(46, 42, 43)
    pk(47, D(4), D(4))
    e("ds_write_b128 v14, v[44:47]")
    e("s_branch L_s_expJ")
    e("L_s_expB:")
    e("ds_write_b128 v15, v[16:19] offset:6656")
    e("v_subrev_u32 v14, 2560, v14")
    nxt(40, 5)
    e("v_cndmask_b32 v41, v%d, v40, s[76:77]" % D(5))
    e("v_cndmask_b32 v42, v%d, v40, s[74:75]" % D(11))
    e("v_cndmask_b32 v41, v%d, v41, s[74:75]" % D(11))
    e("v_cndmask_b32 v43, v%d, v%d, s[74:75]" % (D(11), D(5)))
    pk(44, 40, 40)
    pk(45, 42, 41)
    pk(46, 43, D(5))
    pk(47, D(5), D(5))
    e("ds_write_b128 v14, v[44:47] offset:1280")
    for r in (6, 7):
        o = 48 if r == 6 else 56
        nxt(o, r)
        e("v_cndmask_b32 v%d, v%d, v%d, s[76:77]" % (o + 1, D(r), o))
        pk(o + 4, o, o)
        pk(o + 5, o, o + 1)
        pk(o + 6, D(r), D(r))
        pk(o + 7, D(r), D(r))
        if r == 6:
            e("ds_write_b128 v14, %s" % vr(o + 4, 4))
        else:
            e("v_subrev_u32 v14, 1280, v14")
            e("s_mov_b32 exec_hi, 0")
            e("ds_write_b128 v14, %s" % vr(o + 4, 4))
            e("s_mov_b32 exec_hi, -1")
    e("L_s_expJ:")
    vX, vK = 8, 9
    e("v_and_b32 v10, 3, v1")
    e("v_mul_u32_u24 v%d, %d, v10" % (vX, XCS))
    e("v_bfe_u32 v10, v1, 2, 3")
    e("v_lshl_add_u32 v%d, v10, 3, v%d" % (vX, vX))
    e("v_lshrrev_b32 v10, 5, v1")
    e("v_lshl_add_u32 v%d, v10, 4, v%d" % (vX, vX))
    e("v_and_b32 v11, 31, v1")
    e("v_sub_u32 v11, 31, v11")
    e("v_mul_u32_u24 v%d, 80, v11" % vK)
    e("v_lshl_add_u32 v%d, v10, 4, v%d" % (vK, vK))
    e("s_lshr_b32 s5, s3, 1")
    e("s_mul_i32 s5, s5, %d" % (4 * XCS))
    e("s_add_u32 s5, s5, %d" % XC0)
    e("s_and_b32 s6, s3, 1")
    e("s_mul_i32 s7, s6, %d" % (48 * 32))
    e("s_add_u32 s5, s5, s7")
    e("v_add_u32 v%d, s5, v%d" % (vX, vX))
    e("s_mul_i32 s7, s6, %d" % (24 * 80))
    e("s_add_u32 s7, s7, s14")
    e("v_add_u32 v%d, s7, v%d" % (vK, vK))
    e("s_cmp_eq_u32 s6, 0")
    e("s_cselect_b32 s13, 6, 2")
    Y0, Y1, RG = 64, 80, 96
    for k in range(32):
        e("v_mov_b32 v%d, 0" % (Y0 + k))
    e("s_waitcnt lgkmcnt(0)")
    e("s_barrier")
    stamp(4)
    e("s_setprio 2")

    def rdx(st, sg):
        e("ds_read2_b64 %s, v%d offset0:%d offset1:%d" % (vr(RG + 12 * st, 4), vX, 4 * sg, 4 * sg + 1))

    def rdk(st, sg, tile):
        e("ds_read_b128 %s, v%d offset:%d" % (vr(RG + 12 * st + 4 + 4 * tile, 4), vK, 80 * (sg >> 1) + 32 * (sg & 1) + (0 if tile else 2560)))

    NST = 4
    for st in range(NST - 1):
        rdx(st, st); rdk(st, st, 0); rdk(st, st, 1)
    e("L_conv2:")
    for sg in range(8):
        st = sg % NST
        sn = (sg + NST - 1) % NST
        rdx(sn, sg + NST - 1); rdk(sn, sg + NST - 1, 0); rdk(sn, sg + NST - 1, 1)
        e("s_waitcnt lgkmcnt(%d)" % (3 * (NST - 1)))
        mfma(Y0, RG + 12 * st + 4, RG + 12 * st, Y0)
        if sg == 7:
            e("v_add_u32 v%d, 256, v%d" % (vX, vX))
            e("v_add_u32 v%d, 320, v%d" % (vK, vK))
            e("s_sub_u32 s13, s13, 1")
            e("s_cmp_lg_u32 s13, 0")
        mfma(Y1, RG + 12 * st + 8, RG + 12 * st, Y1)
    e("s_cbranch_scc1 L_conv2")
    e("s_bitcmp1_b32 s3, 0")
    e("s_cbranch_scc0 L_conv_done")
    e("s_mov_b32 s13, 8")
    e("s_waitcnt lgkmcnt(0)")
    e("L_conv1:")
    for sg in range(8):
        st = sg % NST
        sn = (sg + NST - 1) % NST
        rdx(sn, sg + NST - 1); rdk(sn, sg + NST - 1, 1)
        e("s_waitcnt lgkmcnt(%d)" % (2 * (NST - 1)))
        if sg == 7:
            e("v_add_u32 v%d, 256, v%d" % (vX, vX))
            e("v_add_u32 v%d, 320, v%d" % (vK, vK))
            e("s_sub_u32 s13, s13, 1")
            e("s_cmp_lg_u32 s13, 0")
        mfma(Y1, RG + 12 * st + 8, RG + 12 * st, Y1)
    e("s_cbranch_scc1 L_conv1")
    e("L_conv_done:")
    e("s_setprio 0")
    stamp(5)
    e("s_lshl_b32 s5, s3, 13")
    e("s_add_u32 s5, s5, %d" % S_CP)
    e("v_add_u32 v10, s5, v%d" % vL16)
    e("s_and_b32 s5, s3, 1")
    e("s_lshr_b32 s6, s3, 1")
    e("s_lshl_b32 s7, s5, 12")
    e("s_lshl_b32 s12, s6, 11")
    e("s_add_u32 s7, s7, s12")
    e("s_add_u32 s7, s7, %d" % S_CP)
    e("v_add_u32 v11, s7, v%d" % vL16)
    e("s_lshl_b32 s5, s5, 1")
    e("s_add_u32 s5, s5, s6")
    e("s_mul_i32 s5, s5, %d" % (16 * 224))
    e("s_add_u32 s5, s5, s%d" % S_ID)
    e("s_lshl_b32 s5, s5, 7")
    e("s_add_u32 s12, s5, 0x%x" % B2)
    e("v_lshrrev_b32 v12, 5, v1")
    e("v_mul_u32_u24 v12, %d, v12" % (4 * 224 * 128))
    e("v_and_b32 v13, 31, v1")
    e("v_lshl_add_u32 v12, v13, 2, v12")
    e("s_waitcnt lgkmcnt(0)")
    for k in range(8):
        e("ds_write_b128 v10, %s offset:%d" % (vr(Y0 + 4 * k, 4), k * 1024))
    e("s_waitcnt lgkmcnt(0)")
    e("s_barrier")
    for w in range(4):
        for q in range(2):
            e("ds_read_b128 %s, v11 offset:%d" % (vr(96 + 8 * w + 4 * q, 4), w * 8192 + q * 1024))
    e("s_lshl_b32 s7, s%d, 2" % S_ID)
    e("s_add_u32 s7, s7, s3")
    e("s_lshl_b32 s7, s7, 7")
    e("s_add_u32 s7, s7, 0x%x" % FLAG_B)
    e("s_waitcnt lgkmcnt(0)")
    e("s_barrier")
    for k in range(4):
        e("v_pk_add_f32 %s, %s, %s" % (vr(96 + 2 * k, 2), vr(96 + 2 * k, 2), vr(104 + 2 * k, 2)))
        e("v_pk_add_f32 %s, %s, %s" % (vr(112 + 2 * k, 2), vr(112 + 2 * k, 2), vr(120 + 2 * k, 2)))
    for k in range(8):
        e("v_cvt_pk_bf16_f32 v%d, v%d, v%d" % (128 + k, 96 + k, 112 + k))
    for k in range(8):
        e("buffer_store_dword v%d, v12, s[%d:%d], s12 offen sc1" % (128 + k, SWS, SWS + 3))
        if k < 7:
            e("s_add_u32 s12, s12, %d" % ((5 if k == 3 else 1) * 28672))
    e("s_waitcnt vmcnt(0)")
    flag_store(7, 13)
    stamp(6)
    e("L_s_cons:")
    S_TT, S_JG = 11, 12
    WO = 128
    e("s_lshr_b32 s5, s%d, 2" % S_J)
    e("s_add_u32 s%d, s10, s5" % S_TT)
    e("s_and_b32 s%d, s%d, 3" % (S_JG, S_J))
    srd(SWO, P_WO, 448 * 896)
    srd(SOUT, P_OUT, 2048 * 896)
    e("v_lshrrev_b32 v13, 2, v1")
    e("v_mul_u32_u24 v8, 896, v13")
    e("v_and_b32 v13, 3, v1")
    e("v_lshl_add_u32 v8, v13, 4, v8")
    tr_addr(9, 4, 64, 13, 14)
    e("s_mul_i32 s13, s3, 20480")
    e("v_add_u32 v9, s13, v9")
    e("s_mul_i32 s14, s%d, 224" % S_JG)
    e("s_mul_i32 s5, s3, 56")
    e("s_add_u32 s14, s14, s5")
    for ck in range(2):
        e("s_mov_b32 m0, s13")
        e("s_add_u32 s5, s14, %d" % (ck * 224 * 896))
        for m in range(15):
            e("buffer_load_dwordx4 v8, s[%d:%d], s5 offen lds" % (SWO, SWO + 3))
            if m < 14:
                e("s_add_u32 m0, m0, 1024")
                e("s_add_u32 s5, s5, 14336")
        e("s_waitcnt vmcnt(0)")
        for hd in range(8):
            for kp in range(2):
                for q in range(2):
                    e("ds_read_b64_tr_b16 %s, v9 offset:%d" % (vr(WO + 64 * ck + 8 * hd + 4 * kp + 2 * q, 2), (28 * hd + 16 * kp + 8 * q) * 64))
        e("s_waitcnt lgkmcnt(0)")
    e("s_barrier")
    stamp(7)
    e("s_cmp_lg_u32 s3, 0")
    e("s_cbranch_scc1 L_s_noalive")
    e("s_lshl_b32 s5, s2, 7")
    e("s_add_u32 s5, s5, 0x%x" % ALIVE)
    flag_store(5, 13)
    e("s_cmp_lg_u32 s2, 511")
    e("s_cbranch_scc1 L_s_noalive")
    e("v_lshlrev_b32 v13, 7, v1")
    e("v_add_u32 v13, 0x%x, v13" % ALIVE)
    poll("alive", 13, 16, sleep=8, n=8, step=8192)
    e("s_mov_b32 s5, 0")
    flag_store(5, 13)
    e("L_s_noalive:")
    e("s_mul_i32 s13, s%d, 56" % S_JG)
    e("s_mul_i32 s5, s3, 14")
    e("s_add_u32 s13, s13, s5")
    e("s_lshr_b32 s5, s%d, 5" % S_TT)
    e("s_bfe_u32 s6, s%d, 0x10004" % S_TT)
    e("s_lshl_b32 s6, s6, 1")
    e("s_add_u32 s5, s5, s6")
    e("s_lshl_b32 s6, s13, 2")
    e("s_add_u32 s5, s5, s6")
    e("s_lshl_b32 s5, s5, 7")
    e("s_add_u32 s5, s5, 0x%x" % FLAG_B)
    e("v_min_u32 v13, 13, v1")
    e("v_lshlrev_b32 v13, 9, v13")
    e("v_add_u32 v13, s5, v13")
    poll("b", 13, 14, sleep=4)
    BB = 24
    e("s_mul_i32 s5, s%d, 224" % S_TT)
    e("s_add_u32 s5, s5, s13")
    e("s_lshl_b32 s5, s5, 7")
    e("s_add_u32 s5, s5, 0x%x" % B2)
    e("v_lshrrev_b32 v10, 5, v1")
    e("v_and_b32 v11, 31, v1")
    e("v_lshlrev_b32 v13, 8, v10")
    e("v_lshl_add_u32 v13, v11, 2, v13")
    for q in range(4):
        if q == 3:
            e("s_mov_b32 exec_hi, 0")
        for p in range(2):
            e("buffer_load_dword v%d, v13, s[%d:%d], s5 offen offset:%d sc1" % (BB + 2 * q + p, SWS, SWS + 3, (4 * q + p) * 128))
    e("s_mov_b32 exec_hi, -1")
    e("s_lshl_b32 s5, s%d, 4" % S_TT)
    e("s_lshl_b32 s6, s3, 2")
    e("s_add_u32 s5, s5, s6")
    e("s_lshl_b32 s14, s5, 11")
    e("s_add_u32 s14, s14, 0x%x" % OW)
    e("s_add_u32 s15, s14, 4096")
    e("s_lshl_b32 s5, s5, 7")
    e("s_add_u32 s5, s5, 0x%x" % FLAG_O)
    e("v_and_b32 v13, 3, v1")
    e("v_lshlrev_b32 v13, 7, v13")
    e("v_add_u32 v13, s5, v13")
    e("s_lshl_b32 s5, s3, 13")
    e("v_add_u32 v12, s5, v%d" % vL16)
    e("v_lshlrev_b32 v14, 2, v11")
    e("s_lshl_b32 s72, s%d, 7" % S_TT)
    e("s_add_u32 s72, s72, 0x%x" % G1)
    e("v_mul_u32_u24 v15, 240, v11")
    e("v_lshl_add_u32 v15, v10, 3, v15")
    e("s_mul_i32 s5, s3, 56")
    e("s_add_u32 s5, s5, %d" % S_OT)
    e("v_add_u32 v15, s5, v15")
    for k in range(2):
        e("v_add_u32 v16, %d, v1" % (64 * k))
        e("v_mul_u32_u24 v17, 4682, v16")
        e("v_lshrrev_b32 v17, 16, v17")
        e("v_mul_u32_u24 v18, 14, v17")
        e("v_sub_u32 v16, v16, v18")
        e("v_mul_u32_u24 v18, 240, v17")
        e("v_lshl_add_u32 v%d, v16, 4, v18" % (20 + 2 * k))
        e("v_mul_u32_u24 v18, 896, v17")
        e("v_lshl_add_u32 v%d, v16, 4, v18" % (21 + 2 * k))
    e("s_mul_i32 s5, s3, %d" % (8 * 240))
    e("s_add_u32 s5, s5, %d" % S_OT)
    e("v_add_u32 v20, s5, v20")
    e("v_add_u32 v22, s5, v22")
    e("s_lshl_b32 s5, s%d, 2" % S_TT)
    e("s_add_u32 s5, s5, s3")
    e("s_mul_i32 s73, s5, %d" % (8 * 896))
    e("s_mul_i32 s5, s%d, 224" % S_JG)
    e("s_add_u32 s73, s73, s5")
    stamp(8)
    poll("o", 13, 16, sleep=1)
    stamp(9)
    e("s_setprio 3")
    OL = 32
    for k in range(8):
        e("buffer_load_dwordx4 %s, v%d, s[%d:%d], s%d offen offset:%d sc1" % (vr(OL + 4 * k, 4), vL16, SWS, SWS + 3, 14 + (k >> 2), (k & 3) * 1024))
    e("s_cmp_lg_u32 s3, 0")
    e("s_cbranch_scc1 L_s_nog")
    e("buffer_load_dword v16, v14, s[%d:%d], s72 offen sc1" % (SWS, SWS + 3))
    e("s_waitcnt vmcnt(0)")
    e("ds_write_b32 v14, v16 offset:%d" % S_G1)
    e("L_s_nog:")
    for k in range(8):
        e("s_waitcnt vmcnt(%d)" % (7 - k))
        e("ds_write_b128 v12, %s offset:%d" % (vr(OL + 4 * k, 4), k * 1024))
    e("s_waitcnt lgkmcnt(0)")
    e("s_barrier")
    DO, OF = 64, 80
    e("ds_read_b32 v16, v14 offset:%d" % S_G1)
    for k in range(7):
        e("ds_read_b128 %s, v%d offset:%d" % (vr(OF + 4 * k, 4), vL16, k * 1024))
    for k in range(32):
        if k + 7 < 32:
            e("ds_read_b128 %s, v%d offset:%d" % (vr(OF + 4 * ((k + 7) & 7), 4), vL16, (k + 7) * 1024))
        e("s_waitcnt lgkmcnt(%d)" % min(7, 31 - k))
        mfma(DO, WO + 4 * k, OF + 4 * (k & 7), None if k == 0 else DO)
        if k < 8:
            e("v_lshlrev_b32 v%d, 16, v%d" % (OL + 2 * k, BB + k))
            e("v_and_b32 v%d, 0xffff0000, v%d" % (OL + 2 * k + 1, BB + k))
    for k in range(8):
        e("v_pk_fma_f32 %s, %s, v[16:17], %s op_sel_hi:[1,0,1]" % (vr(DO + 2 * k, 2), vr(OL + 2 * k, 2), vr(DO + 2 * k, 2)))
    for k in range(8):
        e("v_cvt_pk_bf16_f32 v%d, v%d, v%d" % (OL + k, DO + 2 * k, DO + 2 * k + 1))
    for q in range(4):
        if q == 3:
            e("s_mov_b32 exec_hi, 0")
        e("ds_write_b64 v15, %s offset:%d" % (vr(OL + 2 * q, 2), 16 * q))
    e("s_mov_b32 exec_hi, -1")
    e("s_waitcnt lgkmcnt(0)")
    e("s_barrier")
    e("ds_read_b128 v[40:43], v20")
    e("ds_read_b128 v[44:47], v22")
    e("s_waitcnt lgkmcnt(1)")
    e("buffer_store_dwordx4 v[40:43], v21, s[%d:%d], s73 offen" % (SOUT, SOUT + 3))
    e("s_mov_b32 exec_hi, 0xffff")
    e("s_waitcnt lgkmcnt(0)")
    e("buffer_store_dwordx4 v[44:47], v23, s[%d:%d], s73 offen" % (SOUT, SOUT + 3))
    e("s_mov_b32 exec_hi, -1")
    if OPT["timing"]:
        e("s_waitcnt vmcnt(0)")
    stamp(10)
    stamp_flush()
    e("L_end:")
    e("s_endpgm")


prologue()
role_a()
role_s()

lines, nops = asmcheck.fix_hazards(L, verbose=bool(OPT.get("v", 0)))
errs = asmcheck.check_waitcnt(lines)
for er in errs:
    print("WAITCNT?", er, file=sys.stderr)
print("instructions: %d, wait states inserted: %d" % (len(lines), nops), file=sys.stderr)

ref = open("cdna_kernels/%s.s.ref" % NAME).read()
head = ref[: ref.index("; Override launch")]
text = head + """; Override launch geometry by editing the next line (default: block=256,
; grid=ceil(out_elems/256), lds=0). Harness parses it; keep it on one line.
; @launch grid=(512,1,1) block=(256,1,1) lds=81920
.amdgcn_target "amdgcn-amd-amdhsa--gfx950"
.text
.globl %s_kernel
.p2align 8
.type %s_kernel,@function
%s_kernel:
""" % (NAME, NAME, NAME) + "\n".join(lines) + """
.section .rodata,"a"
.p2align 6
.amdhsa_kernel %s_kernel
  .amdhsa_next_free_vgpr 256
  .amdhsa_next_free_sgpr 102
  .amdhsa_accum_offset 256
  .amdhsa_group_segment_fixed_size 0
  .amdhsa_kernarg_size 144
  .amdhsa_user_sgpr_count 2
  .amdhsa_user_sgpr_kernarg_segment_ptr 1
  .amdhsa_system_sgpr_workgroup_id_x 1
.end_amdhsa_kernel
""" % NAME
open(sys.argv[1], "w").write(text)
```

```python
import sys, struct, math, os
sys.path.insert(0, os.path.dirname(os.path.abspath(__file__)))
import asmcheck

NAME = "gated_mix__grouped_kv_mqa__ssm_conv_s4__prompt"
OPT = dict(timing=0, force_fb=0, spin=400000, dbgts=0)
for a in sys.argv[2:]:
    k, v = a.split("=")
    OPT[k] = int(v)

FLAG_KV = 0x1000
FLAG_O = 0x10000
FLAG_B = 0x30000
ALIVE = 0x50000
G1 = 0x60000
KV = 0x100000
OW = 0x200000
B2 = 0x400000
TSB = 0x800000
WS_BYTES = 0x1000000
NONCE_ADD = 0x9E3779B9

L = []


def e(s):
    for x in s.split("\n"):
        x = x.strip()
        if x:
            L.append(x if x.endswith(":") else "    " + x)


def f32(x):
    return struct.unpack("<I", struct.pack("<f", x))[0]


def vr(a, n=1):
    return "v%d" % a if n == 1 else "v[%d:%d]" % (a, a + n - 1)


def sr(a, n=1):
    return "s%d" % a if n == 1 else "s[%d:%d]" % (a, a + n - 1)


def srd(d, base, nbytes, add=None):
    if add is None:
        e("s_mov_b32 s%d, s%d" % (d, base))
        e("s_mov_b32 s%d, s%d" % (d + 1, base + 1))
    else:
        e("s_add_u32 s%d, s%d, %s" % (d, base, add))
        e("s_addc_u32 s%d, s%d, 0" % (d + 1, base + 1))
    e("s_mov_b32 s%d, 0x%x" % (d + 2, nbytes))
    e("s_mov_b32 s%d, 0x20000" % (d + 3))


def mfma(d, a, b, c):
    e("v_mfma_f32_32x32x16_bf16 %s, %s, %s, %s" % (vr(d, 16), vr(a, 4), vr(b, 4), "0" if c is None else vr(c, 16)))


P_X, P_WQ, P_WK, P_WV, P_WO = 16, 18, 20, 22, 24
P_ARE, P_AIM, P_BRE, P_BIM, P_CRE, P_CIM, P_LDT, P_DSK, P_GW, P_OUT, P_WS = 28, 30, 32, 34, 36, 38, 40, 42, 44, 46, 48
SX, SWS = 52, 56
S_WAVE, S_NONCE = 3, 4
V_LANE = 1
LOG2E = 1.4426950408889634

stamp_n = [0]


def stamp(idx):
    if OPT["timing"]:
        e("s_memrealtime s[96:97]")
        e("s_waitcnt lgkmcnt(0)")
        e("v_writelane_b32 v0, s96, %d" % idx)


def dbg_stamp(lo, hi, slot0, start):
    if not OPT["dbgts"]:
        return
    tag = "%d" % slot0
    e("s_sub_u32 s96, s2, %d" % lo)
    e("s_cmp_ge_u32 s96, %d" % (hi - lo))
    e("s_cbranch_scc1 L_dbg%s" % tag)
    e("s_cmp_lg_u32 s3, 0")
    e("s_cbranch_scc1 L_dbg%s" % tag)
    if not start:
        e("s_waitcnt vmcnt(0)")
        e("s_memrealtime s[94:95]")
        e("s_waitcnt lgkmcnt(0)")
    e("s_mov_b32 s72, s50")
    e("s_mov_b32 s73, s51")
    e("s_mov_b32 s74, 256")
    e("s_mov_b32 s75, 0x20000")
    e("s_add_u32 s96, s96, %d" % slot0)
    e("s_lshl_b32 s96, s96, 2")
    e("v_mov_b32 v2, s94")
    e("s_mov_b32 exec_lo, 1")
    e("s_mov_b32 exec_hi, 0")
    e("buffer_store_dword v2, off, s[72:75], s96")
    e("s_mov_b64 exec, -1")
    e("L_dbg%s:" % tag)


def stamp_flush():
    if OPT["timing"]:
        e("s_lshl_b32 s96, s2, 2")
        e("s_add_u32 s96, s96, s3")
        e("s_lshl_b32 s96, s96, 8")
        e("s_add_u32 s96, s96, 0x%x" % TSB)
        e("v_lshlrev_b32 v3, 2, v%d" % V_LANE)
        e("buffer_store_dword v0, v3, s[%d:%d], s96 offen" % (SWS, SWS + 3))


def poll(tag, vaddr, vtmp, sleep=0, n=1, step=0):
    e("s_mov_b32 s5, 0")
    e("L_poll_%s:" % tag)
    for k in range(n):
        if k == 0:
            e("buffer_load_dword v%d, v%d, s[%d:%d], 0 offen sc1" % (vtmp, vaddr, SWS, SWS + 3))
        else:
            e("s_mov_b32 s6, 0x%x" % (k * step))
            e("buffer_load_dword v%d, v%d, s[%d:%d], s6 offen sc1" % (vtmp + k, vaddr, SWS, SWS + 3))
    e("s_waitcnt vmcnt(0)")
    e("v_cmp_ne_u32 vcc, s%d, v%d" % (S_NONCE, vtmp))
    for k in range(1, n):
        e("v_cmp_ne_u32 s[6:7], s%d, v%d" % (S_NONCE, vtmp + k))
        e("s_or_b64 vcc, vcc, s[6:7]")
    e("s_cmp_eq_u64 vcc, 0")
    e("s_cbranch_scc1 L_pollok_%s" % tag)
    if sleep:
        e("s_sleep %d" % sleep)
    e("s_add_u32 s5, s5, 1")
    e("s_cmp_lt_u32 s5, %d" % OPT["spin"])
    e("s_cbranch_scc1 L_poll_%s" % tag)
    e("L_pollok_%s:" % tag)


def flag_store(soff_reg, vtmp):
    e("v_mov_b32 v%d, s%d" % (vtmp, S_NONCE))
    e("s_mov_b32 exec_lo, 1")
    e("s_mov_b32 exec_hi, 0")
    e("buffer_store_dword v%d, off, s[%d:%d], s%d sc1" % (vtmp, SWS, SWS + 3, soff_reg))
    e("s_mov_b64 exec, -1")


def x_swizzle_addrs(vg, vr0, vr1, t0, t1):
    e("v_lshrrev_b32 v%d, 2, v1" % t0)
    e("v_mul_u32_u24 v%d, 896, v%d" % (vg, t0))
    e("v_lshrrev_b32 v%d, 4, v1" % t0)
    e("v_xor_b32 v%d, v%d, v1" % (t0, t0))
    e("v_and_b32 v%d, 3, v%d" % (t0, t0))
    e("v_lshl_add_u32 v%d, v%d, 4, v%d" % (vg, t0, vg))
    e("v_and_b32 v%d, 31, v1" % t0)
    e("v_lshlrev_b32 v%d, 6, v%d" % (vr0, t0))
    e("v_lshrrev_b32 v%d, 2, v1" % t0)
    e("v_lshrrev_b32 v%d, 5, v1" % t1)
    e("v_xor_b32 v%d, v%d, v%d" % (t0, t0, t1))
    e("v_and_b32 v%d, 3, v%d" % (t0, t0))
    e("v_lshl_add_u32 v%d, v%d, 4, v%d" % (vr0, t0, vr0))
    e("v_xor_b32 v%d, 32, v%d" % (vr1, vr0))


def tr_addr(vd, hmul, stride, t0, t1):
    e("v_lshrrev_b32 v%d, 5, v1" % t0)
    e("v_mul_u32_u24 v%d, %d, v%d" % (t0, hmul, t0))
    e("v_bfe_u32 v%d, v1, 2, 2" % t1)
    e("v_add_u32 v%d, v%d, v%d" % (t0, t0, t1))
    e("v_mul_u32_u24 v%d, %d, v%d" % (vd, stride, t0))
    e("v_and_b32 v%d, 16, v1" % t0)
    e("v_lshl_add_u32 v%d, v%d, 1, v%d" % (vd, t0, vd))
    e("v_and_b32 v%d, 3, v1" % t0)
    e("v_lshl_add_u32 v%d, v%d, 3, v%d" % (vd, t0, vd))


def prologue():
    e("s_cmp_ge_u32 s2, 512")
    e("s_cbranch_scc1 L_end")
    if OPT["timing"]:
        e("s_memrealtime s[96:97]")
    if OPT["dbgts"]:
        e("s_memrealtime s[94:95]")
        e("s_load_dwordx2 s[50:51], s[0:1], 128")
    e("s_load_dwordx16 s[16:31], s[0:1], 0")
    e("s_load_dwordx16 s[32:47], s[0:1], 64")
    e("s_load_dwordx2 s[48:49], s[0:1], 136")
    e("v_and_b32 v1, 63, v0")
    e("v_lshrrev_b32 v2, 6, v0")
    e("v_readfirstlane_b32 s3, v2")
    e("s_cmp_ge_u32 s2, 256")
    e("s_cbranch_scc1 L_roleS")


A_IMG, A_XS, A_QX, A_INB = 0, 30720, 73728, 0
QF, OA, SS, PP, KVR = 64, 96, 160, 16, 192
V_G = 15


def role_a():
    S_HEAD, S_TT, S_X0, S_X1 = 8, 9, 10, 11
    SWQ, SG, SKV = 60, 64, 68
    XL = 128
    XF, WF, DQ = 16, 32, 48
    vXg, vXr0, vXr1, vXw, vWg, vWr, vGa, vGl = 2, 3, 4, 5, 6, 7, 8, 9
    vE, vG0, vG1 = 10, 11, 12
    e("s_and_b32 s5, s2, 7")
    e("s_lshr_b32 s6, s2, 3")
    e("s_lshr_b32 s7, s6, 4")
    e("s_lshl_b32 s5, s5, 1")
    e("s_add_u32 s5, s5, s7")
    e("s_and_b32 s%d, s6, 15" % S_HEAD)
    e("s_lshl_b32 s%d, s5, 2" % S_TT)
    e("s_add_u32 s%d, s%d, s3" % (S_TT, S_TT))
    e("s_mul_i32 s%d, s%d, 28672" % (S_X0, S_TT))
    e("s_add_u32 s%d, s%d, 14336" % (S_X1, S_X0))
    x_swizzle_addrs(vXg, vXr0, vXr1, 13, 14)
    e("v_lshrrev_b32 v13, 2, v1")
    e("v_mul_u32_u24 v%d, 896, v13" % vWg)
    e("v_and_b32 v13, 3, v1")
    e("v_lshl_add_u32 v%d, v13, 4, v%d" % (vWg, vWg))
    e("v_lshlrev_b32 v%d, 1, v1" % vGa)
    e("s_mul_i32 s12, s3, %d" % (112 * 896))
    e("s_mul_i32 s13, s%d, 56" % S_HEAD)
    e("s_add_u32 s12, s12, s13")
    e("s_mul_i32 s13, s3, %d" % (112 * 64))
    e("s_mul_i32 s14, s3, 224")
    e("s_waitcnt lgkmcnt(0)")
    if OPT["timing"]:
        e("v_writelane_b32 v0, s96, 0")
    stamp(20)
    srd(SWS, P_WS, WS_BYTES)
    e("buffer_load_dword v%d, off, s[%d:%d], 0 sc1" % (vE, SWS, SWS + 3))
    srd(SWQ, P_WQ, 448 * 896)
    e("s_mov_b32 m0, s13")
    srd(SX, P_X, 2048 * 896)
    for m in range(7):
        e("buffer_load_dwordx4 v%d, s[%d:%d], s12 offen lds" % (vWg, SWQ, SWQ + 3))
        if m < 6:
            e("s_add_u32 m0, m0, 1024")
            e("s_add_u32 s12, s12, 14336")
    srd(SG, P_GW, 896)
    e("buffer_load_ushort v%d, v%d, s[%d:%d], s14 offen" % (vG0, vGa, SG, SG + 3))
    e("buffer_load_ushort v%d, v%d, s[%d:%d], s14 offen offset:128" % (vG1, vGa, SG, SG + 3))
    for p in range(14):
        for rh in range(2):
            e("buffer_load_dwordx4 %s, v%d, s[%d:%d], s%d offen offset:%d" % (vr(XL + 8 * p + 4 * rh, 4), vXg, SX, SX + 3, S_X1 if rh else S_X0, 64 * p))
    stamp(6)
    e("s_lshl_b32 s15, s3, 11")
    e("s_add_u32 s15, s15, %d" % A_XS)
    e("v_add_u32 v%d, s15, v%d" % (vXr0, vXr0))
    e("v_add_u32 v%d, s15, v%d" % (vXr1, vXr1))
    e("v_lshlrev_b32 v13, 4, v1")
    e("v_add_u32 v%d, s15, v13" % vXw)
    tr_addr(vWr, 8, 64, 13, 14)
    e("v_lshlrev_b32 v13, 6, v1")
    e("v_add_u32 v%d, s13, v13" % vGl)
    e("s_add_u32 s12, s3, %d" % (KV >> 16))
    e("s_lshl_b32 s12, s12, 16")
    srd(SKV, P_WS, 65536, "s12")
    e("s_waitcnt vmcnt(28)")
    e("ds_write_b16 v%d, v%d offset:56" % (vGl, vG0))
    e("ds_write_b16 v%d, v%d offset:%d" % (vGl, vG1, 56 + 4096))
    e("v_readfirstlane_b32 s4, v%d" % vE)
    e("s_add_u32 s4, s4, 0x%x" % NONCE_ADD)
    e("s_waitcnt lgkmcnt(0)")
    e("s_barrier")
    stamp(1)

    def stage(p):
        b = p & 1
        e("s_waitcnt vmcnt(%d)" % (26 - 2 * p))
        e("ds_write_b128 v%d, %s" % (vXw, vr(XL + 8 * p, 4)))
        e("ds_write_b128 v%d, %s offset:1024" % (vXw, vr(XL + 8 * p + 4, 4)))
        for ee in range(2):
            e("ds_read_b128 %s, v%d" % (vr(XF + 8 * b + 4 * ee, 4), vXr1 if ee else vXr0))
            for q in range(2):
                e("ds_read_b64_tr_b16 %s, v%d offset:%d" % (vr(WF + 8 * b + 4 * ee + 2 * q, 2), vWr, (2 * p + ee) * 1024 + q * 256))

    stage(0)
    for p in range(14):
        b = p & 1
        if p < 13:
            stage(p + 1)
            e("s_waitcnt lgkmcnt(8)")
        else:
            e("s_waitcnt lgkmcnt(0)")
        mfma(DQ, WF + 8 * b, XF + 8 * b, None if p == 0 else DQ)
        mfma(DQ, WF + 8 * b + 4, XF + 8 * b + 4, DQ)
    stamp(7)
    e("s_cmp_lg_u32 s3, 0")
    e("s_cbranch_scc1 L_a_noalive")
    e("s_lshl_b32 s5, s2, 7")
    e("s_add_u32 s5, s5, 0x%x" % ALIVE)
    flag_store(5, 13)
    e("L_a_noalive:")
    e("s_mov_b32 s12, 0x%x" % f32(28 ** -0.5 * LOG2E))
    e("s_mov_b32 s14, 0")
    e("s_mov_b32 s15, -1")
    e("v_lshlrev_b32 v2, 4, v1")
    e("s_lshl_b32 s5, s3, 11")
    e("s_add_u32 s5, s5, %d" % A_QX)
    e("v_add_u32 v3, s5, v2")
    for i in range(1, 4):
        e("s_add_u32 s5, s3, %d" % i)
        e("s_and_b32 s5, s5, 3")
        e("s_lshl_b32 s6, s5, 11")
        e("s_add_u32 s6, s6, %d" % A_QX)
        e("v_add_u32 v%d, s6, v2" % (3 + i))
        e("s_mul_i32 s6, s5, 12288")
        e("s_add_u32 s6, s6, %d" % (A_INB + (i - 1) * 4096))
        e("v_add_u32 v%d, s6, v2" % (7 + i))
    e("s_mul_i32 s6, s3, 12288")
    e("v_add_u32 v11, s6, v2")
    e("v_mul_f32 v%d, 0x%x, v%d" % (V_G, f32(-LOG2E), DQ + 12))
    for k in range(8):
        e("v_pk_mul_f32 %s, %s, s[12:13] op_sel_hi:[1,0]" % (vr(DQ + 2 * k, 2), vr(DQ + 2 * k, 2)))
    e("v_exp_f32 v%d, v%d" % (V_G, V_G))
    for k in range(8):
        e("v_cvt_pk_bf16_f32 v%d, v%d, v%d" % (QF + k, DQ + 2 * k, DQ + 2 * k + 1))
    e("v_cndmask_b32 v%d, v%d, 0, s[14:15]" % (QF + 6, QF + 6))
    e("v_cndmask_b32 v%d, v%d, 0, s[14:15]" % (QF + 7, QF + 7))
    e("ds_write_b128 v3, %s" % vr(QF, 4))
    e("ds_write_b128 v3, %s offset:1024" % vr(QF + 4, 4))
    e("v_add_f32 v%d, 1.0, v%d" % (V_G, V_G))
    e("v_rcp_f32 v%d, v%d" % (V_G, V_G))
    e("s_lshl_b32 s5, s3, 13")
    e("s_add_u32 s5, s5, 0x%x" % FLAG_KV)
    e("v_lshlrev_b32 v12, 7, v1")
    e("v_add_u32 v12, s5, v12")
    e("s_waitcnt lgkmcnt(0)")
    e("s_barrier")
    for i in range(1, 4):
        e("ds_read_b128 %s, v%d" % (vr(QF + 8 * i, 4), 3 + i))
        e("ds_read_b128 %s, v%d offset:1024" % (vr(QF + 8 * i + 4, 4), 3 + i))
    for k in range(64):
        e("v_mov_b32 v%d, 0" % (OA + k))
    for k in range(8):
        e("v_mov_b32 v%d, 0" % (PP + 8 + k))
    for k in range(8):
        e("v_mov_b32 v%d, 0" % (KVR + 48 + 8 + k))
    stamp(2)
    poll("kv", 12, 13)
    stamp(3)

    def Kf(b, k):
        return KVR + 16 * b + 4 * k

    def Vf(b, k):
        return KVR + 16 * b + 8 + 4 * k

    def ld(reg, soff, off):
        e("buffer_load_dwordx4 %s, v2, s[%d:%d], %s offen offset:%d sc1" % (vr(reg, 4), SKV, SKV + 3, soff, off))

    S_OFF = 13
    for b in range(4):
        if b == 0:
            so = "0"
        else:
            e("s_mov_b32 s%d, %d" % (S_OFF, 4096 * b))
            so = "s%d" % S_OFF
        ld(Kf(b, 0), so, 0)
        ld(Kf(b, 1), so, 1024)
        if b < 3:
            ld(Vf(b, 0), so, 2048)
            ld(Vf(b, 1), so, 3072)
    e("s_setprio 1")
    e("s_waitcnt vmcnt(12) lgkmcnt(0)")
    stamp(8)
    mfma(SS, Kf(0, 0), QF, None)
    mfma(SS, Kf(0, 1), QF + 4, SS)

    def M1(n):
        mfma(SS + 16 * ((n + 1) & 1), Kf(((n + 1) >> 2) & 3, 0), QF + 8 * ((n + 1) & 3), None)

    e("s_nop 10")
    M1(0)
    e("L_attn:")
    for n in range(16):
        S = SS + 16 * (n & 1)
        Sn = SS + 16 * ((n + 1) & 1)
        P = PP + 8 * (n & 1)
        Pp = PP + 8 * ((n - 1) & 1)
        ip, bp = (n - 1) & 3, ((n - 1) >> 2) & 3
        i1, b1 = (n + 1) & 3, ((n + 1) >> 2) & 3

        def ex(a, b_):
            for r in range(a, b_):
                e("v_exp_f32 v%d, v%d" % (S + r, S + r))

        def cv(a, b_):
            for k in range(a, b_):
                e("v_cvt_pk_bf16_f32 v%d, v%d, v%d" % (P + k, S + 2 * k, S + 2 * k + 1))

        if n % 4 == 1:
            e("s_waitcnt vmcnt(10)")
        if n % 4 == 3:
            ld(Kf((n >> 2) & 3, 0), "s%d" % S_OFF, 0)
        ex(0, 4)
        mfma(OA + 16 * ip, Vf(bp, 0), Pp, OA + 16 * ip)
        if n % 4 == 1:
            ld(Vf(((n >> 2) + 3) & 3, 0), "s%d" % S_OFF, 2048)
        if n % 4 == 3:
            ld(Kf((n >> 2) & 3, 1), "s%d" % S_OFF, 1024)
        ex(4, 8)
        cv(0, 2)
        mfma(Sn, Kf(b1, 1), QF + 8 * i1 + 4, Sn)
        if n % 4 == 1:
            ld(Vf(((n >> 2) + 3) & 3, 1), "s%d" % S_OFF, 3072)
        ex(8, 12)
        cv(2, 4)
        mfma(OA + 16 * ip, Vf(bp, 1), Pp + 4, OA + 16 * ip)
        if n % 4 == 1:
            e("s_add_u32 s%d, s%d, 4096" % (S_OFF, S_OFF))
        if n % 4 == 2:
            e("s_waitcnt vmcnt(10)")
        if n == 15:
            e("s_cmp_lt_u32 s%d, %d" % (S_OFF, 4096 * 19))
        ex(12, 16)
        cv(4, 8)
        M1(n + 1)
    e("s_cbranch_scc1 L_attn")
    mfma(OA + 48, Vf(3, 0), PP + 8, OA + 48)
    mfma(OA + 48, Vf(3, 1), PP + 12, OA + 48)
    stamp(4)
    for i in range(1, 4):
        for q in range(4):
            e("ds_write_b128 v%d, %s offset:%d" % (7 + i, vr(OA + 16 * i + 4 * q, 4), q * 1024))
    e("s_waitcnt vmcnt(0) lgkmcnt(0)")
    e("s_barrier")
    T = 160
    for k in range(12):
        e("ds_read_b128 %s, v11 offset:%d" % (vr(T + 4 * k, 4), k * 1024))
    e("s_lshl_b32 s5, s%d, 4" % S_TT)
    e("s_add_u32 s5, s5, s%d" % S_HEAD)
    e("s_lshl_b32 s6, s5, 11")
    e("s_add_u32 s6, s6, 0x%x" % OW)
    e("s_lshl_b32 s7, s5, 7")
    e("s_add_u32 s7, s7, 0x%x" % FLAG_O)
    for i in range(3):
        e("s_waitcnt lgkmcnt(%d)" % (8 - 4 * i))
        for k in range(8):
            e("v_pk_add_f32 %s, %s, %s" % (vr(OA + 2 * k, 2), vr(OA + 2 * k, 2), vr(T + 16 * i + 2 * k, 2)))
    e("v_pk_mul_f32 v[4:5], %s, 0" % vr(OA, 2))
    for k in range(1, 8):
        e("v_pk_fma_f32 v[4:5], %s, 0, v[4:5]" % vr(OA + 2 * k, 2))
    e("s_mov_b32 s12, 0x%x" % f32(2.0 ** -60))
    e("s_mov_b32 s13, 0x%x" % f32(2.0 ** 60))
    e("v_cmp_nle_f32 s[72:73], s12, v%d" % (OA + 12))
    e("v_cmp_nge_f32 s[74:75], s13, v%d" % (OA + 12))
    e("v_cmp_u_f32 vcc, v4, v5")
    e("s_or_b32 s73, s73, s75")
    e("s_or_b32 s73, s73, vcc_hi")
    e("s_or_b32 s73, s73, vcc_lo")
    if OPT["force_fb"]:
        e("s_mov_b32 s73, 1")
    e("s_cmp_lg_u32 s73, 0")
    e("s_cbranch_scc1 L_fb")
    e("L_fin:")
    e("v_rcp_f32 v4, v%d" % (OA + 12))
    e("v_sub_f32 v6, 1.0, v%d" % V_G)
    e("v_mul_f32 v4, v4, v%d" % V_G)
    e("v_mov_b32 v5, v4")
    e("v_permlane32_swap_b32 v5, v4")
    for k in range(8):
        e("v_pk_mul_f32 %s, %s, v[4:5] op_sel_hi:[1,0]" % (vr(OA + 2 * k, 2), vr(OA + 2 * k, 2)))
    for k in range(8):
        e("v_cvt_pk_bf16_f32 v%d, v%d, v%d" % (32 + k, OA + 2 * k, OA + 2 * k + 1))
    e("v_cndmask_b32 v38, v38, 0, s[14:15]")
    e("v_cndmask_b32 v39, v39, 0, s[14:15]")
    e("buffer_store_dwordx4 v[32:35], v2, s[%d:%d], s6 offen sc1" % (SWS, SWS + 3))
    e("buffer_store_dwordx4 v[36:39], v2, s[%d:%d], s6 offen offset:1024 sc1" % (SWS, SWS + 3))
    e("s_cmp_lg_u32 s%d, 0" % S_HEAD)
    e("s_cbranch_scc1 L_a_nog")
    e("s_lshl_b32 s5, s%d, 7" % S_TT)
    e("s_add_u32 s5, s5, 0x%x" % (G1 - 128))
    e("v_lshlrev_b32 v7, 2, v1")
    e("s_mov_b32 exec_lo, 0")
    e("buffer_store_dword v6, v7, s[%d:%d], s5 offen sc1" % (SWS, SWS + 3))
    e("s_mov_b32 exec_lo, -1")
    e("L_a_nog:")
    e("s_waitcnt vmcnt(0)")
    flag_store(7, 8)
    stamp(5)
    dbg_stamp(0, 8, 0, True)
    stamp_flush()
    e("s_endpgm")

    SALL = 76
    e("L_fb:")
    srd(SALL, P_WS, 262144, "0x%x" % KV)
    e("v_mov_b32 v7, 0xff800000")
    e("s_mov_b32 s12, 0")
    e("L_fb1:")
    e("buffer_load_dwordx4 v[192:195], v2, s[%d:%d], s12 offen sc1" % (SALL, SALL + 3))
    e("buffer_load_dwordx4 v[196:199], v2, s[%d:%d], s12 offen offset:1024 sc1" % (SALL, SALL + 3))
    e("s_waitcnt vmcnt(0)")
    mfma(SS, 192, QF, None)
    mfma(SS, 196, QF + 4, SS)
    for k in range(8):
        e("v_max3_f32 v7, v7, v%d, v%d" % (SS + 2 * k, SS + 2 * k + 1))
    e("s_add_u32 s12, s12, 4096")
    e("s_cmp_lt_u32 s12, 262144")
    e("s_cbranch_scc1 L_fb1")
    e("v_mov_b32 v8, v7")
    e("v_permlane32_swap_b32 v8, v7")
    e("v_max_f32 v7, v7, v8")
    for k in range(16):
        e("v_mov_b32 v%d, 0" % (OA + k))
    e("s_mov_b32 s12, 0")
    e("L_fb2:")
    for k in range(4):
        e("buffer_load_dwordx4 %s, v2, s[%d:%d], s12 offen offset:%d sc1" % (vr(192 + 4 * k, 4), SALL, SALL + 3, 1024 * k))
    e("s_waitcnt vmcnt(0)")
    mfma(SS, 192, QF, None)
    mfma(SS, 196, QF + 4, SS)
    for k in range(16):
        e("v_sub_f32 v%d, v%d, v7" % (SS + k, SS + k))
    for k in range(16):
        e("v_exp_f32 v%d, v%d" % (SS + k, SS + k))
    for k in range(8):
        e("v_cvt_pk_bf16_f32 v%d, v%d, v%d" % (PP + k, SS + 2 * k, SS + 2 * k + 1))
    mfma(OA, 200, PP, OA)
    mfma(OA, 204, PP + 4, OA)
    e("s_add_u32 s12, s12, 4096")
    e("s_cmp_lt_u32 s12, 262144")
    e("s_cbranch_scc1 L_fb2")
    e("s_nop 8")
    e("s_branch L_fin")


S_STG = 16896
S_INB1 = 16896
S_WL = 49664
S_PX = 67584
KR0, KR1, XC0 = 0, 7680, 15360
XCS = 4160
S_CP = 48640
S_OF, S_G1, S_OT = 0, 32768, 40960


def cmul(d, x, m, t):
    e("v_pk_mul_f32 %s, %s, %s op_sel_hi:[1,0]" % (vr(t, 2), vr(x, 2), vr(m, 2)))
    e("v_pk_fma_f32 %s, %s, %s, %s op_sel:[1,1,0] op_sel_hi:[0,1,1] neg_lo:[1,0,0]" % (vr(d, 2), vr(x, 2), vr(m, 2), vr(t, 2)))


def role_s():
    S_ID, S_J = 8, 9
    SW, SWO, SOUT = 60, 64, 68
    vE = 10
    PRM = 240
    XG = 246
    e("L_roleS:")
    e("s_sub_u32 s%d, s2, 256" % S_ID)
    e("s_lshr_b32 s%d, s%d, 3" % (S_J, S_ID))
    vXg, vXr0, vXr1, vL16, vWr = 2, 3, 4, 5, 6
    x_swizzle_addrs(vXg, vXr0, vXr1, 13, 14)
    e("v_lshlrev_b32 v%d, 4, v1" % vL16)
    e("s_lshl_b32 s5, s%d, 10" % S_ID)
    e("s_lshl_b32 s6, s3, 8")
    e("s_add_u32 s5, s5, s6")
    e("v_lshlrev_b32 v7, 2, v1")
    e("v_add_u32 v7, s5, v7")
    e("s_and_b32 s10, s%d, 7" % S_ID)
    e("s_lshl_b32 s10, s10, 3")
    e("s_waitcnt lgkmcnt(0)")
    if OPT["timing"]:
        e("v_writelane_b32 v0, s96, 0")
    stamp(20)
    srd(SWS, P_WS, WS_BYTES)
    e("buffer_load_dword v%d, off, s[%d:%d], 0 sc1" % (vE, SWS, SWS + 3))
    srd(SX, P_X, 2048 * 896)
    e("s_cmp_lt_u32 s%d, 16" % S_J)
    e("s_cbranch_scc1 L_s_nokv1")
    S_TAU, S_KIND = 11, 12
    e("s_sub_u32 s5, s%d, 16" % S_J)
    e("s_lshr_b32 s5, s5, 1")
    e("s_add_u32 s%d, s10, s5" % S_TAU)
    e("s_and_b32 s%d, s%d, 1" % (S_KIND, S_J))
    e("s_cmp_eq_u32 s%d, 0" % S_KIND)
    e("s_cselect_b32 s%d, s%d, s%d" % (SW, P_WK, P_WV))
    e("s_cselect_b32 s%d, s%d, s%d" % (SW + 1, P_WK + 1, P_WV + 1))
    e("s_mov_b32 s%d, %d" % (SW + 2, 448 * 56))
    e("s_mov_b32 s%d, 0x20000" % (SW + 3))
    e("s_lshl_b32 s5, s3, 13")
    e("s_add_u32 s5, s5, 16896")
    e("s_cmp_eq_u32 s3, 0")
    e("s_cselect_b32 s13, 8192, s5")
    e("s_mul_i32 s14, s3, 7232")
    e("s_add_u32 s14, s14, %d" % S_WL)
    e("s_mul_i32 s5, s%d, 28672" % S_TAU)
    e("s_lshl_b32 s6, s3, 8")
    e("s_add_u32 s5, s5, s6")
    e("s_add_u32 s6, s5, 14336")
    e("s_mov_b32 m0, s13")
    for pp in range(4):
        for rh in range(2):
            e("buffer_load_dwordx4 v%d, s[%d:%d], s%d offen lds" % (vXg, SX, SX + 3, 6 if rh else 5))
            e("s_add_u32 m0, m0, 1024")
            if pp < 3:
                e("s_add_u32 s%d, s%d, 64" % (6 if rh else 5, 6 if rh else 5))
    e("s_mul_i32 s5, s3, 7168")
    e("s_mov_b32 m0, s14")
    e("s_add_u32 s6, s5, 4096")
    for m in range(4):
        e("buffer_load_dwordx4 v%d, s[%d:%d], s5 offen offset:%d lds" % (vL16, SW, SW + 3, 1024 * m))
    e("s_add_u32 m0, m0, 4096")
    for m in range(3):
        e("buffer_load_dwordx4 v%d, s[%d:%d], s6 offen offset:%d lds" % (vL16, SW, SW + 3, 1024 * m))
    e("L_s_nokv1:")
    e("s_cmp_ge_u32 s%d, 224" % S_ID)
    e("s_cbranch_scc1 L_s_noprm")
    for k, p in enumerate((P_ARE, P_AIM, P_BRE, P_BIM, P_CRE, P_CIM)):
        e("global_load_dword v%d, v7, s[%d:%d]" % (PRM + k, p, p + 1))
    e("s_lshl_b32 s5, s%d, 2" % S_ID)
    e("s_load_dword s72, s[%d:%d], s5" % (P_LDT, P_LDT + 1))
    e("s_load_dword s73, s[%d:%d], s5" % (P_DSK, P_DSK + 1))
    e("L_s_noprm:")
    e("s_cmp_lt_u32 s%d, 16" % S_J)
    e("s_cbranch_scc1 L_s_nokv2")
    tr_addr(vWr, 8, 56, 13, 14)
    e("v_add_u32 v%d, s14, v%d" % (vWr, vWr))
    e("v_add_u32 v%d, s13, v%d" % (vXr0, vXr0))
    e("v_add_u32 v%d, s13, v%d" % (vXr1, vXr1))
    e("s_lshl_b32 s5, s3, 11")
    e("v_add_u32 v8, s5, v%d" % vL16)
    XF, WF, DK = 64, 96, 48
    e("s_waitcnt vmcnt(0) lgkmcnt(0)")
    stamp(1)
    for s in range(8):
        e("ds_read_b128 %s, v%d offset:%d" % (vr(XF + 4 * s, 4), vXr1 if s & 1 else vXr0, (s >> 1) * 2048))
        for q in range(2):
            e("ds_read_b64_tr_b16 %s, v%d offset:%d" % (vr(WF + 4 * s + 2 * q, 2), vWr, s * 896 + q * 224))
    e("v_readfirstlane_b32 s4, v%d" % vE)
    e("s_add_u32 s4, s4, 0x%x" % NONCE_ADD)
    e("s_cmp_eq_u32 s%d, 0" % S_KIND)
    e("s_cbranch_scc0 L_s_kind1")
    for s in range(8):
        e("s_waitcnt lgkmcnt(%d)" % min(15, 21 - 3 * s))
        mfma(DK, WF + 4 * s, XF + 4 * s, None if s == 0 else DK)
    e("s_branch L_s_kindj")
    e("L_s_kind1:")
    for s in range(8):
        e("s_waitcnt lgkmcnt(%d)" % min(15, 21 - 3 * s))
        mfma(DK, XF + 4 * s, WF + 4 * s, None if s == 0 else DK)
    e("L_s_kindj:")
    e("s_cmp_eq_u32 s%d, 0" % S_KIND)
    e("s_cselect_b32 s74, 0, 0xe0000000")
    e("s_mov_b32 s75, s74")
    e("s_mov_b32 s76, s74")
    e("s_cselect_b32 s78, 0, 0x10000000")
    e("s_mov_b32 s79, s78")
    e("s_cselect_b32 s5, -1, 0")
    e("s_cmp_eq_u32 s3, 1")
    e("s_cselect_b32 s5, s5, 0")
    e("s_or_b32 s77, s74, s5")
    e("v_mov_b32 v9, 0x3f803f80")
    for q in range(4):
        e("ds_write_b128 v8, %s offset:%d" % (vr(DK + 4 * q, 4), (q >> 1) * S_INB1 + (q & 1) * 1024))
    e("s_waitcnt lgkmcnt(0)")
    e("s_barrier")
    e("s_cmp_ge_u32 s3, 2")
    e("s_cbranch_scc1 L_s_kvdone")
    e("s_mul_i32 s5, s3, %d" % S_INB1)
    e("v_add_u32 v8, s5, v%d" % vL16)
    for k in range(8):
        e("ds_read_b128 %s, v8 offset:%d" % (vr(64 + 4 * k, 4), k * 1024))
    e("s_lshl_b32 s5, s%d, 1" % S_TAU)
    e("s_add_u32 s5, s5, s%d" % S_KIND)
    e("s_lshl_b32 s5, s5, 1")
    e("s_add_u32 s5, s5, s3")
    e("s_lshl_b32 s6, s5, 10")
    e("s_add_u32 s6, s6, 0x%x" % KV)
    e("s_lshl_b32 s7, s5, 7")
    e("s_add_u32 s7, s7, 0x%x" % FLAG_KV)
    e("s_waitcnt lgkmcnt(4)")
    for k in range(4):
        e("v_pk_add_f32 %s, %s, %s" % (vr(64 + 2 * k, 2), vr(64 + 2 * k, 2), vr(72 + 2 * k, 2)))
    e("s_waitcnt lgkmcnt(0)")
    for k in range(4):
        e("v_pk_add_f32 %s, %s, %s" % (vr(80 + 2 * k, 2), vr(80 + 2 * k, 2), vr(88 + 2 * k, 2)))
    for k in range(4):
        e("v_pk_add_f32 %s, %s, %s" % (vr(64 + 2 * k, 2), vr(64 + 2 * k, 2), vr(80 + 2 * k, 2)))
    for k in range(4):
        e("v_cvt_pk_bf16_f32 v%d, v%d, v%d" % (72 + k, 64 + 2 * k, 65 + 2 * k))
    for k in range(4):
        e("v_cndmask_b32 v%d, v%d, 0, %s" % (72 + k, 72 + k, "s[74:75]" if k < 2 else "s[76:77]"))
    for k in range(4):
        e("v_cndmask_b32 v%d, v%d, v9, s[78:79]" % (72 + k, 72 + k))
    stamp(17)
    e("buffer_store_dwordx4 v[72:75], v%d, s[%d:%d], s6 offen sc1" % (vL16, SWS, SWS + 3))
    e("s_waitcnt vmcnt(0)")
    stamp(18)
    flag_store(7, 9)
    e("L_s_kvdone:")
    stamp(2)
    e("s_cmp_ge_u32 s%d, 224" % S_ID)
    e("s_cbranch_scc1 L_s_cons")
    e("s_branch L_s_kgen")
    e("L_s_nokv2:")
    e("s_waitcnt vmcnt(0) lgkmcnt(0)")
    e("v_readfirstlane_b32 s4, v%d" % vE)
    e("s_add_u32 s4, s4, 0x%x" % NONCE_ADD)
    e("L_s_kgen:")
    stamp(11)
    e("s_lshr_b32 s5, s3, 1")
    e("s_lshl_b32 s5, s5, 4")
    e("s_lshr_b32 s72, s72, s5")
    e("s_lshl_b32 s72, s72, 16")
    e("s_lshr_b32 s73, s73, s5")
    e("s_lshl_b32 s73, s73, 16")
    c_hi = struct.unpack("<f", struct.pack("<I", f32(LOG2E) & 0xFFFFFF00))[0]
    c_lo = (LOG2E - c_hi) * math.log(2.0)
    e("v_mov_b32 v8, s72")
    e("v_mul_f32 v9, 0x%x, v8" % f32(c_hi))
    e("v_exp_f32 v9, v9")
    e("v_mul_f32 v8, 0x%x, v8" % f32(c_lo))
    e("v_fma_f32 v9, v9, v8, v9")
    e("v_cvt_pk_bf16_f32 v9, v9, v9")
    e("v_and_b32 v9, 0xffff0000, v9")
    ZR, ZI = (16, 17), (18, 19)
    E1, E8, EG, WW, TT, XX = (20, 22), (24, 26), (28, 30), (32, 34), (36, 38), (40, 42)
    R2, R4, R6 = (44, 46), (48, 50), (52, 54)
    OUT = 56

    def unp(d, src, m):
        if m == 0:
            e("v_lshlrev_b32 v%d, 16, v%d" % (d, src))
        else:
            e("v_and_b32 v%d, 0xffff0000, v%d" % (d, src))

    for m in range(2):
        unp(ZR[m], PRM + 0, m)
        unp(ZI[m], PRM + 1, m)
    for m in range(2):
        e("v_mul_f32 v%d, v9, v%d" % (ZR[m], ZR[m]))
        e("v_mul_f32 v%d, v9, v%d" % (ZI[m], ZI[m]))
    for m in range(2):
        e("v_mul_f32 v%d, 0x%x, v%d" % (ZR[m], f32(LOG2E), ZR[m]))
        e("v_mul_f32 v%d, 0x%x, v%d" % (ZI[m], f32(1.0 / (2 * math.pi)), ZI[m]))

    def cexp(dst, mult, conj):
        for m in range(2):
            if mult != 1:
                e("v_mul_f32 v%d, 0x%x, v%d" % (TT[m], f32(mult), ZR[m]))
                e("v_mul_f32 v%d, 0x%x, v%d" % (TT[m] + 1, f32(mult), ZI[m]))
                e("v_fract_f32 v%d, v%d" % (TT[m] + 1, TT[m] + 1))
            else:
                e("v_mov_b32 v%d, v%d" % (TT[m], ZR[m]))
                e("v_fract_f32 v%d, v%d" % (TT[m] + 1, ZI[m]))
        for m in range(2):
            e("v_exp_f32 v%d, v%d" % (TT[m], TT[m]))
            e("v_cos_f32 v%d, v%d" % (dst[m], TT[m] + 1))
            e("v_sin_f32 v%d, v%d" % (dst[m] + 1, TT[m] + 1))
        for m in range(2):
            e("v_pk_mul_f32 %s, %s, %s op_sel_hi:[1,0]%s" % (vr(dst[m], 2), vr(dst[m], 2), vr(TT[m], 2), " neg_hi:[1,0]" if conj else ""))

    cexp(E8, 8, True)
    e("s_mul_i32 s13, s3, %d" % S_STG)
    e("v_lshlrev_b32 v8, 3, v1")
    e("v_add_u32 v8, s13, v8")
    e("v_and_b32 v11, 31, v1")
    e("v_mul_u32_u24 v11, 528, v11")
    e("v_lshrrev_b32 v12, 5, v1")
    e("v_lshl_add_u32 v11, v12, 4, v11")
    e("v_add_u32 v11, s13, v11")
    ring = [0]

    def put(row, src):
        o = OUT + 2 * (ring[0] & 3)
        ring[0] += 1
        for m in range(2):
            e("v_cvt_pk_bf16_f32 v%d, v%d, v%d" % (o + m, src[m], src[m] + 1))
        e("ds_write_b64 v8, %s offset:%d" % (vr(o, 2), row * 528))

    e("v_mov_b32 v%d, 0x3f80" % OUT)
    e("v_mov_b32 v%d, 0x3f80" % (OUT + 1))
    e("ds_write_b64 v8, %s" % vr(OUT, 2))
    ring[0] = 1
    put(1, E8)
    for j in range(2, 32):
        src = E8 if j == 2 else XX
        for m in range(2):
            e("v_pk_mul_f32 %s, %s, %s op_sel_hi:[1,0]" % (vr(TT[m], 2), vr(src[m], 2), vr(E8[m], 2)))
        for m in range(2):
            e("v_pk_fma_f32 %s, %s, %s, %s op_sel:[1,1,0] op_sel_hi:[0,1,1] neg_lo:[1,0,0]" % (vr(XX[m], 2), vr(src[m], 2), vr(E8[m], 2), vr(TT[m], 2)))
        put(j, XX)
    BF, AF, DD = 64, 128, 192
    stamp(12)
    for s in range(16):
        e("ds_read_b128 %s, v11 offset:%d" % (vr(BF + 4 * s, 4), s * 32))
    e("s_lshl_b32 s5, s3, 9")
    e("s_mul_i32 s5, s5, 896")
    e("s_lshl_b32 s6, s%d, 2" % S_ID)
    e("s_add_u32 s5, s5, s6")
    e("v_mul_u32_u24 v12, 896, v1")
    e("s_sub_u32 s6, s5, 896")
    e("v_mov_b32 v13, s6")
    e("buffer_load_dword v%d, v13, s[%d:%d], 0 offen" % (XG, SX, SX + 3))
    for c in range(8):
        e("buffer_load_dword v%d, v12, s[%d:%d], s5 offen" % (XG + 1 + c, SX, SX + 3))
        if c < 7:
            e("s_add_u32 s5, s5, %d" % (64 * 896))
    stamp(13)
    cexp(E1, 1, False)
    cexp(EG, 256, False)

    def mul2(dst, src, mu):
        for m in range(2):
            e("v_pk_mul_f32 %s, %s, %s op_sel_hi:[1,0]" % (vr(TT[m], 2), vr(src[m], 2), vr(mu[m], 2)))
        for m in range(2):
            e("v_pk_fma_f32 %s, %s, %s, %s op_sel:[1,1,0] op_sel_hi:[0,1,1] neg_lo:[1,0,0]" % (vr(dst[m], 2), vr(src[m], 2), vr(mu[m], 2), vr(TT[m], 2)))

    for m in range(2):
        unp(XX[m], PRM + 2, m)
        unp(XX[m] + 1, PRM + 3, m)
        unp(R2[m], PRM + 4, m)
        unp(R2[m] + 1, PRM + 5, m)
    for m in range(2):
        e("v_mul_f32 v%d, v9, v%d" % (XX[m], XX[m]))
        e("v_mul_f32 v%d, v9, v%d" % (XX[m] + 1, XX[m] + 1))
    mul2(WW, R2, XX)
    put(0, WW)
    mul2(XX, WW, E1); put(1, XX)
    mul2(R2, XX, E1); put(2, R2)
    mul2(XX, R2, E1); put(3, XX)
    mul2(R4, XX, E1); put(4, R4)
    mul2(XX, R4, E1); put(5, XX)
    mul2(R6, XX, E1); put(6, R6)
    mul2(XX, R6, E1); put(7, XX)
    for row in (8, 12, 9, 13, 10, 14, 11, 15):
        mul2(WW, WW, EG); put(row, WW)
    mul2(R2, R2, EG); put(16, R2)
    mul2(R4, R4, EG); put(17, R4)
    mul2(R6, R6, EG); put(18, R6)
    mul2(R4, R4, EG); put(20, R4)
    mul2(R4, R4, EG); put(19, R4)
    stamp(14)
    for s in range(16):
        e("ds_read_b128 %s, v11 offset:%d" % (vr(AF + 4 * s, 4), s * 32))
    e("s_mul_i32 s5, s3, 3072")
    e("s_add_u32 s5, s5, %d" % S_PX)
    e("v_add_u32 v12, s5, v%d" % vL16)
    e("s_xor_b32 s6, s3, 1")
    e("s_mul_i32 s6, s6, 3072")
    e("s_add_u32 s6, s6, %d" % S_PX)
    e("v_add_u32 v13, s6, v%d" % vL16)
    for s in range(16):
        e("s_waitcnt lgkmcnt(%d)" % (15 - s))
        mfma(DD, AF + 4 * s, BF + 4 * s, None if s == 0 else DD)
    stamp(15)
    e("s_lshr_b32 s5, s3, 1")
    e("s_mul_i32 s14, s5, %d" % KR1)
    e("v_sub_u32 v14, 223, v1")
    e("v_lshrrev_b32 v15, 2, v14")
    e("v_mul_u32_u24 v15, 80, v15")
    e("v_and_b32 v14, 3, v14")
    e("v_lshl_add_u32 v14, v14, 4, v15")
    e("v_add_u32 v14, s14, v14")
    e("v_mov_b32 v16, 0")
    e("v_mov_b32 v17, 0")
    e("v_mov_b32 v18, 0")
    e("v_mov_b32 v19, 0")
    e("v_add_u32 v15, s14, v%d" % vL16)
    e("s_mov_b32 s74, 0")
    e("s_mov_b32 s75, -1")
    e("s_mov_b32 s76, 0xaaaaaaaa")
    e("s_mov_b32 s77, 0xaaaaaaaa")
    for q in range(3):
        e("ds_write_b128 v12, %s offset:%d" % (vr(DD + 4 * q, 4), q * 1024))
    e("s_waitcnt lgkmcnt(0)")
    e("s_barrier")
    stamp(3)
    for q in range(3):
        e("ds_read_b128 %s, v13 offset:%d" % (vr(64 + 4 * q, 4), q * 1024))
    e("v_and_b32 v20, 1, v1")
    e("v_mul_u32_u24 v21, %d, v20" % (XCS - 2))
    e("v_lshl_add_u32 v21, v1, 1, v21")
    e("s_lshl_b32 s5, s3, 10")
    e("s_add_u32 s5, s5, %d" % (XC0 + 60))
    e("v_add_u32 v21, s5, v21")
    e("s_cmp_lg_u32 s3, 0")
    e("s_cbranch_scc1 L_s_nohead")
    e("v_bfe_u32 v22, v1, 2, 3")
    e("v_mul_u32_u24 v22, %d, v22" % XCS)
    e("v_and_b32 v23, 3, v1")
    e("v_lshl_add_u32 v22, v23, 4, v22")
    e("ds_write_b128 v22, v[16:19] offset:%d" % XC0)
    e("L_s_nohead:")
    e("s_mov_b32 s6, 0x05040100")
    e("s_mov_b32 s7, 0x07060302")
    e("s_waitcnt vmcnt(0)")
    stamp(16)
    for c in range(8):
        pv = 24 + 4 * (c & 1)
        if c == 0:
            e("v_mov_b32 v%d, v%d" % (pv, XG))
        else:
            e("v_mov_b32_dpp v%d, v%d wave_ror:1 row_mask:0xf bank_mask:0xf" % (pv, XG + c))
        e("v_mov_b32_dpp v%d, v%d wave_shr:1 row_mask:0xf bank_mask:0xf" % (pv, XG + 1 + c))
        e("v_perm_b32 v%d, v%d, v%d, s6" % (pv + 1, XG + 1 + c, pv))
        e("v_perm_b32 v%d, v%d, v%d, s7" % (pv + 2, XG + 1 + c, pv))
        for ch in range(2):
            for s2 in range(2):
                e("ds_write_b32 v21, v%d offset:%d" % (pv + 1 + ch, c * 128 + ch * 4 * XCS + s2 * (2 * XCS - 4)))
    e("s_waitcnt lgkmcnt(15)")
    for k in range(6):
        e("v_pk_add_f32 %s, %s, %s" % (vr(DD + 2 * k, 2), vr(DD + 2 * k, 2), vr(64 + 2 * k, 2)))
    D = lambda r: DD + r

    def nxt(dst, r):
        if r < 7:
            e("v_mov_b32_dpp v%d, v%d wave_rol:1 row_mask:0xf bank_mask:0xf" % (dst, D(r + 1)))
        e("v_mov_b32_dpp v%d, v%d wave_shl:1 row_mask:0xf bank_mask:0xf" % (dst, D(r)))

    def pk(d, lo, hi):
        e("v_cvt_pk_bf16_f32 v%d, v%d, v%d" % (d, lo, hi))

    e("s_bitcmp1_b32 s3, 0")
    e("s_cbranch_scc1 L_s_expB")
    e("ds_write_b128 v15, v[16:19] offset:5120")
    e("ds_write_b128 v15, v[16:19] offset:6144")
    e("v_mov_b32 v32, s73")
    e("v_cmp_eq_u32 vcc, 0, v1")
    e("v_cndmask_b32 v32, 0, v32, vcc")
    e("v_add_f32 v%d, v%d, v32" % (D(0), D(0)))
    e("v_and_b32 v33, 31, v1")
    e("v_sub_u32 v33, 255, v33")
    e("v_lshrrev_b32 v34, 2, v33")
    e("v_mul_u32_u24 v34, 80, v34")
    e("v_and_b32 v33, 3, v33")
    e("v_lshl_add_u32 v33, v33, 4, v34")
    e("v_add_u32 v33, s14, v33")
    e("v_add_u32 v34, 8, v33")
    e("v_cndmask_b32 v33, v34, v33, s[74:75]")
    pk(36, D(3), D(2))
    pk(37, D(1), D(0))
    e("ds_write_b64 v33, v[36:37]")
    nxt(40, 4)
    e("v_cndmask_b32 v41, v%d, v40, s[74:75]" % D(10))
    e("v_cndmask_b32 v42, v%d, v%d, s[74:75]" % (D(9), D(8)))
    e("v_cndmask_b32 v43, v%d, v%d, s[74:75]" % (D(8), D(4)))
    pk(44, 40, 41)
    pk(45, 42, 42)
    pk(46, 42, 43)
    pk(47, D(4), D(4))
    e("ds_write_b128 v14, v[44:47]")
    e("s_branch L_s_expJ")
    e("L_s_expB:")
    e("ds_write_b128 v15, v[16:19] offset:6656")
    e("v_subrev_u32 v14, 2560, v14")
    nxt(40, 5)
    e("v_cndmask_b32 v41, v%d, v40, s[76:77]" % D(5))
    e("v_cndmask_b32 v42, v%d, v40, s[74:75]" % D(11))
    e("v_cndmask_b32 v41, v%d, v41, s[74:75]" % D(11))
    e("v_cndmask_b32 v43, v%d, v%d, s[74:75]" % (D(11), D(5)))
    pk(44, 40, 40)
    pk(45, 42, 41)
    pk(46, 43, D(5))
    pk(47, D(5), D(5))
    e("ds_write_b128 v14, v[44:47] offset:1280")
    for r in (6, 7):
        o = 48 if r == 6 else 56
        nxt(o, r)
        e("v_cndmask_b32 v%d, v%d, v%d, s[76:77]" % (o + 1, D(r), o))
        pk(o + 4, o, o)
        pk(o + 5, o, o + 1)
        pk(o + 6, D(r), D(r))
        pk(o + 7, D(r), D(r))
        if r == 6:
            e("ds_write_b128 v14, %s" % vr(o + 4, 4))
        else:
            e("v_subrev_u32 v14, 1280, v14")
            e("s_mov_b32 exec_hi, 0")
            e("ds_write_b128 v14, %s" % vr(o + 4, 4))
            e("s_mov_b32 exec_hi, -1")
    e("L_s_expJ:")
    vX, vK = 8, 9
    e("v_and_b32 v10, 3, v1")
    e("v_mul_u32_u24 v%d, %d, v10" % (vX, XCS))
    e("v_bfe_u32 v10, v1, 2, 3")
    e("v_lshl_add_u32 v%d, v10, 3, v%d" % (vX, vX))
    e("v_lshrrev_b32 v10, 5, v1")
    e("v_lshl_add_u32 v%d, v10, 4, v%d" % (vX, vX))
    e("v_and_b32 v11, 31, v1")
    e("v_sub_u32 v11, 31, v11")
    e("v_mul_u32_u24 v%d, 80, v11" % vK)
    e("v_lshl_add_u32 v%d, v10, 4, v%d" % (vK, vK))
    e("s_lshr_b32 s5, s3, 1")
    e("s_mul_i32 s5, s5, %d" % (4 * XCS))
    e("s_add_u32 s5, s5, %d" % XC0)
    e("s_and_b32 s6, s3, 1")
    e("s_mul_i32 s7, s6, %d" % (48 * 32))
    e("s_add_u32 s5, s5, s7")
    e("v_add_u32 v%d, s5, v%d" % (vX, vX))
    e("s_mul_i32 s7, s6, %d" % (24 * 80))
    e("s_add_u32 s7, s7, s14")
    e("v_add_u32 v%d, s7, v%d" % (vK, vK))
    e("s_cmp_eq_u32 s6, 0")
    e("s_cselect_b32 s13, 6, 2")
    Y0, Y1, RG = 64, 80, 96
    for k in range(32):
        e("v_mov_b32 v%d, 0" % (Y0 + k))
    e("s_waitcnt lgkmcnt(0)")
    e("s_barrier")
    stamp(4)
    e("s_setprio 2")

    def rdx(st, sg):
        e("ds_read2_b64 %s, v%d offset0:%d offset1:%d" % (vr(RG + 12 * st, 4), vX, 4 * sg, 4 * sg + 1))

    def rdk(st, sg, tile):
        e("ds_read_b128 %s, v%d offset:%d" % (vr(RG + 12 * st + 4 + 4 * tile, 4), vK, 80 * (sg >> 1) + 32 * (sg & 1) + (0 if tile else 2560)))

    NST = 4
    for st in range(NST - 1):
        rdx(st, st); rdk(st, st, 0); rdk(st, st, 1)
    e("L_conv2:")
    for sg in range(8):
        st = sg % NST
        sn = (sg + NST - 1) % NST
        rdx(sn, sg + NST - 1); rdk(sn, sg + NST - 1, 0); rdk(sn, sg + NST - 1, 1)
        e("s_waitcnt lgkmcnt(%d)" % (3 * (NST - 1)))
        mfma(Y0, RG + 12 * st + 4, RG + 12 * st, Y0)
        if sg == 7:
            e("v_add_u32 v%d, 256, v%d" % (vX, vX))
            e("v_add_u32 v%d, 320, v%d" % (vK, vK))
            e("s_sub_u32 s13, s13, 1")
            e("s_cmp_lg_u32 s13, 0")
        mfma(Y1, RG + 12 * st + 8, RG + 12 * st, Y1)
    e("s_cbranch_scc1 L_conv2")
    e("s_bitcmp1_b32 s3, 0")
    e("s_cbranch_scc0 L_conv_done")
    e("s_mov_b32 s13, 8")
    e("s_waitcnt lgkmcnt(0)")
    e("L_conv1:")
    for sg in range(8):
        st = sg % NST
        sn = (sg + NST - 1) % NST
        rdx(sn, sg + NST - 1); rdk(sn, sg + NST - 1, 1)
        e("s_waitcnt lgkmcnt(%d)" % (2 * (NST - 1)))
        if sg == 7:
            e("v_add_u32 v%d, 256, v%d" % (vX, vX))
            e("v_add_u32 v%d, 320, v%d" % (vK, vK))
            e("s_sub_u32 s13, s13, 1")
            e("s_cmp_lg_u32 s13, 0")
        mfma(Y1, RG + 12 * st + 8, RG + 12 * st, Y1)
    e("s_cbranch_scc1 L_conv1")
    e("L_conv_done:")
    e("s_setprio 0")
    stamp(5)
    e("s_lshl_b32 s5, s3, 13")
    e("s_add_u32 s5, s5, %d" % S_CP)
    e("v_add_u32 v10, s5, v%d" % vL16)
    e("s_and_b32 s5, s3, 1")
    e("s_lshr_b32 s6, s3, 1")
    e("s_lshl_b32 s7, s5, 12")
    e("s_lshl_b32 s12, s6, 11")
    e("s_add_u32 s7, s7, s12")
    e("s_add_u32 s7, s7, %d" % S_CP)
    e("v_add_u32 v11, s7, v%d" % vL16)
    e("s_lshl_b32 s5, s5, 1")
    e("s_add_u32 s5, s5, s6")
    e("s_mul_i32 s5, s5, %d" % (16 * 224))
    e("s_add_u32 s5, s5, s%d" % S_ID)
    e("s_lshl_b32 s5, s5, 7")
    e("s_add_u32 s12, s5, 0x%x" % B2)
    e("v_lshrrev_b32 v12, 5, v1")
    e("v_mul_u32_u24 v12, %d, v12" % (4 * 224 * 128))
    e("v_and_b32 v13, 31, v1")
    e("v_lshl_add_u32 v12, v13, 2, v12")
    e("s_waitcnt lgkmcnt(0)")
    for k in range(8):
        e("ds_write_b128 v10, %s offset:%d" % (vr(Y0 + 4 * k, 4), k * 1024))
    e("s_waitcnt lgkmcnt(0)")
    e("s_barrier")
    for w in range(4):
        for q in range(2):
            e("ds_read_b128 %s, v11 offset:%d" % (vr(96 + 8 * w + 4 * q, 4), w * 8192 + q * 1024))
    e("s_lshl_b32 s7, s%d, 2" % S_ID)
    e("s_add_u32 s7, s7, s3")
    e("s_lshl_b32 s7, s7, 7")
    e("s_add_u32 s7, s7, 0x%x" % FLAG_B)
    e("s_waitcnt lgkmcnt(0)")
    e("s_barrier")
    for k in range(4):
        e("v_pk_add_f32 %s, %s, %s" % (vr(96 + 2 * k, 2), vr(96 + 2 * k, 2), vr(104 + 2 * k, 2)))
        e("v_pk_add_f32 %s, %s, %s" % (vr(112 + 2 * k, 2), vr(112 + 2 * k, 2), vr(120 + 2 * k, 2)))
    for k in range(8):
        e("v_cvt_pk_bf16_f32 v%d, v%d, v%d" % (128 + k, 96 + k, 112 + k))
    for k in range(8):
        e("buffer_store_dword v%d, v12, s[%d:%d], s12 offen sc1" % (128 + k, SWS, SWS + 3))
        if k < 7:
            e("s_add_u32 s12, s12, %d" % ((5 if k == 3 else 1) * 28672))
    e("s_waitcnt vmcnt(0)")
    flag_store(7, 13)
    stamp(6)
    e("L_s_cons:")
    S_TT, S_JG = 11, 12
    WO = 128
    e("s_lshr_b32 s5, s%d, 2" % S_J)
    e("s_add_u32 s%d, s10, s5" % S_TT)
    e("s_and_b32 s%d, s%d, 3" % (S_JG, S_J))
    srd(SWO, P_WO, 448 * 896)
    srd(SOUT, P_OUT, 2048 * 896)
    e("v_lshrrev_b32 v13, 2, v1")
    e("v_mul_u32_u24 v8, 896, v13")
    e("v_and_b32 v13, 3, v1")
    e("v_lshl_add_u32 v8, v13, 4, v8")
    tr_addr(9, 4, 64, 13, 14)
    e("s_mul_i32 s13, s3, 20480")
    e("v_add_u32 v9, s13, v9")
    e("s_mul_i32 s14, s%d, 224" % S_JG)
    e("s_mul_i32 s5, s3, 56")
    e("s_add_u32 s14, s14, s5")
    for ck in range(2):
        e("s_mov_b32 m0, s13")
        e("s_add_u32 s5, s14, %d" % (ck * 224 * 896))
        for m in range(15):
            e("buffer_load_dwordx4 v8, s[%d:%d], s5 offen lds" % (SWO, SWO + 3))
            if m < 14:
                e("s_add_u32 m0, m0, 1024")
                e("s_add_u32 s5, s5, 14336")
        e("s_waitcnt vmcnt(0)")
        for hd in range(8):
            for kp in range(2):
                for q in range(2):
                    e("ds_read_b64_tr_b16 %s, v9 offset:%d" % (vr(WO + 64 * ck + 8 * hd + 4 * kp + 2 * q, 2), (28 * hd + 16 * kp + 8 * q) * 64))
        e("s_waitcnt lgkmcnt(0)")
    e("s_barrier")
    stamp(7)
    e("s_cmp_lg_u32 s3, 0")
    e("s_cbranch_scc1 L_s_noalive")
    e("s_lshl_b32 s5, s2, 7")
    e("s_add_u32 s5, s5, 0x%x" % ALIVE)
    flag_store(5, 13)
    e("s_cmp_lg_u32 s2, 511")
    e("s_cbranch_scc1 L_s_noalive")
    e("v_lshlrev_b32 v13, 7, v1")
    e("v_add_u32 v13, 0x%x, v13" % ALIVE)
    poll("alive", 13, 16, sleep=8, n=8, step=8192)
    e("s_mov_b32 s5, 0")
    flag_store(5, 13)
    e("L_s_noalive:")
    e("s_mul_i32 s13, s%d, 56" % S_JG)
    e("s_mul_i32 s5, s3, 14")
    e("s_add_u32 s13, s13, s5")
    e("s_lshr_b32 s5, s%d, 5" % S_TT)
    e("s_bfe_u32 s6, s%d, 0x10004" % S_TT)
    e("s_lshl_b32 s6, s6, 1")
    e("s_add_u32 s5, s5, s6")
    e("s_lshl_b32 s6, s13, 2")
    e("s_add_u32 s5, s5, s6")
    e("s_lshl_b32 s5, s5, 7")
    e("s_add_u32 s5, s5, 0x%x" % FLAG_B)
    e("v_min_u32 v13, 13, v1")
    e("v_lshlrev_b32 v13, 9, v13")
    e("v_add_u32 v13, s5, v13")
    poll("b", 13, 14, sleep=4)
    BB = 24
    e("s_mul_i32 s5, s%d, 224" % S_TT)
    e("s_add_u32 s5, s5, s13")
    e("s_lshl_b32 s5, s5, 7")
    e("s_add_u32 s5, s5, 0x%x" % B2)
    e("v_lshrrev_b32 v10, 5, v1")
    e("v_and_b32 v11, 31, v1")
    e("v_lshlrev_b32 v13, 8, v10")
    e("v_lshl_add_u32 v13, v11, 2, v13")
    for q in range(4):
        if q == 3:
            e("s_mov_b32 exec_hi, 0")
        for p in range(2):
            e("buffer_load_dword v%d, v13, s[%d:%d], s5 offen offset:%d sc1" % (BB + 2 * q + p, SWS, SWS + 3, (4 * q + p) * 128))
    e("s_mov_b32 exec_hi, -1")
    e("s_lshl_b32 s5, s%d, 4" % S_TT)
    e("s_lshl_b32 s6, s3, 2")
    e("s_add_u32 s5, s5, s6")
    e("s_lshl_b32 s14, s5, 11")
    e("s_add_u32 s14, s14, 0x%x" % OW)
    e("s_add_u32 s15, s14, 4096")
    e("s_lshl_b32 s5, s5, 7")
    e("s_add_u32 s5, s5, 0x%x" % FLAG_O)
    e("v_and_b32 v13, 3, v1")
    e("v_lshlrev_b32 v13, 7, v13")
    e("v_add_u32 v13, s5, v13")
    e("s_lshl_b32 s5, s3, 13")
    e("v_add_u32 v12, s5, v%d" % vL16)
    e("v_lshlrev_b32 v14, 2, v11")
    e("s_lshl_b32 s72, s%d, 7" % S_TT)
    e("s_add_u32 s72, s72, 0x%x" % G1)
    e("v_mul_u32_u24 v15, 240, v11")
    e("v_lshl_add_u32 v15, v10, 3, v15")
    e("s_mul_i32 s5, s3, 56")
    e("s_add_u32 s5, s5, %d" % S_OT)
    e("v_add_u32 v15, s5, v15")
    for k in range(2):
        e("v_add_u32 v16, %d, v1" % (64 * k))
        e("v_mul_u32_u24 v17, 4682, v16")
        e("v_lshrrev_b32 v17, 16, v17")
        e("v_mul_u32_u24 v18, 14, v17")
        e("v_sub_u32 v16, v16, v18")
        e("v_mul_u32_u24 v18, 240, v17")
        e("v_lshl_add_u32 v%d, v16, 4, v18" % (20 + 2 * k))
        e("v_mul_u32_u24 v18, 896, v17")
        e("v_lshl_add_u32 v%d, v16, 4, v18" % (21 + 2 * k))
    e("s_mul_i32 s5, s3, %d" % (8 * 240))
    e("s_add_u32 s5, s5, %d" % S_OT)
    e("v_add_u32 v20, s5, v20")
    e("v_add_u32 v22, s5, v22")
    e("s_lshl_b32 s5, s%d, 2" % S_TT)
    e("s_add_u32 s5, s5, s3")
    e("s_mul_i32 s73, s5, %d" % (8 * 896))
    e("s_mul_i32 s5, s%d, 224" % S_JG)
    e("s_add_u32 s73, s73, s5")
    stamp(8)
    poll("o", 13, 16, sleep=1)
    stamp(9)
    e("s_setprio 3")
    OL = 32
    for k in range(8):
        e("buffer_load_dwordx4 %s, v%d, s[%d:%d], s%d offen offset:%d sc1" % (vr(OL + 4 * k, 4), vL16, SWS, SWS + 3, 14 + (k >> 2), (k & 3) * 1024))
    e("s_cmp_lg_u32 s3, 0")
    e("s_cbranch_scc1 L_s_nog")
    e("buffer_load_dword v16, v14, s[%d:%d], s72 offen sc1" % (SWS, SWS + 3))
    e("s_waitcnt vmcnt(0)")
    e("ds_write_b32 v14, v16 offset:%d" % S_G1)
    e("L_s_nog:")
    for k in range(8):
        e("s_waitcnt vmcnt(%d)" % (7 - k))
        e("ds_write_b128 v12, %s offset:%d" % (vr(OL + 4 * k, 4), k * 1024))
    e("s_waitcnt lgkmcnt(0)")
    e("s_barrier")
    DO, OF = 64, 80
    e("ds_read_b32 v16, v14 offset:%d" % S_G1)
    for k in range(7):
        e("ds_read_b128 %s, v%d offset:%d" % (vr(OF + 4 * k, 4), vL16, k * 1024))
    for k in range(32):
        if k + 7 < 32:
            e("ds_read_b128 %s, v%d offset:%d" % (vr(OF + 4 * ((k + 7) & 7), 4), vL16, (k + 7) * 1024))
        e("s_waitcnt lgkmcnt(%d)" % min(7, 31 - k))
        mfma(DO, WO + 4 * k, OF + 4 * (k & 7), None if k == 0 else DO)
        if k < 8:
            e("v_lshlrev_b32 v%d, 16, v%d" % (OL + 2 * k, BB + k))
            e("v_and_b32 v%d, 0xffff0000, v%d" % (OL + 2 * k + 1, BB + k))
    for k in range(8):
        e("v_pk_fma_f32 %s, %s, v[16:17], %s op_sel_hi:[1,0,1]" % (vr(DO + 2 * k, 2), vr(OL + 2 * k, 2), vr(DO + 2 * k, 2)))
    for k in range(8):
        e("v_cvt_pk_bf16_f32 v%d, v%d, v%d" % (OL + k, DO + 2 * k, DO + 2 * k + 1))
    for q in range(4):
        if q == 3:
            e("s_mov_b32 exec_hi, 0")
        e("ds_write_b64 v15, %s offset:%d" % (vr(OL + 2 * q, 2), 16 * q))
    e("s_mov_b32 exec_hi, -1")
    e("s_waitcnt lgkmcnt(0)")
    e("s_barrier")
    e("ds_read_b128 v[40:43], v20")
    e("ds_read_b128 v[44:47], v22")
    e("s_waitcnt lgkmcnt(1)")
    e("buffer_store_dwordx4 v[40:43], v21, s[%d:%d], s73 offen" % (SOUT, SOUT + 3))
    e("s_mov_b32 exec_hi, 0xffff")
    e("s_waitcnt lgkmcnt(0)")
    e("buffer_store_dwordx4 v[44:47], v23, s[%d:%d], s73 offen" % (SOUT, SOUT + 3))
    e("s_mov_b32 exec_hi, -1")
    if OPT["timing"]:
        e("s_waitcnt vmcnt(0)")
    stamp(10)
    dbg_stamp(504, 512, 8, False)
    stamp_flush()
    e("L_end:")
    e("s_endpgm")


prologue()
role_a()
role_s()

lines, nops = asmcheck.fix_hazards(L, verbose=bool(OPT.get("v", 0)))
errs = asmcheck.check_waitcnt(lines)
for er in errs:
    print("WAITCNT?", er, file=sys.stderr)
print("instructions: %d, wait states inserted: %d" % (len(lines), nops), file=sys.stderr)

ref = open("cdna_kernels/%s.s.ref" % NAME).read()
head = ref[: ref.index("; Override launch")]
text = head + """; Override launch geometry by editing the next line (default: block=256,
; grid=ceil(out_elems/256), lds=0). Harness parses it; keep it on one line.
; @launch grid=(512,1,1) block=(256,1,1) lds=81920
.amdgcn_target "amdgcn-amd-amdhsa--gfx950"
.text
.globl %s_kernel
.p2align 8
.type %s_kernel,@function
%s_kernel:
""" % (NAME, NAME, NAME) + "\n".join(lines) + """
.section .rodata,"a"
.p2align 6
.amdhsa_kernel %s_kernel
  .amdhsa_next_free_vgpr 256
  .amdhsa_next_free_sgpr 102
  .amdhsa_accum_offset 256
  .amdhsa_group_segment_fixed_size 0
  .amdhsa_kernarg_size 144
  .amdhsa_user_sgpr_count 2
  .amdhsa_user_sgpr_kernarg_segment_ptr 1
  .amdhsa_system_sgpr_workgroup_id_x 1
.end_amdhsa_kernel
""" % NAME
open(sys.argv[1], "w").write(text)
```

```python
import sys, struct, math, os
sys.path.insert(0, os.path.dirname(os.path.abspath(__file__)))
import asmcheck

NAME = "gated_mix__grouped_kv_mqa__ssm_conv_s4__prompt"
OPT = dict(timing=0, force_fb=0, spin=400000, dbgts=0, nst=2, cprio=2, aprio=1, kvsleep=0, splitA=6, kprio=0, a1prio=1)
for a in sys.argv[2:]:
    k, v = a.split("=")
    OPT[k] = int(v)

FLAG_KV = 0x1000
FLAG_O = 0x10000
FLAG_B = 0x30000
ALIVE = 0x50000
G1 = 0x60000
FLAG_XT = 0x70000
XT = 0x600000
KV = 0x100000
OW = 0x200000
B2 = 0x400000
TSB = 0x800000
WS_BYTES = 0x1000000
NONCE_ADD = 0x9E3779B9

L = []


def e(s):
    for x in s.split("\n"):
        x = x.strip()
        if x:
            L.append(x if x.endswith(":") else "    " + x)


def f32(x):
    return struct.unpack("<I", struct.pack("<f", x))[0]


def vr(a, n=1):
    return "v%d" % a if n == 1 else "v[%d:%d]" % (a, a + n - 1)


def sr(a, n=1):
    return "s%d" % a if n == 1 else "s[%d:%d]" % (a, a + n - 1)


def srd(d, base, nbytes, add=None):
    if add is None:
        e("s_mov_b32 s%d, s%d" % (d, base))
        e("s_mov_b32 s%d, s%d" % (d + 1, base + 1))
    else:
        e("s_add_u32 s%d, s%d, %s" % (d, base, add))
        e("s_addc_u32 s%d, s%d, 0" % (d + 1, base + 1))
    e("s_mov_b32 s%d, 0x%x" % (d + 2, nbytes))
    e("s_mov_b32 s%d, 0x20000" % (d + 3))


def mfma(d, a, b, c):
    e("v_mfma_f32_32x32x16_bf16 %s, %s, %s, %s" % (vr(d, 16), vr(a, 4), vr(b, 4), "0" if c is None else vr(c, 16)))


P_X, P_WQ, P_WK, P_WV, P_WO = 16, 18, 20, 22, 24
P_ARE, P_AIM, P_BRE, P_BIM, P_CRE, P_CIM, P_LDT, P_DSK, P_GW, P_OUT, P_WS = 28, 30, 32, 34, 36, 38, 40, 42, 44, 46, 48
SX, SWS = 52, 56
S_WAVE, S_NONCE = 3, 4
V_LANE = 1
LOG2E = 1.4426950408889634

stamp_n = [0]


def stamp(idx):
    if OPT["timing"]:
        e("s_memrealtime s[96:97]")
        e("s_waitcnt lgkmcnt(0)")
        e("v_writelane_b32 v0, s96, %d" % idx)


def cstamp(idx):
    if OPT["timing"]:
        e("s_memtime s[96:97]")
        e("s_waitcnt lgkmcnt(0)")
        e("v_writelane_b32 v0, s96, %d" % idx)


def dbg_stamp(lo, hi, slot0, start):
    if not OPT["dbgts"]:
        return
    tag = "%d" % slot0
    e("s_sub_u32 s96, s2, %d" % lo)
    e("s_cmp_ge_u32 s96, %d" % (hi - lo))
    e("s_cbranch_scc1 L_dbg%s" % tag)
    e("s_cmp_lg_u32 s3, 0")
    e("s_cbranch_scc1 L_dbg%s" % tag)
    if not start:
        e("s_waitcnt vmcnt(0)")
        e("s_memrealtime s[94:95]")
        e("s_waitcnt lgkmcnt(0)")
    e("s_mov_b32 s72, s50")
    e("s_mov_b32 s73, s51")
    e("s_mov_b32 s74, 256")
    e("s_mov_b32 s75, 0x20000")
    e("s_add_u32 s96, s96, %d" % slot0)
    e("s_lshl_b32 s96, s96, 2")
    e("v_mov_b32 v2, s94")
    e("s_mov_b32 exec_lo, 1")
    e("s_mov_b32 exec_hi, 0")
    e("buffer_store_dword v2, off, s[72:75], s96")
    e("s_mov_b64 exec, -1")
    e("L_dbg%s:" % tag)


def stamp_flush():
    if OPT["timing"]:
        e("s_lshl_b32 s96, s2, 2")
        e("s_add_u32 s96, s96, s3")
        e("s_lshl_b32 s96, s96, 8")
        e("s_add_u32 s96, s96, 0x%x" % TSB)
        e("v_lshlrev_b32 v3, 2, v%d" % V_LANE)
        e("buffer_store_dword v0, v3, s[%d:%d], s96 offen" % (SWS, SWS + 3))


def poll(tag, vaddr, vtmp, sleep=0, n=1, step=0):
    e("s_mov_b32 s5, 0")
    e("L_poll_%s:" % tag)
    for k in range(n):
        if k == 0:
            e("buffer_load_dword v%d, v%d, s[%d:%d], 0 offen sc1" % (vtmp, vaddr, SWS, SWS + 3))
        else:
            e("s_mov_b32 s6, 0x%x" % (k * step))
            e("buffer_load_dword v%d, v%d, s[%d:%d], s6 offen sc1" % (vtmp + k, vaddr, SWS, SWS + 3))
    e("s_waitcnt vmcnt(0)")
    e("v_cmp_ne_u32 vcc, s%d, v%d" % (S_NONCE, vtmp))
    for k in range(1, n):
        e("v_cmp_ne_u32 s[6:7], s%d, v%d" % (S_NONCE, vtmp + k))
        e("s_or_b64 vcc, vcc, s[6:7]")
    e("s_cmp_eq_u64 vcc, 0")
    e("s_cbranch_scc1 L_pollok_%s" % tag)
    if sleep:
        e("s_sleep %d" % sleep)
    e("s_add_u32 s5, s5, 1")
    e("s_cmp_lt_u32 s5, %d" % OPT["spin"])
    e("s_cbranch_scc1 L_poll_%s" % tag)
    e("L_pollok_%s:" % tag)


def flag_store(soff_reg, vtmp):
    e("v_mov_b32 v%d, s%d" % (vtmp, S_NONCE))
    e("s_mov_b32 exec_lo, 1")
    e("s_mov_b32 exec_hi, 0")
    e("buffer_store_dword v%d, off, s[%d:%d], s%d sc1" % (vtmp, SWS, SWS + 3, soff_reg))
    e("s_mov_b64 exec, -1")


def x_swizzle_addrs(vg, vr0, vr1, t0, t1):
    e("v_lshrrev_b32 v%d, 2, v1" % t0)
    e("v_mul_u32_u24 v%d, 896, v%d" % (vg, t0))
    e("v_lshrrev_b32 v%d, 4, v1" % t0)
    e("v_xor_b32 v%d, v%d, v1" % (t0, t0))
    e("v_and_b32 v%d, 3, v%d" % (t0, t0))
    e("v_lshl_add_u32 v%d, v%d, 4, v%d" % (vg, t0, vg))
    e("v_and_b32 v%d, 31, v1" % t0)
    e("v_lshlrev_b32 v%d, 6, v%d" % (vr0, t0))
    e("v_lshrrev_b32 v%d, 2, v1" % t0)
    e("v_lshrrev_b32 v%d, 5, v1" % t1)
    e("v_xor_b32 v%d, v%d, v%d" % (t0, t0, t1))
    e("v_and_b32 v%d, 3, v%d" % (t0, t0))
    e("v_lshl_add_u32 v%d, v%d, 4, v%d" % (vr0, t0, vr0))
    e("v_xor_b32 v%d, 32, v%d" % (vr1, vr0))


def tr_addr(vd, hmul, stride, t0, t1):
    e("v_lshrrev_b32 v%d, 5, v1" % t0)
    e("v_mul_u32_u24 v%d, %d, v%d" % (t0, hmul, t0))
    e("v_bfe_u32 v%d, v1, 2, 2" % t1)
    e("v_add_u32 v%d, v%d, v%d" % (t0, t0, t1))
    e("v_mul_u32_u24 v%d, %d, v%d" % (vd, stride, t0))
    e("v_and_b32 v%d, 16, v1" % t0)
    e("v_lshl_add_u32 v%d, v%d, 1, v%d" % (vd, t0, vd))
    e("v_and_b32 v%d, 3, v1" % t0)
    e("v_lshl_add_u32 v%d, v%d, 3, v%d" % (vd, t0, vd))


def prologue():
    e("s_cmp_ge_u32 s2, 512")
    e("s_cbranch_scc1 L_end")
    if OPT["timing"]:
        e("s_memrealtime s[96:97]")
    if OPT["dbgts"]:
        e("s_memrealtime s[94:95]")
        e("s_load_dwordx2 s[50:51], s[0:1], 128")
    e("s_load_dwordx16 s[16:31], s[0:1], 0")
    e("s_load_dwordx16 s[32:47], s[0:1], 64")
    e("s_load_dwordx2 s[48:49], s[0:1], 136")
    e("v_and_b32 v1, 63, v0")
    e("v_lshrrev_b32 v2, 6, v0")
    e("v_readfirstlane_b32 s3, v2")
    e("s_cmp_lt_u32 s2, 256")
    e("s_cbranch_scc1 L_roleS")


A_IMG, A_XS, A_QX, A_INB = 0, 30720, 73728, 0
QF, OA, SS, PP, KVR = 64, 96, 160, 16, 192
V_G = 15


def role_a():
    S_HEAD, S_TT, S_X0, S_X1 = 8, 9, 10, 11
    SWQ, SG, SKV = 60, 64, 68
    XL = 128
    WF, DQ = 16, 240
    vXg, vXr0, vXr1, vXw, vWg, vWr, vGa, vGl = 2, 3, 4, 5, 6, 7, 8, 9
    vE, vG0, vG1 = 10, 11, 12
    e("s_and_b32 s5, s2, 7")
    e("s_bfe_u32 s6, s2, 0x50003")
    e("s_lshr_b32 s7, s6, 4")
    e("s_lshl_b32 s5, s5, 1")
    e("s_add_u32 s5, s5, s7")
    e("s_and_b32 s%d, s6, 15" % S_HEAD)
    e("s_lshl_b32 s%d, s5, 2" % S_TT)
    e("s_add_u32 s%d, s%d, s3" % (S_TT, S_TT))
    e("s_mul_i32 s%d, s%d, 28672" % (S_X0, S_TT))
    e("s_add_u32 s%d, s%d, 14336" % (S_X1, S_X0))
    e("s_setprio %d" % OPT["a1prio"])
    x_swizzle_addrs(vXg, vXr0, vXr1, 13, 14)
    e("v_lshrrev_b32 v13, 2, v1")
    e("v_mul_u32_u24 v%d, 896, v13" % vWg)
    e("v_and_b32 v13, 3, v1")
    e("v_lshl_add_u32 v%d, v13, 4, v%d" % (vWg, vWg))
    e("v_lshlrev_b32 v%d, 1, v1" % vGa)
    e("s_mul_i32 s12, s3, %d" % (112 * 896))
    e("s_mul_i32 s13, s%d, 56" % S_HEAD)
    e("s_add_u32 s12, s12, s13")
    e("s_mul_i32 s13, s3, %d" % (112 * 64))
    e("s_mul_i32 s14, s3, 224")
    e("s_waitcnt lgkmcnt(0)")
    if OPT["timing"]:
        e("v_writelane_b32 v0, s96, 0")
    stamp(20)
    srd(SWS, P_WS, WS_BYTES)
    e("buffer_load_dword v%d, off, s[%d:%d], 0 sc1" % (vE, SWS, SWS + 3))
    srd(SWQ, P_WQ, 448 * 896)
    e("s_mov_b32 m0, s13")
    srd(SX, P_X, 2048 * 896)
    for m in range(7):
        e("buffer_load_dwordx4 v%d, s[%d:%d], s12 offen lds" % (vWg, SWQ, SWQ + 3))
        if m < 6:
            e("s_add_u32 m0, m0, 1024")
            e("s_add_u32 s12, s12, 14336")
    srd(SG, P_GW, 896)
    e("buffer_load_ushort v%d, v%d, s[%d:%d], s14 offen" % (vG0, vGa, SG, SG + 3))
    e("buffer_load_ushort v%d, v%d, s[%d:%d], s14 offen offset:128" % (vG1, vGa, SG, SG + 3))
    for p in range(14):
        for rh in range(2):
            e("buffer_load_dwordx4 %s, v%d, s[%d:%d], s%d offen offset:%d" % (vr(XL + 8 * p + 4 * rh, 4), vXg, SX, SX + 3, S_X1 if rh else S_X0, 64 * p))
    stamp(6)
    e("s_lshl_b32 s15, s3, 11")
    e("s_add_u32 s15, s15, %d" % A_XS)
    e("v_add_u32 v%d, s15, v%d" % (vXr0, vXr0))
    e("v_add_u32 v%d, s15, v%d" % (vXr1, vXr1))
    e("v_lshlrev_b32 v13, 4, v1")
    e("v_add_u32 v%d, s15, v13" % vXw)
    tr_addr(vWr, 8, 64, 13, 14)
    e("v_lshlrev_b32 v13, 6, v1")
    e("v_add_u32 v%d, s13, v13" % vGl)
    e("s_add_u32 s12, s3, %d" % (KV >> 16))
    e("s_lshl_b32 s12, s12, 16")
    srd(SKV, P_WS, 65536, "s12")
    e("s_waitcnt vmcnt(28)")
    e("ds_write_b16 v%d, v%d offset:56" % (vGl, vG0))
    e("ds_write_b16 v%d, v%d offset:%d" % (vGl, vG1, 56 + 4096))
    e("v_readfirstlane_b32 s4, v%d" % vE)
    e("s_add_u32 s4, s4, 0x%x" % NONCE_ADD)
    e("s_waitcnt lgkmcnt(0)")
    e("s_barrier")
    stamp(1)

    for s_ in range(28):
        for q in range(2):
            e("ds_read_b64_tr_b16 %s, v%d offset:%d" % (vr(WF + 4 * s_ + 2 * q, 2), vWr, s_ * 1024 + q * 256))
    LAG = 3
    for p in range(14 + LAG):
        if p < 14:
            e("s_waitcnt vmcnt(%d)" % (26 - 2 * p))
            e("ds_write_b128 v%d, %s" % (vXw, vr(XL + 8 * p, 4)))
            e("ds_write_b128 v%d, %s offset:1024" % (vXw, vr(XL + 8 * p + 4, 4)))
            e("ds_read_b128 %s, v%d" % (vr(XL + 8 * p, 4), vXr0))
            e("ds_read_b128 %s, v%d" % (vr(XL + 8 * p + 4, 4), vXr1))
        c = p - LAG
        if c >= 0:
            e("s_waitcnt lgkmcnt(%d)" % (4 * (min(p, 13) - c)))
            mfma(DQ, WF + 8 * c, XL + 8 * c, None if c == 0 else DQ)
            mfma(DQ, WF + 8 * c + 4, XL + 8 * c + 4, DQ)
    stamp(7)
    e("s_cmp_lg_u32 s3, 0")
    e("s_cbranch_scc1 L_a_noalive")
    e("s_lshl_b32 s5, s2, 7")
    e("s_add_u32 s5, s5, 0x%x" % ALIVE)
    flag_store(5, 13)
    e("L_a_noalive:")
    e("s_mov_b32 s12, 0x%x" % f32(28 ** -0.5 * LOG2E))
    e("s_mov_b32 s14, 0")
    e("s_mov_b32 s15, -1")
    e("v_lshlrev_b32 v2, 4, v1")
    e("s_lshl_b32 s5, s3, 11")
    e("s_add_u32 s5, s5, %d" % A_QX)
    e("v_add_u32 v3, s5, v2")
    for i in range(1, 4):
        e("s_add_u32 s5, s3, %d" % i)
        e("s_and_b32 s5, s5, 3")
        e("s_lshl_b32 s6, s5, 11")
        e("s_add_u32 s6, s6, %d" % A_QX)
        e("v_add_u32 v%d, s6, v2" % (3 + i))
        e("s_mul_i32 s6, s5, 12288")
        e("s_add_u32 s6, s6, %d" % (A_INB + (i - 1) * 4096))
        e("v_add_u32 v%d, s6, v2" % (7 + i))
    e("s_mul_i32 s6, s3, 12288")
    e("v_add_u32 v11, s6, v2")
    e("v_mul_f32 v%d, 0x%x, v%d" % (V_G, f32(-LOG2E), DQ + 12))
    for k in range(8):
        e("v_pk_mul_f32 %s, %s, s[12:13] op_sel_hi:[1,0]" % (vr(DQ + 2 * k, 2), vr(DQ + 2 * k, 2)))
    e("v_exp_f32 v%d, v%d" % (V_G, V_G))
    for k in range(8):
        e("v_cvt_pk_bf16_f32 v%d, v%d, v%d" % (QF + k, DQ + 2 * k, DQ + 2 * k + 1))
    e("v_cndmask_b32 v%d, v%d, 0, s[14:15]" % (QF + 6, QF + 6))
    e("v_cndmask_b32 v%d, v%d, 0, s[14:15]" % (QF + 7, QF + 7))
    e("ds_write_b128 v3, %s" % vr(QF, 4))
    e("ds_write_b128 v3, %s offset:1024" % vr(QF + 4, 4))
    for k in range(4):
        e("v_pk_mov_b32 %s, 0, 0" % vr(PP + 8 + 2 * k, 2))
    for k in range(4):
        e("v_pk_mov_b32 %s, 0, 0" % vr(KVR + 56 + 2 * k, 2))
    e("v_add_f32 v%d, 1.0, v%d" % (V_G, V_G))
    e("v_rcp_f32 v%d, v%d" % (V_G, V_G))
    e("s_lshl_b32 s5, s3, 13")
    e("s_add_u32 s5, s5, 0x%x" % FLAG_KV)
    e("v_lshlrev_b32 v12, 7, v1")
    e("v_add_u32 v12, s5, v12")
    e("s_waitcnt lgkmcnt(0)")
    e("s_barrier")
    for i in range(1, 4):
        e("ds_read_b128 %s, v%d" % (vr(QF + 8 * i, 4), 3 + i))
        e("ds_read_b128 %s, v%d offset:1024" % (vr(QF + 8 * i + 4, 4), 3 + i))
    for i in range(4):
        mfma(OA + 16 * i, PP + 8, PP + 8, None)
    stamp(2)
    poll("kv", 12, 13, sleep=OPT["kvsleep"])
    stamp(3)

    def Kf(b, k):
        return KVR + 16 * b + 4 * k

    def Vf(b, k):
        return KVR + 16 * b + 8 + 4 * k

    def ld(reg, soff, off):
        e("buffer_load_dwordx4 %s, v2, s[%d:%d], %s offen offset:%d sc1" % (vr(reg, 4), SKV, SKV + 3, soff, off))

    S_OFF = 13
    for b in range(4):
        if b == 0:
            so = "0"
        else:
            e("s_mov_b32 s%d, %d" % (S_OFF, 4096 * b))
            so = "s%d" % S_OFF
        ld(Kf(b, 0), so, 0)
        ld(Kf(b, 1), so, 1024)
        if b < 3:
            ld(Vf(b, 0), so, 2048)
            ld(Vf(b, 1), so, 3072)
    e("s_setprio %d" % OPT["aprio"])
    e("s_waitcnt vmcnt(12) lgkmcnt(0)")
    stamp(8)
    cstamp(22)
    mfma(SS, Kf(0, 0), QF, None)
    mfma(SS, Kf(0, 1), QF + 4, SS)

    def M1(n):
        mfma(SS + 16 * ((n + 1) & 1), Kf(((n + 1) >> 2) & 3, 0), QF + 8 * ((n + 1) & 3), None)

    e("s_nop 10")
    M1(0)
    e("L_attn:")
    for n in range(16):
        S = SS + 16 * (n & 1)
        Sn = SS + 16 * ((n + 1) & 1)
        P = PP + 8 * (n & 1)
        Pp = PP + 8 * ((n - 1) & 1)
        ip, bp = (n - 1) & 3, ((n - 1) >> 2) & 3
        i1, b1 = (n + 1) & 3, ((n + 1) >> 2) & 3

        def ex(a, b_):
            for r in range(a, b_):
                e("v_exp_f32 v%d, v%d" % (S + r, S + r))

        def cv(a, b_):
            for k in range(a, b_):
                e("v_cvt_pk_bf16_f32 v%d, v%d, v%d" % (P + k, S + 2 * k, S + 2 * k + 1))

        if n % 4 == 1:
            e("s_waitcnt vmcnt(10)")
        if n % 4 == 3:
            ld(Kf((n >> 2) & 3, 0), "s%d" % S_OFF, 0)
        ex(0, 4)
        mfma(OA + 16 * ip, Vf(bp, 0), Pp, OA + 16 * ip)
        if n % 4 == 1:
            ld(Vf(((n >> 2) + 3) & 3, 0), "s%d" % S_OFF, 2048)
        if n % 4 == 3:
            ld(Kf((n >> 2) & 3, 1), "s%d" % S_OFF, 1024)
        ex(4, 8)
        cv(0, 2)
        mfma(Sn, Kf(b1, 1), QF + 8 * i1 + 4, Sn)
        if n % 4 == 1:
            ld(Vf(((n >> 2) + 3) & 3, 1), "s%d" % S_OFF, 3072)
        ex(8, 12)
        cv(2, 4)
        mfma(OA + 16 * ip, Vf(bp, 1), Pp + 4, OA + 16 * ip)
        if n % 4 == 1:
            e("s_add_u32 s%d, s%d, 4096" % (S_OFF, S_OFF))
        if n % 4 == 2:
            e("s_waitcnt vmcnt(10)")
        if n == 15:
            e("s_cmp_lt_u32 s%d, %d" % (S_OFF, 4096 * 19))
        ex(12, 16)
        cv(4, 8)
        M1(n + 1)
    e("s_cbranch_scc1 L_attn")
    mfma(OA + 48, Vf(3, 0), PP + 8, OA + 48)
    mfma(OA + 48, Vf(3, 1), PP + 12, OA + 48)
    cstamp(23)
    stamp(4)
    for i in range(1, 4):
        for q in range(4):
            e("ds_write_b128 v%d, %s offset:%d" % (7 + i, vr(OA + 16 * i + 4 * q, 4), q * 1024))
    e("s_waitcnt vmcnt(0) lgkmcnt(0)")
    e("s_barrier")
    T = 160
    for k in range(12):
        e("ds_read_b128 %s, v11 offset:%d" % (vr(T + 4 * k, 4), k * 1024))
    e("s_lshl_b32 s5, s%d, 4" % S_TT)
    e("s_add_u32 s5, s5, s%d" % S_HEAD)
    e("s_lshl_b32 s6, s5, 11")
    e("s_add_u32 s6, s6, 0x%x" % OW)
    e("s_lshl_b32 s7, s5, 7")
    e("s_add_u32 s7, s7, 0x%x" % FLAG_O)
    for i in range(3):
        e("s_waitcnt lgkmcnt(%d)" % (8 - 4 * i))
        for k in range(8):
            e("v_pk_add_f32 %s, %s, %s" % (vr(OA + 2 * k, 2), vr(OA + 2 * k, 2), vr(T + 16 * i + 2 * k, 2)))
    e("v_pk_mul_f32 v[4:5], %s, 0" % vr(OA, 2))
    for k in range(1, 8):
        e("v_pk_fma_f32 v[4:5], %s, 0, v[4:5]" % vr(OA + 2 * k, 2))
    e("s_mov_b32 s12, 0x%x" % f32(2.0 ** -60))
    e("s_mov_b32 s13, 0x%x" % f32(2.0 ** 60))
    e("v_cmp_nle_f32 s[72:73], s12, v%d" % (OA + 12))
    e("v_cmp_nge_f32 s[74:75], s13, v%d" % (OA + 12))
    e("v_cmp_u_f32 vcc, v4, v5")
    e("s_or_b32 s73, s73, s75")
    e("s_or_b32 s73, s73, vcc_hi")
    e("s_or_b32 s73, s73, vcc_lo")
    if OPT["force_fb"]:
        e("s_mov_b32 s73, 1")
    e("s_cmp_lg_u32 s73, 0")
    e("s_cbranch_scc1 L_fb")
    e("L_fin:")
    e("v_rcp_f32 v4, v%d" % (OA + 12))
    e("v_sub_f32 v6, 1.0, v%d" % V_G)
    e("v_mul_f32 v4, v4, v%d" % V_G)
    e("v_mov_b32 v5, v4")
    e("v_permlane32_swap_b32 v5, v4")
    for k in range(8):
        e("v_pk_mul_f32 %s, %s, v[4:5] op_sel_hi:[1,0]" % (vr(OA + 2 * k, 2), vr(OA + 2 * k, 2)))
    for k in range(8):
        e("v_cvt_pk_bf16_f32 v%d, v%d, v%d" % (32 + k, OA + 2 * k, OA + 2 * k + 1))
    e("v_cndmask_b32 v38, v38, 0, s[14:15]")
    e("v_cndmask_b32 v39, v39, 0, s[14:15]")
    e("buffer_store_dwordx4 v[32:35], v2, s[%d:%d], s6 offen sc1" % (SWS, SWS + 3))
    e("buffer_store_dwordx4 v[36:39], v2, s[%d:%d], s6 offen offset:1024 sc1" % (SWS, SWS + 3))
    e("s_cmp_lg_u32 s%d, 0" % S_HEAD)
    e("s_cbranch_scc1 L_a_nog")
    e("s_lshl_b32 s5, s%d, 7" % S_TT)
    e("s_add_u32 s5, s5, 0x%x" % (G1 - 128))
    e("v_lshlrev_b32 v7, 2, v1")
    e("s_mov_b32 exec_lo, 0")
    e("buffer_store_dword v6, v7, s[%d:%d], s5 offen sc1" % (SWS, SWS + 3))
    e("s_mov_b32 exec_lo, -1")
    e("L_a_nog:")
    e("s_waitcnt vmcnt(0)")
    flag_store(7, 8)
    stamp(5)
    dbg_stamp(256, 264, 0, True)
    stamp_flush()
    e("s_endpgm")

    SALL = 76
    e("L_fb:")
    srd(SALL, P_WS, 262144, "0x%x" % KV)
    e("v_mov_b32 v7, 0xff800000")
    e("s_mov_b32 s12, 0")
    e("L_fb1:")
    e("buffer_load_dwordx4 v[192:195], v2, s[%d:%d], s12 offen sc1" % (SALL, SALL + 3))
    e("buffer_load_dwordx4 v[196:199], v2, s[%d:%d], s12 offen offset:1024 sc1" % (SALL, SALL + 3))
    e("s_waitcnt vmcnt(0)")
    mfma(SS, 192, QF, None)
    mfma(SS, 196, QF + 4, SS)
    for k in range(8):
        e("v_max3_f32 v7, v7, v%d, v%d" % (SS + 2 * k, SS + 2 * k + 1))
    e("s_add_u32 s12, s12, 4096")
    e("s_cmp_lt_u32 s12, 262144")
    e("s_cbranch_scc1 L_fb1")
    e("v_mov_b32 v8, v7")
    e("v_permlane32_swap_b32 v8, v7")
    e("v_max_f32 v7, v7, v8")
    for k in range(16):
        e("v_mov_b32 v%d, 0" % (OA + k))
    e("s_mov_b32 s12, 0")
    e("L_fb2:")
    for k in range(4):
        e("buffer_load_dwordx4 %s, v2, s[%d:%d], s12 offen offset:%d sc1" % (vr(192 + 4 * k, 4), SALL, SALL + 3, 1024 * k))
    e("s_waitcnt vmcnt(0)")
    mfma(SS, 192, QF, None)
    mfma(SS, 196, QF + 4, SS)
    for k in range(16):
        e("v_sub_f32 v%d, v%d, v7" % (SS + k, SS + k))
    for k in range(16):
        e("v_exp_f32 v%d, v%d" % (SS + k, SS + k))
    for k in range(8):
        e("v_cvt_pk_bf16_f32 v%d, v%d, v%d" % (PP + k, SS + 2 * k, SS + 2 * k + 1))
    mfma(OA, 200, PP, OA)
    mfma(OA, 204, PP + 4, OA)
    e("s_add_u32 s12, s12, 4096")
    e("s_cmp_lt_u32 s12, 262144")
    e("s_cbranch_scc1 L_fb2")
    e("s_nop 8")
    e("s_branch L_fin")


S_STG = 16896
S_INB1 = 16896
S_WL = 49664
S_PX = 67584
KR0, KR1, XC0 = 0, 7680, 15360
XCS = 4160
L_CPX = 48640
S_OF, S_G1, S_OT = 0, 32768, 40960


def cmul(d, x, m, t):
    e("v_pk_mul_f32 %s, %s, %s op_sel_hi:[1,0]" % (vr(t, 2), vr(x, 2), vr(m, 2)))
    e("v_pk_fma_f32 %s, %s, %s, %s op_sel:[1,1,0] op_sel_hi:[0,1,1] neg_lo:[1,0,0]" % (vr(d, 2), vr(x, 2), vr(m, 2), vr(t, 2)))


def role_s():
    S_ID, S_J, S_CP = 8, 9, 15
    SW, SWO, SOUT = 60, 64, 68
    vE = 10
    PRM = 240
    XTR = 128

    def xt_flag(tag):
        e("s_cmp_ge_u32 s84, 0x%x" % (FLAG_XT + 7 * 64 * 128))
        e("s_cbranch_scc1 L_s_noxf%s" % tag)
        e("s_waitcnt vmcnt(0)")
        flag_store(84, 14)
        e("L_s_noxf%s:" % tag)

    e("L_roleS:")
    e("s_setprio 3")
    e("s_mov_b32 s%d, s2" % S_ID)
    e("s_lshr_b32 s%d, s%d, 3" % (S_J, S_ID))
    e("s_and_b32 s10, s%d, 7" % S_ID)
    e("s_mul_i32 s%d, s10, 28" % S_CP)
    e("s_add_u32 s%d, s%d, s%d" % (S_CP, S_CP, S_J))
    vXg, vXr0, vXr1, vL16, vWr = 2, 3, 4, 5, 6
    x_swizzle_addrs(vXg, vXr0, vXr1, 13, 14)
    e("v_lshlrev_b32 v%d, 4, v1" % vL16)
    e("s_lshl_b32 s5, s%d, 10" % S_CP)
    e("s_lshl_b32 s6, s3, 8")
    e("s_add_u32 s5, s5, s6")
    e("v_lshlrev_b32 v7, 2, v1")
    e("v_add_u32 v7, s5, v7")
    e("s_lshl_b32 s10, s10, 3")
    e("s_waitcnt lgkmcnt(0)")
    if OPT["timing"]:
        e("v_writelane_b32 v0, s96, 0")
    stamp(20)
    srd(SWS, P_WS, WS_BYTES)
    e("buffer_load_dword v%d, off, s[%d:%d], 0 sc1" % (vE, SWS, SWS + 3))
    e("s_cmp_ge_u32 s%d, 28" % S_J)
    e("s_cbranch_scc1 L_s_noprm")
    for k, p in enumerate((P_ARE, P_AIM, P_BRE, P_BIM, P_CRE, P_CIM)):
        e("global_load_dword v%d, v7, s[%d:%d]" % (PRM + k, p, p + 1))
    e("s_lshl_b32 s5, s%d, 2" % S_CP)
    e("s_load_dword s72, s[%d:%d], s5" % (P_LDT, P_LDT + 1))
    e("s_load_dword s73, s[%d:%d], s5" % (P_DSK, P_DSK + 1))
    e("L_s_noprm:")
    e("s_cmp_lt_u32 s%d, 16" % S_J)
    e("s_cbranch_scc1 L_s_nokv2")
    srd(SX, P_X, 2048 * 896)
    S_TAU, S_KIND = 11, 12
    e("s_sub_u32 s5, s%d, 16" % S_J)
    e("s_lshr_b32 s5, s5, 1")
    e("s_add_u32 s%d, s10, s5" % S_TAU)
    e("s_and_b32 s%d, s%d, 1" % (S_KIND, S_J))
    e("s_cmp_eq_u32 s%d, 0" % S_KIND)
    e("s_cselect_b32 s%d, s%d, s%d" % (SW, P_WK, P_WV))
    e("s_cselect_b32 s%d, s%d, s%d" % (SW + 1, P_WK + 1, P_WV + 1))
    e("s_mov_b32 s%d, %d" % (SW + 2, 448 * 56))
    e("s_mov_b32 s%d, 0x20000" % (SW + 3))
    e("s_lshl_b32 s5, s3, 13")
    e("s_add_u32 s5, s5, 16896")
    e("s_cmp_eq_u32 s3, 0")
    e("s_cselect_b32 s13, 8192, s5")
    e("s_mul_i32 s14, s3, 7232")
    e("s_add_u32 s14, s14, %d" % S_WL)
    e("s_mul_i32 s5, s%d, 28672" % S_TAU)
    e("s_lshl_b32 s6, s3, 8")
    e("s_add_u32 s5, s5, s6")
    e("s_add_u32 s6, s5, 14336")
    e("s_mov_b32 m0, s13")
    for pp in range(4):
        for rh in range(2):
            e("buffer_load_dwordx4 v%d, s[%d:%d], s%d offen lds" % (vXg, SX, SX + 3, 6 if rh else 5))
            e("s_add_u32 m0, m0, 1024")
            if pp < 3:
                e("s_add_u32 s%d, s%d, 64" % (6 if rh else 5, 6 if rh else 5))
    e("s_mul_i32 s5, s3, 7168")
    e("s_mov_b32 m0, s14")
    e("s_add_u32 s6, s5, 4096")
    for m in range(4):
        e("buffer_load_dwordx4 v%d, s[%d:%d], s5 offen offset:%d lds" % (vL16, SW, SW + 3, 1024 * m))
    e("s_add_u32 m0, m0, 4096")
    for m in range(3):
        e("buffer_load_dwordx4 v%d, s[%d:%d], s6 offen offset:%d lds" % (vL16, SW, SW + 3, 1024 * m))
    tr_addr(vWr, 8, 56, 13, 14)
    e("v_add_u32 v%d, s14, v%d" % (vWr, vWr))
    e("v_add_u32 v%d, s13, v%d" % (vXr0, vXr0))
    e("v_add_u32 v%d, s13, v%d" % (vXr1, vXr1))
    e("s_lshl_b32 s5, s3, 11")
    e("v_add_u32 v8, s5, v%d" % vL16)
    e("s_lshl_b32 s5, s%d, 12" % S_KIND)
    e("s_add_u32 s5, s5, s13")
    e("v_lshrrev_b32 v13, 5, v1")
    e("v_lshlrev_b32 v20, 11, v13")
    e("v_bfe_u32 v13, v1, 2, 2")
    e("v_lshl_add_u32 v20, v13, 6, v20")
    e("v_and_b32 v13, 1, v1")
    e("v_lshl_add_u32 v20, v13, 3, v20")
    e("v_add_u32 v20, s5, v20")
    e("v_bfe_u32 v13, v1, 4, 1")
    e("v_bfe_u32 v14, v1, 1, 1")
    e("v_lshl_add_u32 v13, v13, 1, v14")
    for m in range(4):
        e("v_xor_b32 v14, %d, v13" % m)
        e("v_lshl_add_u32 v%d, v14, 4, v20" % (16 + m))
    e("s_lshl_b32 s5, s3, 1")
    e("s_add_u32 s5, s5, s%d" % S_KIND)
    e("s_lshl_b32 s84, s5, 6")
    e("s_add_u32 s84, s84, s%d" % S_TAU)
    e("s_lshl_b32 s84, s84, 7")
    e("s_add_u32 s84, s84, 0x%x" % FLAG_XT)
    e("s_lshl_b32 s5, s5, 10")
    e("s_mul_i32 s85, s%d, %d" % (S_TAU, 4 * 7168))
    e("s_add_u32 s85, s85, s5")
    e("s_add_u32 s85, s85, 0x%x" % XT)
    XF, WF, DK = 64, 96, 48
    e("s_waitcnt vmcnt(0) lgkmcnt(0)")
    stamp(1)
    for s in range(8):
        e("ds_read_b128 %s, v%d offset:%d" % (vr(XF + 4 * s, 4), vXr1 if s & 1 else vXr0, (s >> 1) * 2048))
        for q in range(2):
            e("ds_read_b64_tr_b16 %s, v%d offset:%d" % (vr(WF + 4 * s + 2 * q, 2), vWr, s * 896 + q * 224))
    e("v_readfirstlane_b32 s4, v%d" % vE)
    e("s_add_u32 s4, s4, 0x%x" % NONCE_ADD)
    e("s_cmp_eq_u32 s%d, 0" % S_KIND)
    e("s_cbranch_scc0 L_s_kind1")
    for s in range(8):
        e("s_waitcnt lgkmcnt(%d)" % min(15, 21 - 3 * s))
        mfma(DK, WF + 4 * s, XF + 4 * s, None if s == 0 else DK)
    e("s_branch L_s_kindj")
    e("L_s_kind1:")
    for s in range(8):
        e("s_waitcnt lgkmcnt(%d)" % min(15, 21 - 3 * s))
        mfma(DK, XF + 4 * s, WF + 4 * s, None if s == 0 else DK)
    e("L_s_kindj:")
    for m in range(8):
        e("ds_read_b64_tr_b16 %s, v%d offset:%d" % (vr(XTR + 2 * m, 2), 16 + (m & 3), 256 * (m & 3) + 1024 * (m >> 2)))
    e("s_cmp_eq_u32 s%d, 0" % S_KIND)
    e("s_cselect_b32 s74, 0, 0xe0000000")
    e("s_mov_b32 s75, s74")
    e("s_mov_b32 s76, s74")
    e("s_cselect_b32 s78, 0, 0x10000000")
    e("s_mov_b32 s79, s78")
    e("s_cselect_b32 s5, -1, 0")
    e("s_cmp_eq_u32 s3, 1")
    e("s_cselect_b32 s5, s5, 0")
    e("s_or_b32 s77, s74, s5")
    e("v_mov_b32 v9, 0x3f803f80")
    for q in range(4):
        e("ds_write_b128 v8, %s offset:%d" % (vr(DK + 4 * q, 4), (q >> 1) * S_INB1 + (q & 1) * 1024))
    e("s_waitcnt lgkmcnt(0)")
    e("s_barrier")
    e("s_cmp_ge_u32 s3, 2")
    e("s_cbranch_scc1 L_s_kvdone")
    e("s_mul_i32 s5, s3, %d" % S_INB1)
    e("v_add_u32 v8, s5, v%d" % vL16)
    for k in range(8):
        e("ds_read_b128 %s, v8 offset:%d" % (vr(64 + 4 * k, 4), k * 1024))
    e("s_lshl_b32 s5, s%d, 1" % S_TAU)
    e("s_add_u32 s5, s5, s%d" % S_KIND)
    e("s_lshl_b32 s5, s5, 1")
    e("s_add_u32 s5, s5, s3")
    e("s_lshl_b32 s6, s5, 10")
    e("s_add_u32 s6, s6, 0x%x" % KV)
    e("s_lshl_b32 s7, s5, 7")
    e("s_add_u32 s7, s7, 0x%x" % FLAG_KV)
    e("s_waitcnt lgkmcnt(4)")
    for k in range(4):
        e("v_pk_add_f32 %s, %s, %s" % (vr(64 + 2 * k, 2), vr(64 + 2 * k, 2), vr(72 + 2 * k, 2)))
    e("s_waitcnt lgkmcnt(0)")
    for k in range(4):
        e("v_pk_add_f32 %s, %s, %s" % (vr(80 + 2 * k, 2), vr(80 + 2 * k, 2), vr(88 + 2 * k, 2)))
    for k in range(4):
        e("v_pk_add_f32 %s, %s, %s" % (vr(64 + 2 * k, 2), vr(64 + 2 * k, 2), vr(80 + 2 * k, 2)))
    for k in range(4):
        e("v_cvt_pk_bf16_f32 v%d, v%d, v%d" % (72 + k, 64 + 2 * k, 65 + 2 * k))
    for k in range(4):
        e("v_cndmask_b32 v%d, v%d, 0, %s" % (72 + k, 72 + k, "s[74:75]" if k < 2 else "s[76:77]"))
    for k in range(4):
        e("v_cndmask_b32 v%d, v%d, v9, s[78:79]" % (72 + k, 72 + k))
    stamp(17)
    e("buffer_store_dwordx4 v[72:75], v%d, s[%d:%d], s6 offen sc1" % (vL16, SWS, SWS + 3))
    e("s_waitcnt vmcnt(0)")
    stamp(18)
    flag_store(7, 9)
    e("L_s_kvdone:")
    e("s_setprio %d" % OPT["kprio"])
    e("s_cmp_ge_u32 s84, 0x%x" % (FLAG_XT + 7 * 64 * 128))
    e("s_cbranch_scc1 L_s_noxt")
    for q in range(4):
        e("buffer_store_dwordx4 %s, v%d, s[%d:%d], s85 offen sc1" % (vr(XTR + 4 * q, 4), vL16, SWS, SWS + 3))
        if q < 3:
            e("s_add_u32 s85, s85, 7168")
    e("L_s_noxt:")
    stamp(2)
    e("s_cmp_lt_u32 s%d, 28" % S_J)
    e("s_cbranch_scc1 L_s_kgen")
    xt_flag("a")
    e("s_branch L_s_wo")
    e("L_s_nokv2:")
    e("s_setprio %d" % OPT["kprio"])
    e("s_mov_b32 s84, -1")
    e("s_waitcnt vmcnt(0) lgkmcnt(0)")
    e("v_readfirstlane_b32 s4, v%d" % vE)
    e("s_add_u32 s4, s4, 0x%x" % NONCE_ADD)
    e("L_s_kgen:")
    stamp(11)
    e("s_lshr_b32 s5, s3, 1")
    e("s_lshl_b32 s5, s5, 4")
    e("s_lshr_b32 s72, s72, s5")
    e("s_lshl_b32 s72, s72, 16")
    e("s_lshr_b32 s73, s73, s5")
    e("s_lshl_b32 s73, s73, 16")
    c_hi = struct.unpack("<f", struct.pack("<I", f32(LOG2E) & 0xFFFFFF00))[0]
    c_lo = (LOG2E - c_hi) * math.log(2.0)
    e("v_mov_b32 v8, s72")
    e("v_mul_f32 v9, 0x%x, v8" % f32(c_hi))
    e("v_exp_f32 v9, v9")
    e("v_mul_f32 v8, 0x%x, v8" % f32(c_lo))
    e("v_fma_f32 v9, v9, v8, v9")
    e("v_cvt_pk_bf16_f32 v9, v9, v9")
    e("v_and_b32 v9, 0xffff0000, v9")
    ZR, ZI = (16, 17), (18, 19)
    E1, E8, EG, WW, TT, XX = (20, 22), (24, 26), (28, 30), (32, 34), (36, 38), (40, 42)
    R2, R4, R6 = (44, 46), (48, 50), (52, 54)
    OUT = 56

    def unp(d, src, m):
        if m == 0:
            e("v_lshlrev_b32 v%d, 16, v%d" % (d, src))
        else:
            e("v_and_b32 v%d, 0xffff0000, v%d" % (d, src))

    for m in range(2):
        unp(ZR[m], PRM + 0, m)
        unp(ZI[m], PRM + 1, m)
    for m in range(2):
        e("v_mul_f32 v%d, v9, v%d" % (ZR[m], ZR[m]))
        e("v_mul_f32 v%d, v9, v%d" % (ZI[m], ZI[m]))
    for m in range(2):
        e("v_mul_f32 v%d, 0x%x, v%d" % (ZR[m], f32(LOG2E), ZR[m]))
        e("v_mul_f32 v%d, 0x%x, v%d" % (ZI[m], f32(1.0 / (2 * math.pi)), ZI[m]))

    def cexp(dst, mult, conj):
        for m in range(2):
            if mult != 1:
                e("v_mul_f32 v%d, 0x%x, v%d" % (TT[m], f32(mult), ZR[m]))
                e("v_mul_f32 v%d, 0x%x, v%d" % (TT[m] + 1, f32(mult), ZI[m]))
                e("v_fract_f32 v%d, v%d" % (TT[m] + 1, TT[m] + 1))
            else:
                e("v_mov_b32 v%d, v%d" % (TT[m], ZR[m]))
                e("v_fract_f32 v%d, v%d" % (TT[m] + 1, ZI[m]))
        for m in range(2):
            e("v_exp_f32 v%d, v%d" % (TT[m], TT[m]))
            e("v_cos_f32 v%d, v%d" % (dst[m], TT[m] + 1))
            e("v_sin_f32 v%d, v%d" % (dst[m] + 1, TT[m] + 1))
        for m in range(2):
            e("v_pk_mul_f32 %s, %s, %s op_sel_hi:[1,0]%s" % (vr(dst[m], 2), vr(dst[m], 2), vr(TT[m], 2), " neg_hi:[1,0]" if conj else ""))

    cexp(E8, 8, True)
    e("s_mul_i32 s13, s3, %d" % S_STG)
    e("v_lshlrev_b32 v8, 3, v1")
    e("v_add_u32 v8, s13, v8")
    e("v_and_b32 v11, 31, v1")
    e("v_mul_u32_u24 v11, 528, v11")
    e("v_lshrrev_b32 v12, 5, v1")
    e("v_lshl_add_u32 v11, v12, 4, v11")
    e("v_add_u32 v11, s13, v11")
    ring = [0]

    def put(row, src):
        o = OUT + 2 * (ring[0] & 3)
        ring[0] += 1
        for m in range(2):
            e("v_cvt_pk_bf16_f32 v%d, v%d, v%d" % (o + m, src[m], src[m] + 1))
        e("ds_write_b64 v8, %s offset:%d" % (vr(o, 2), row * 528))

    e("v_mov_b32 v%d, 0x3f80" % OUT)
    e("v_mov_b32 v%d, 0x3f80" % (OUT + 1))
    e("ds_write_b64 v8, %s" % vr(OUT, 2))
    ring[0] = 1
    put(1, E8)
    for j in range(2, 32):
        src = E8 if j == 2 else XX
        for m in range(2):
            e("v_pk_mul_f32 %s, %s, %s op_sel_hi:[1,0]" % (vr(TT[m], 2), vr(src[m], 2), vr(E8[m], 2)))
        for m in range(2):
            e("v_pk_fma_f32 %s, %s, %s, %s op_sel:[1,1,0] op_sel_hi:[0,1,1] neg_lo:[1,0,0]" % (vr(XX[m], 2), vr(src[m], 2), vr(E8[m], 2), vr(TT[m], 2)))
        put(j, XX)
    BF, AF, DD = 64, 128, 192
    stamp(12)
    for s in range(16):
        e("ds_read_b128 %s, v11 offset:%d" % (vr(BF + 4 * s, 4), s * 32))
    xt_flag("b")
    stamp(13)
    cexp(E1, 1, False)
    cexp(EG, 256, False)

    def mul2(dst, src, mu):
        for m in range(2):
            e("v_pk_mul_f32 %s, %s, %s op_sel_hi:[1,0]" % (vr(TT[m], 2), vr(src[m], 2), vr(mu[m], 2)))
        for m in range(2):
            e("v_pk_fma_f32 %s, %s, %s, %s op_sel:[1,1,0] op_sel_hi:[0,1,1] neg_lo:[1,0,0]" % (vr(dst[m], 2), vr(src[m], 2), vr(mu[m], 2), vr(TT[m], 2)))

    for m in range(2):
        unp(XX[m], PRM + 2, m)
        unp(XX[m] + 1, PRM + 3, m)
        unp(R2[m], PRM + 4, m)
        unp(R2[m] + 1, PRM + 5, m)
    for m in range(2):
        e("v_mul_f32 v%d, v9, v%d" % (XX[m], XX[m]))
        e("v_mul_f32 v%d, v9, v%d" % (XX[m] + 1, XX[m] + 1))
    mul2(WW, R2, XX)
    put(0, WW)
    mul2(XX, WW, E1); put(1, XX)
    mul2(R2, XX, E1); put(2, R2)
    mul2(XX, R2, E1); put(3, XX)
    mul2(R4, XX, E1); put(4, R4)
    mul2(XX, R4, E1); put(5, XX)
    mul2(R6, XX, E1); put(6, R6)
    mul2(XX, R6, E1); put(7, XX)
    for row in (8, 12, 9, 13, 10, 14, 11, 15):
        mul2(WW, WW, EG); put(row, WW)
    mul2(R2, R2, EG); put(16, R2)
    mul2(R4, R4, EG); put(17, R4)
    mul2(R6, R6, EG); put(18, R6)
    mul2(R4, R4, EG); put(20, R4)
    mul2(R4, R4, EG); put(19, R4)
    stamp(14)
    for s in range(16):
        e("ds_read_b128 %s, v11 offset:%d" % (vr(AF + 4 * s, 4), s * 32))
    e("s_mul_i32 s5, s3, 3072")
    e("s_add_u32 s5, s5, %d" % S_PX)
    e("v_add_u32 v12, s5, v%d" % vL16)
    e("s_xor_b32 s6, s3, 1")
    e("s_mul_i32 s6, s6, 3072")
    e("s_add_u32 s6, s6, %d" % S_PX)
    e("v_add_u32 v13, s6, v%d" % vL16)
    for s in range(16):
        e("s_waitcnt lgkmcnt(%d)" % (15 - s))
        mfma(DD, AF + 4 * s, BF + 4 * s, None if s == 0 else DD)
    stamp(15)
    e("s_lshr_b32 s5, s3, 1")
    e("s_mul_i32 s14, s5, %d" % KR1)
    e("v_sub_u32 v14, 223, v1")
    e("v_lshrrev_b32 v15, 2, v14")
    e("v_mul_u32_u24 v15, 80, v15")
    e("v_and_b32 v14, 3, v14")
    e("v_lshl_add_u32 v14, v14, 4, v15")
    e("v_add_u32 v14, s14, v14")
    e("v_mov_b32 v16, 0")
    e("v_mov_b32 v17, 0")
    e("v_mov_b32 v18, 0")
    e("v_mov_b32 v19, 0")
    e("v_add_u32 v15, s14, v%d" % vL16)
    e("s_mov_b32 s74, 0")
    e("s_mov_b32 s75, -1")
    e("s_mov_b32 s76, 0xaaaaaaaa")
    e("s_mov_b32 s77, 0xaaaaaaaa")
    for q in range(3):
        e("ds_write_b128 v12, %s offset:%d" % (vr(DD + 4 * q, 4), q * 1024))
    e("s_waitcnt lgkmcnt(0)")
    e("s_barrier")
    stamp(3)
    e("s_setprio %d" % OPT["cprio"])
    for q in range(3):
        e("ds_read_b128 %s, v13 offset:%d" % (vr(64 + 4 * q, 4), q * 1024))
    e("s_waitcnt lgkmcnt(0)")
    for k in range(6):
        e("v_pk_add_f32 %s, %s, %s" % (vr(DD + 2 * k, 2), vr(DD + 2 * k, 2), vr(64 + 2 * k, 2)))
    D = lambda r: DD + r

    def nxt(dst, r):
        if r < 7:
            e("v_mov_b32_dpp v%d, v%d wave_rol:1 row_mask:0xf bank_mask:0xf" % (dst, D(r + 1)))
        e("v_mov_b32_dpp v%d, v%d wave_shl:1 row_mask:0xf bank_mask:0xf" % (dst, D(r)))

    def pk(d, lo, hi):
        e("v_cvt_pk_bf16_f32 v%d, v%d, v%d" % (d, lo, hi))

    e("s_bitcmp1_b32 s3, 0")
    e("s_cbranch_scc1 L_s_expB")
    e("ds_write_b128 v15, v[16:19] offset:5120")
    e("ds_write_b128 v15, v[16:19] offset:6144")
    e("v_mov_b32 v32, s73")
    e("v_cmp_eq_u32 vcc, 0, v1")
    e("v_cndmask_b32 v32, 0, v32, vcc")
    e("v_add_f32 v%d, v%d, v32" % (D(0), D(0)))
    e("v_and_b32 v33, 31, v1")
    e("v_sub_u32 v33, 255, v33")
    e("v_lshrrev_b32 v34, 2, v33")
    e("v_mul_u32_u24 v34, 80, v34")
    e("v_and_b32 v33, 3, v33")
    e("v_lshl_add_u32 v33, v33, 4, v34")
    e("v_add_u32 v33, s14, v33")
    e("v_add_u32 v34, 8, v33")
    e("v_cndmask_b32 v33, v34, v33, s[74:75]")
    pk(36, D(3), D(2))
    pk(37, D(1), D(0))
    e("ds_write_b64 v33, v[36:37]")
    nxt(40, 4)
    e("v_cndmask_b32 v41, v%d, v40, s[74:75]" % D(10))
    e("v_cndmask_b32 v42, v%d, v%d, s[74:75]" % (D(9), D(8)))
    e("v_cndmask_b32 v43, v%d, v%d, s[74:75]" % (D(8), D(4)))
    pk(44, 40, 41)
    pk(45, 42, 42)
    pk(46, 42, 43)
    pk(47, D(4), D(4))
    e("ds_write_b128 v14, v[44:47]")
    e("s_branch L_s_expJ")
    e("L_s_expB:")
    e("ds_write_b128 v15, v[16:19] offset:6656")
    e("v_subrev_u32 v14, 2560, v14")
    nxt(40, 5)
    e("v_cndmask_b32 v41, v%d, v40, s[76:77]" % D(5))
    e("v_cndmask_b32 v42, v%d, v40, s[74:75]" % D(11))
    e("v_cndmask_b32 v41, v%d, v41, s[74:75]" % D(11))
    e("v_cndmask_b32 v43, v%d, v%d, s[74:75]" % (D(11), D(5)))
    pk(44, 40, 40)
    pk(45, 42, 41)
    pk(46, 43, D(5))
    pk(47, D(5), D(5))
    e("ds_write_b128 v14, v[44:47] offset:1280")
    for r in (6, 7):
        o = 48 if r == 6 else 56
        nxt(o, r)
        e("v_cndmask_b32 v%d, v%d, v%d, s[76:77]" % (o + 1, D(r), o))
        pk(o + 4, o, o)
        pk(o + 5, o, o + 1)
        pk(o + 6, D(r), D(r))
        pk(o + 7, D(r), D(r))
        if r == 6:
            e("ds_write_b128 v14, %s" % vr(o + 4, 4))
        else:
            e("v_subrev_u32 v14, 1280, v14")
            e("s_mov_b32 exec_hi, 0")
            e("ds_write_b128 v14, %s" % vr(o + 4, 4))
            e("s_mov_b32 exec_hi, -1")
    e("L_s_expJ:")
    e("s_waitcnt lgkmcnt(0)")
    e("L_s_wo:")
    e("s_barrier")
    stamp(21)
    S_TT, S_JG = 11, 12
    WO = 128
    e("s_lshr_b32 s5, s%d, 2" % S_J)
    e("s_add_u32 s%d, s10, s5" % S_TT)
    e("s_and_b32 s%d, s%d, 3" % (S_JG, S_J))
    srd(SWO, P_WO, 448 * 896)
    srd(SOUT, P_OUT, 2048 * 896)
    e("v_lshrrev_b32 v13, 2, v1")
    e("v_mul_u32_u24 v8, 896, v13")
    e("v_and_b32 v13, 3, v1")
    e("v_lshl_add_u32 v8, v13, 4, v8")
    tr_addr(9, 4, 64, 13, 14)
    e("s_mul_i32 s13, s3, 16640")
    e("s_add_u32 s13, s13, %d" % XC0)
    e("v_add_u32 v9, s13, v9")
    e("s_mul_i32 s86, s%d, 224" % S_JG)
    e("s_mul_i32 s5, s3, 56")
    e("s_add_u32 s86, s86, s5")
    for ck in range(2):
        e("s_mov_b32 m0, s13")
        e("s_add_u32 s5, s86, %d" % (ck * 224 * 896))
        for m in range(15):
            e("buffer_load_dwordx4 v8, s[%d:%d], s5 offen lds" % (SWO, SWO + 3))
            if m < 14:
                e("s_add_u32 m0, m0, 1024")
                e("s_add_u32 s5, s5, 14336")
        e("s_waitcnt vmcnt(0)")
        for hd in range(8):
            for kp in range(2):
                for q in range(2):
                    e("ds_read_b64_tr_b16 %s, v9 offset:%d" % (vr(WO + 64 * ck + 8 * hd + 4 * kp + 2 * q, 2), (28 * hd + 16 * kp + 8 * q) * 64))
        e("s_waitcnt lgkmcnt(0)")
    e("s_barrier")
    stamp(16)
    e("s_cmp_ge_u32 s%d, 28" % S_J)
    e("s_cbranch_scc1 L_s_cons")
    e("s_lshr_b32 s5, s%d, 5" % S_CP)
    e("s_lshl_b32 s5, s5, 13")
    e("s_add_u32 s5, s5, 0x%x" % FLAG_XT)
    e("v_lshlrev_b32 v13, 7, v1")
    e("v_add_u32 v13, s5, v13")
    e("v_lshrrev_b32 v10, 1, v1")
    e("v_and_b32 v11, 1, v1")
    e("v_mul_u32_u24 v12, 7168, v10")
    e("v_lshl_add_u32 v12, v11, 4, v12")
    e("s_mul_i32 s74, s3, %d" % (64 * 7168))
    e("s_lshl_b32 s5, s%d, 5" % S_CP)
    e("s_add_u32 s74, s74, s5")
    e("s_add_u32 s74, s74, 0x%x" % XT)
    e("s_add_u32 s75, s74, %d" % (32 * 7168))
    e("v_mul_u32_u24 v15, %d, v11" % (4 * XCS))
    e("v_lshl_add_u32 v15, v10, 4, v15")
    e("s_lshl_b32 s5, s3, 10")
    e("s_add_u32 s5, s5, %d" % XC0)
    e("v_add_u32 v15, s5, v15")
    e("s_cmp_lg_u32 s3, 0")
    e("s_cbranch_scc1 L_s_nohead")
    for k in range(4):
        e("v_mov_b32 v%d, 0" % (16 + k))
    e("v_bfe_u32 v22, v1, 2, 3")
    e("v_mul_u32_u24 v22, %d, v22" % XCS)
    e("v_and_b32 v23, 3, v1")
    e("v_lshl_add_u32 v22, v23, 4, v22")
    e("ds_write_b128 v22, v[16:19] offset:%d" % XC0)
    e("L_s_nohead:")
    poll("xt", 13, 14, sleep=2)
    stamp(19)
    e("s_setprio %d" % OPT["cprio"])
    e("buffer_load_dwordx4 v[16:19], v12, s[%d:%d], s74 offen sc1" % (SWS, SWS + 3))
    e("buffer_load_dwordx4 v[20:23], v12, s[%d:%d], s75 offen sc1" % (SWS, SWS + 3))
    e("v_add_u32 v24, %d, v15" % (XCS + 60))
    e("v_add_u32 v25, %d, v15" % (3 * XCS + 56))
    e("v_add_u32 v26, %d, v15" % (2 * XCS + 56))
    for i in range(2):
        r = 16 + 4 * i
        o = 512 * i
        e("s_waitcnt vmcnt(%d)" % (1 - i))
        for k in range(3):
            e("v_alignbit_b32 v%d, v%d, v%d, 16" % (28 + k, r + k + 1, r + k))
        for a in (24, 25):
            e("ds_write2_b32 v%d, v%d, v%d offset0:%d offset1:%d" % (a, r, r + 1, o // 4, o // 4 + 1))
            e("ds_write2_b32 v%d, v%d, v%d offset0:%d offset1:%d" % (a, r + 2, r + 3, o // 4 + 2, o // 4 + 3))
        for a, b0 in ((15, 62), (26, 2)):
            e("ds_write_b16 v%d, v%d offset:%d" % (a, r, o + b0))
            e("ds_write2_b32 v%d, v28, v29 offset0:%d offset1:%d" % (a, (o + b0 + 2) // 4, (o + b0 + 2) // 4 + 1))
            e("ds_write_b32 v%d, v30 offset:%d" % (a, o + b0 + 10))
            e("ds_write_b16_d16_hi v%d, v%d offset:%d" % (a, r + 3, o + b0 + 14))
    vX, vK = 8, 9
    e("v_and_b32 v10, 3, v1")
    e("v_mul_u32_u24 v%d, %d, v10" % (vX, XCS))
    e("v_bfe_u32 v10, v1, 2, 3")
    e("v_lshl_add_u32 v%d, v10, 3, v%d" % (vX, vX))
    e("v_lshrrev_b32 v10, 5, v1")
    e("v_lshl_add_u32 v%d, v10, 4, v%d" % (vX, vX))
    e("v_and_b32 v11, 31, v1")
    e("v_sub_u32 v11, 31, v11")
    e("v_mul_u32_u24 v%d, 80, v11" % vK)
    e("v_lshl_add_u32 v%d, v10, 4, v%d" % (vK, vK))
    e("s_lshr_b32 s5, s3, 1")
    e("s_mul_i32 s5, s5, %d" % (4 * XCS))
    e("s_add_u32 s5, s5, %d" % XC0)
    e("s_and_b32 s6, s3, 1")
    e("s_mul_i32 s7, s6, %d" % (OPT["splitA"] * 8 * 32))
    e("s_add_u32 s5, s5, s7")
    e("v_add_u32 v%d, s5, v%d" % (vX, vX))
    e("s_mul_i32 s7, s6, %d" % (OPT["splitA"] * 4 * 80))
    e("s_add_u32 s7, s7, s14")
    e("v_add_u32 v%d, s7, v%d" % (vK, vK))
    e("s_cmp_eq_u32 s6, 0")
    e("s_cselect_b32 s13, %d, %d" % (OPT["splitA"], 8 - OPT["splitA"]))
    Y0, Y1, RG = 16, 32, 48
    for k in range(32):
        e("v_mov_b32 v%d, 0" % (Y0 + k))
    e("s_waitcnt lgkmcnt(0)")
    e("s_barrier")
    stamp(4)
    e("s_setprio %d" % OPT["cprio"])

    def rdx(st, sg):
        e("ds_read_b64 %s, v%d offset:%d" % (vr(RG + 12 * st, 2), vX, 32 * sg))
        e("ds_read_b64 %s, v%d offset:%d" % (vr(RG + 12 * st + 2, 2), vX, 32 * sg + 8))

    def rdk(st, sg, tile):
        e("ds_read_b128 %s, v%d offset:%d" % (vr(RG + 12 * st + 4 + 4 * tile, 4), vK, 80 * (sg >> 1) + 32 * (sg & 1) + (0 if tile else 2560)))

    NST = OPT["nst"]
    for st in range(NST - 1):
        rdx(st, st); rdk(st, st, 0); rdk(st, st, 1)
    e("L_conv2:")
    for sg in range(8):
        st = sg % NST
        sn = (sg + NST - 1) % NST
        rdx(sn, sg + NST - 1); rdk(sn, sg + NST - 1, 0); rdk(sn, sg + NST - 1, 1)
        e("s_waitcnt lgkmcnt(%d)" % (4 * (NST - 1)))
        mfma(Y0, RG + 12 * st + 4, RG + 12 * st, Y0)
        if sg == 7:
            e("v_add_u32 v%d, 256, v%d" % (vX, vX))
            e("v_add_u32 v%d, 320, v%d" % (vK, vK))
            e("s_sub_u32 s13, s13, 1")
            e("s_cmp_lg_u32 s13, 0")
        mfma(Y1, RG + 12 * st + 8, RG + 12 * st, Y1)
    e("s_cbranch_scc1 L_conv2")
    e("s_bitcmp1_b32 s3, 0")
    e("s_cbranch_scc0 L_conv_done")
    e("s_mov_b32 s13, 8")
    e("s_waitcnt lgkmcnt(0)")
    e("L_conv1:")
    for sg in range(8):
        st = sg % NST
        sn = (sg + NST - 1) % NST
        rdx(sn, sg + NST - 1); rdk(sn, sg + NST - 1, 1)
        e("s_waitcnt lgkmcnt(%d)" % (3 * (NST - 1)))
        if sg == 7:
            e("v_add_u32 v%d, 256, v%d" % (vX, vX))
            e("v_add_u32 v%d, 320, v%d" % (vK, vK))
            e("s_sub_u32 s13, s13, 1")
            e("s_cmp_lg_u32 s13, 0")
        mfma(Y1, RG + 12 * st + 8, RG + 12 * st, Y1)
    e("s_cbranch_scc1 L_conv1")
    e("L_conv_done:")
    stamp(5)
    e("s_lshl_b32 s5, s3, 13")
    e("s_add_u32 s5, s5, %d" % L_CPX)
    e("v_add_u32 v10, s5, v%d" % vL16)
    e("s_and_b32 s5, s3, 1")
    e("s_lshr_b32 s6, s3, 1")
    e("s_lshl_b32 s7, s5, 12")
    e("s_lshl_b32 s13, s6, 11")
    e("s_add_u32 s7, s7, s13")
    e("s_add_u32 s7, s7, %d" % L_CPX)
    e("v_add_u32 v11, s7, v%d" % vL16)
    e("s_lshl_b32 s5, s5, 1")
    e("s_add_u32 s5, s5, s6")
    e("s_mul_i32 s5, s5, %d" % (16 * 224))
    e("s_add_u32 s5, s5, s%d" % S_CP)
    e("s_lshl_b32 s5, s5, 7")
    e("s_add_u32 s13, s5, 0x%x" % B2)
    e("v_lshrrev_b32 v12, 5, v1")
    e("v_mul_u32_u24 v12, %d, v12" % (4 * 224 * 128))
    e("v_and_b32 v13, 31, v1")
    e("v_lshl_add_u32 v12, v13, 2, v12")
    e("s_waitcnt lgkmcnt(0)")
    for k in range(8):
        e("ds_write_b128 v10, %s offset:%d" % (vr(Y0 + 4 * k, 4), k * 1024))
    e("s_waitcnt lgkmcnt(0)")
    e("s_barrier")
    for w in range(4):
        for q in range(2):
            e("ds_read_b128 %s, v11 offset:%d" % (vr(48 + 8 * w + 4 * q, 4), w * 8192 + q * 1024))
    e("s_lshl_b32 s7, s%d, 2" % S_CP)
    e("s_add_u32 s7, s7, s3")
    e("s_lshl_b32 s7, s7, 7")
    e("s_add_u32 s7, s7, 0x%x" % FLAG_B)
    e("s_waitcnt lgkmcnt(0)")
    e("s_barrier")
    for k in range(4):
        e("v_pk_add_f32 %s, %s, %s" % (vr(48 + 2 * k, 2), vr(48 + 2 * k, 2), vr(56 + 2 * k, 2)))
        e("v_pk_add_f32 %s, %s, %s" % (vr(64 + 2 * k, 2), vr(64 + 2 * k, 2), vr(72 + 2 * k, 2)))
    for k in range(8):
        e("v_cvt_pk_bf16_f32 v%d, v%d, v%d" % (80 + k, 48 + k, 64 + k))
    for k in range(8):
        e("buffer_store_dword v%d, v12, s[%d:%d], s13 offen sc1" % (80 + k, SWS, SWS + 3))
        if k < 7:
            e("s_add_u32 s13, s13, %d" % ((5 if k == 3 else 1) * 28672))
    e("s_waitcnt vmcnt(0)")
    flag_store(7, 13)
    stamp(6)
    e("L_s_cons:")
    stamp(7)
    e("s_cmp_lg_u32 s3, 0")
    e("s_cbranch_scc1 L_s_noalive")
    e("s_lshl_b32 s5, s2, 7")
    e("s_add_u32 s5, s5, 0x%x" % ALIVE)
    flag_store(5, 13)
    e("s_cmp_lg_u32 s2, 255")
    e("s_cbranch_scc1 L_s_noalive")
    e("v_lshlrev_b32 v13, 7, v1")
    e("v_add_u32 v13, 0x%x, v13" % ALIVE)
    poll("alive", 13, 16, sleep=8, n=8, step=8192)
    e("s_mov_b32 s5, 0")
    flag_store(5, 13)
    e("L_s_noalive:")
    e("s_mul_i32 s13, s%d, 56" % S_JG)
    e("s_mul_i32 s5, s3, 14")
    e("s_add_u32 s13, s13, s5")
    e("s_lshr_b32 s5, s%d, 5" % S_TT)
    e("s_bfe_u32 s6, s%d, 0x10004" % S_TT)
    e("s_lshl_b32 s6, s6, 1")
    e("s_add_u32 s5, s5, s6")
    e("s_lshl_b32 s6, s13, 2")
    e("s_add_u32 s5, s5, s6")
    e("s_lshl_b32 s5, s5, 7")
    e("s_add_u32 s5, s5, 0x%x" % FLAG_B)
    e("v_min_u32 v13, 13, v1")
    e("v_lshlrev_b32 v13, 9, v13")
    e("v_add_u32 v13, s5, v13")
    poll("b", 13, 14, sleep=4)
    BB = 24
    e("s_mul_i32 s5, s%d, 224" % S_TT)
    e("s_add_u32 s5, s5, s13")
    e("s_lshl_b32 s5, s5, 7")
    e("s_add_u32 s5, s5, 0x%x" % B2)
    e("v_lshrrev_b32 v10, 5, v1")
    e("v_and_b32 v11, 31, v1")
    e("v_lshlrev_b32 v13, 8, v10")
    e("v_lshl_add_u32 v13, v11, 2, v13")
    for q in range(4):
        if q == 3:
            e("s_mov_b32 exec_hi, 0")
        for p in range(2):
            e("buffer_load_dword v%d, v13, s[%d:%d], s5 offen offset:%d sc1" % (BB + 2 * q + p, SWS, SWS + 3, (4 * q + p) * 128))
    e("s_mov_b32 exec_hi, -1")
    e("s_lshl_b32 s5, s%d, 4" % S_TT)
    e("s_lshl_b32 s6, s3, 2")
    e("s_add_u32 s5, s5, s6")
    e("s_lshl_b32 s14, s5, 11")
    e("s_add_u32 s14, s14, 0x%x" % OW)
    e("s_add_u32 s15, s14, 4096")
    e("s_lshl_b32 s5, s5, 7")
    e("s_add_u32 s5, s5, 0x%x" % FLAG_O)
    e("v_and_b32 v13, 3, v1")
    e("v_lshlrev_b32 v13, 7, v13")
    e("v_add_u32 v13, s5, v13")
    e("s_lshl_b32 s5, s3, 13")
    e("v_add_u32 v12, s5, v%d" % vL16)
    e("v_lshlrev_b32 v14, 2, v11")
    e("s_lshl_b32 s72, s%d, 7" % S_TT)
    e("s_add_u32 s72, s72, 0x%x" % G1)
    e("v_mul_u32_u24 v15, 240, v11")
    e("v_lshl_add_u32 v15, v10, 3, v15")
    e("s_mul_i32 s5, s3, 56")
    e("s_add_u32 s5, s5, %d" % S_OT)
    e("v_add_u32 v15, s5, v15")
    for k in range(2):
        e("v_add_u32 v16, %d, v1" % (64 * k))
        e("v_mul_u32_u24 v17, 4682, v16")
        e("v_lshrrev_b32 v17, 16, v17")
        e("v_mul_u32_u24 v18, 14, v17")
        e("v_sub_u32 v16, v16, v18")
        e("v_mul_u32_u24 v18, 240, v17")
        e("v_lshl_add_u32 v%d, v16, 4, v18" % (20 + 2 * k))
        e("v_mul_u32_u24 v18, 896, v17")
        e("v_lshl_add_u32 v%d, v16, 4, v18" % (21 + 2 * k))
    e("s_mul_i32 s5, s3, %d" % (8 * 240))
    e("s_add_u32 s5, s5, %d" % S_OT)
    e("v_add_u32 v20, s5, v20")
    e("v_add_u32 v22, s5, v22")
    e("s_lshl_b32 s5, s%d, 2" % S_TT)
    e("s_add_u32 s5, s5, s3")
    e("s_mul_i32 s73, s5, %d" % (8 * 896))
    e("s_mul_i32 s5, s%d, 224" % S_JG)
    e("s_add_u32 s73, s73, s5")
    stamp(8)
    e("s_setprio 0")
    poll("o", 13, 16, sleep=1)
    stamp(9)
    e("s_setprio 3")
    OL = 32
    for k in range(8):
        e("buffer_load_dwordx4 %s, v%d, s[%d:%d], s%d offen offset:%d sc1" % (vr(OL + 4 * k, 4), vL16, SWS, SWS + 3, 14 + (k >> 2), (k & 3) * 1024))
    e("s_cmp_lg_u32 s3, 0")
    e("s_cbranch_scc1 L_s_nog")
    e("buffer_load_dword v16, v14, s[%d:%d], s72 offen sc1" % (SWS, SWS + 3))
    e("s_waitcnt vmcnt(0)")
    e("ds_write_b32 v14, v16 offset:%d" % S_G1)
    e("L_s_nog:")
    for k in range(8):
        e("s_waitcnt vmcnt(%d)" % (7 - k))
        e("ds_write_b128 v12, %s offset:%d" % (vr(OL + 4 * k, 4), k * 1024))
    e("s_waitcnt lgkmcnt(0)")
    e("s_barrier")
    DO, OF = 64, 80
    e("ds_read_b32 v16, v14 offset:%d" % S_G1)
    for k in range(7):
        e("ds_read_b128 %s, v%d offset:%d" % (vr(OF + 4 * k, 4), vL16, k * 1024))
    for k in range(32):
        if k + 7 < 32:
            e("ds_read_b128 %s, v%d offset:%d" % (vr(OF + 4 * ((k + 7) & 7), 4), vL16, (k + 7) * 1024))
        e("s_waitcnt lgkmcnt(%d)" % min(7, 31 - k))
        mfma(DO, WO + 4 * k, OF + 4 * (k & 7), None if k == 0 else DO)
        if k < 8:
            e("v_lshlrev_b32 v%d, 16, v%d" % (OL + 2 * k, BB + k))
            e("v_and_b32 v%d, 0xffff0000, v%d" % (OL + 2 * k + 1, BB + k))
    for k in range(8):
        e("v_pk_fma_f32 %s, %s, v[16:17], %s op_sel_hi:[1,0,1]" % (vr(DO + 2 * k, 2), vr(OL + 2 * k, 2), vr(DO + 2 * k, 2)))
    for k in range(8):
        e("v_cvt_pk_bf16_f32 v%d, v%d, v%d" % (OL + k, DO + 2 * k, DO + 2 * k + 1))
    for q in range(4):
        if q == 3:
            e("s_mov_b32 exec_hi, 0")
        e("ds_write_b64 v15, %s offset:%d" % (vr(OL + 2 * q, 2), 16 * q))
    e("s_mov_b32 exec_hi, -1")
    e("s_waitcnt lgkmcnt(0)")
    e("s_barrier")
    e("ds_read_b128 v[40:43], v20")
    e("ds_read_b128 v[44:47], v22")
    e("s_waitcnt lgkmcnt(1)")
    e("buffer_store_dwordx4 v[40:43], v21, s[%d:%d], s73 offen" % (SOUT, SOUT + 3))
    e("s_mov_b32 exec_hi, 0xffff")
    e("s_waitcnt lgkmcnt(0)")
    e("buffer_store_dwordx4 v[44:47], v23, s[%d:%d], s73 offen" % (SOUT, SOUT + 3))
    e("s_mov_b32 exec_hi, -1")
    if OPT["timing"]:
        e("s_waitcnt vmcnt(0)")
    stamp(10)
    dbg_stamp(248, 256, 8, False)
    stamp_flush()
    e("L_end:")
    e("s_endpgm")


prologue()
role_a()
role_s()

lines, nops = asmcheck.fix_hazards(L, verbose=bool(OPT.get("v", 0)))
errs = asmcheck.check_waitcnt(lines)
for er in errs:
    print("WAITCNT?", er, file=sys.stderr)
print("instructions: %d, wait states inserted: %d" % (len(lines), nops), file=sys.stderr)

ref = open("cdna_kernels/%s.s.ref" % NAME).read()
head = ref[: ref.index("; Override launch")]
text = head + """; Override launch geometry by editing the next line (default: block=256,
; grid=ceil(out_elems/256), lds=0). Harness parses it; keep it on one line.
; @launch grid=(512,1,1) block=(256,1,1) lds=81920
.amdgcn_target "amdgcn-amd-amdhsa--gfx950"
.text
.globl %s_kernel
.p2align 8
.type %s_kernel,@function
%s_kernel:
""" % (NAME, NAME, NAME) + "\n".join(lines) + """
.section .rodata,"a"
.p2align 6
.amdhsa_kernel %s_kernel
  .amdhsa_next_free_vgpr 256
  .amdhsa_next_free_sgpr 102
  .amdhsa_accum_offset 256
  .amdhsa_group_segment_fixed_size 0
  .amdhsa_kernarg_size 144
  .amdhsa_user_sgpr_count 2
  .amdhsa_user_sgpr_kernarg_segment_ptr 1
  .amdhsa_system_sgpr_workgroup_id_x 1
.end_amdhsa_kernel
""" % NAME
open(sys.argv[1], "w").write(text)
```

```python
import sys, struct, math, os
sys.path.insert(0, os.path.dirname(os.path.abspath(__file__)))
import asmcheck

NAME = "gated_mix__grouped_kv_mqa__ssm_conv_s4__prompt"
OPT = dict(timing=0, force_fb=0, spin=400000, dbgts=0, nst=2, cprio=2, aprio=1, kvsleep=0, splitA=6, kprio=2, a1prio=3, xconv=0, xwo=0, xxc=0, xkgen=0, xpre=4, touch=0, a0prio=0, wopf=1, wothr=4, obar=1)
for a in sys.argv[2:]:
    k, v = a.split("=")
    OPT[k] = int(v)

FLAG_KV = 0x1000
FLAG_O = 0x10000
FLAG_B = 0x30000
ALIVE = 0x50000
G1 = 0x60000
FLAG_XT = 0x70000
XT = 0x600000
KV = 0x100000
OW = 0x200000
B2 = 0x400000
TSB = 0x800000
WS_BYTES = 0x1000000
NONCE_ADD = 0x9E3779B9

L = []


def e(s):
    for x in s.split("\n"):
        x = x.strip()
        if x:
            L.append(x if x.endswith(":") else "    " + x)


def f32(x):
    return struct.unpack("<I", struct.pack("<f", x))[0]


def vr(a, n=1):
    return "v%d" % a if n == 1 else "v[%d:%d]" % (a, a + n - 1)


def sr(a, n=1):
    return "s%d" % a if n == 1 else "s[%d:%d]" % (a, a + n - 1)


def srd(d, base, nbytes, add=None):
    if add is None:
        e("s_mov_b32 s%d, s%d" % (d, base))
        e("s_mov_b32 s%d, s%d" % (d + 1, base + 1))
    else:
        e("s_add_u32 s%d, s%d, %s" % (d, base, add))
        e("s_addc_u32 s%d, s%d, 0" % (d + 1, base + 1))
    e("s_mov_b32 s%d, 0x%x" % (d + 2, nbytes))
    e("s_mov_b32 s%d, 0x20000" % (d + 3))


def mfma(d, a, b, c):
    e("v_mfma_f32_32x32x16_bf16 %s, %s, %s, %s" % (vr(d, 16), vr(a, 4), vr(b, 4), "0" if c is None else vr(c, 16)))


P_X, P_WQ, P_WK, P_WV, P_WO = 16, 18, 20, 22, 24
P_ARE, P_AIM, P_BRE, P_BIM, P_CRE, P_CIM, P_LDT, P_DSK, P_GW, P_OUT, P_WS = 28, 30, 32, 34, 36, 38, 40, 42, 44, 46, 48
SX, SWS = 52, 56
S_WAVE, S_NONCE = 3, 4
V_LANE = 1
LOG2E = 1.4426950408889634

stamp_n = [0]


def stamp(idx):
    if OPT["timing"]:
        e("s_memrealtime s[96:97]")
        e("s_waitcnt lgkmcnt(0)")
        e("v_writelane_b32 v0, s96, %d" % idx)


def stampd(reg):
    if OPT["timing"]:
        e("s_memrealtime s[%d:%d]" % (reg, reg + 1))


def stampw(idx, reg):
    if OPT["timing"]:
        e("v_writelane_b32 v0, s%d, %d" % (reg, idx))


def cstamp(idx):
    if OPT["timing"]:
        e("s_memtime s[96:97]")
        e("s_waitcnt lgkmcnt(0)")
        e("v_writelane_b32 v0, s96, %d" % idx)


def dbg_stamp(lo, hi, slot0, start):
    if not OPT["dbgts"]:
        return
    tag = "%d" % slot0
    e("s_sub_u32 s96, s2, %d" % lo)
    e("s_cmp_ge_u32 s96, %d" % (hi - lo))
    e("s_cbranch_scc1 L_dbg%s" % tag)
    e("s_cmp_lg_u32 s3, 0")
    e("s_cbranch_scc1 L_dbg%s" % tag)
    if not start:
        e("s_waitcnt vmcnt(0)")
        e("s_memrealtime s[94:95]")
        e("s_waitcnt lgkmcnt(0)")
    e("s_mov_b32 s72, s50")
    e("s_mov_b32 s73, s51")
    e("s_mov_b32 s74, 256")
    e("s_mov_b32 s75, 0x20000")
    e("s_add_u32 s96, s96, %d" % slot0)
    e("s_lshl_b32 s96, s96, 2")
    e("v_mov_b32 v2, s94")
    e("s_mov_b32 exec_lo, 1")
    e("s_mov_b32 exec_hi, 0")
    e("buffer_store_dword v2, off, s[72:75], s96")
    e("s_mov_b64 exec, -1")
    e("L_dbg%s:" % tag)


def stamp_flush():
    if OPT["timing"]:
        e("s_lshl_b32 s96, s2, 2")
        e("s_add_u32 s96, s96, s3")
        e("s_lshl_b32 s96, s96, 8")
        e("s_add_u32 s96, s96, 0x%x" % TSB)
        e("v_lshlrev_b32 v3, 2, v%d" % V_LANE)
        e("buffer_store_dword v0, v3, s[%d:%d], s96 offen" % (SWS, SWS + 3))


def poll(tag, vaddr, vtmp, sleep=0, n=1, step=0, cnt=None):
    if OPT["timing"] and cnt is not None:
        e("buffer_load_dword v%d, v%d, s[%d:%d], 0 offen sc1" % (vtmp, vaddr, SWS, SWS + 3))
        e("s_waitcnt vmcnt(0)")
        stamp(cnt + 1)
    e("s_mov_b32 s5, 0")
    e("L_poll_%s:" % tag)
    for k in range(n):
        if k == 0:
            e("buffer_load_dword v%d, v%d, s[%d:%d], 0 offen sc1" % (vtmp, vaddr, SWS, SWS + 3))
        else:
            e("s_mov_b32 s6, 0x%x" % (k * step))
            e("buffer_load_dword v%d, v%d, s[%d:%d], s6 offen sc1" % (vtmp + k, vaddr, SWS, SWS + 3))
    e("s_waitcnt vmcnt(0)")
    e("v_cmp_ne_u32 vcc, s%d, v%d" % (S_NONCE, vtmp))
    for k in range(1, n):
        e("v_cmp_ne_u32 s[6:7], s%d, v%d" % (S_NONCE, vtmp + k))
        e("s_or_b64 vcc, vcc, s[6:7]")
    e("s_cmp_eq_u64 vcc, 0")
    e("s_cbranch_scc1 L_pollok_%s" % tag)
    if sleep:
        e("s_sleep %d" % sleep)
    e("s_add_u32 s5, s5, 1")
    e("s_cmp_lt_u32 s5, %d" % OPT["spin"])
    e("s_cbranch_scc1 L_poll_%s" % tag)
    e("L_pollok_%s:" % tag)
    if OPT["timing"] and cnt is not None:
        e("v_writelane_b32 v0, s5, %d" % cnt)


def flag_store(soff_reg, vtmp):
    e("v_mov_b32 v%d, s%d" % (vtmp, S_NONCE))
    e("s_mov_b32 exec_lo, 1")
    e("s_mov_b32 exec_hi, 0")
    e("buffer_store_dword v%d, off, s[%d:%d], s%d sc1" % (vtmp, SWS, SWS + 3, soff_reg))
    e("s_mov_b64 exec, -1")


def x_swizzle_addrs(vg, vr0, vr1, t0, t1):
    e("v_lshrrev_b32 v%d, 2, v1" % t0)
    e("v_mul_u32_u24 v%d, 896, v%d" % (vg, t0))
    e("v_lshrrev_b32 v%d, 4, v1" % t0)
    e("v_xor_b32 v%d, v%d, v1" % (t0, t0))
    e("v_and_b32 v%d, 3, v%d" % (t0, t0))
    e("v_lshl_add_u32 v%d, v%d, 4, v%d" % (vg, t0, vg))
    e("v_and_b32 v%d, 31, v1" % t0)
    e("v_lshlrev_b32 v%d, 6, v%d" % (vr0, t0))
    e("v_lshrrev_b32 v%d, 2, v1" % t0)
    e("v_lshrrev_b32 v%d, 5, v1" % t1)
    e("v_xor_b32 v%d, v%d, v%d" % (t0, t0, t1))
    e("v_and_b32 v%d, 3, v%d" % (t0, t0))
    e("v_lshl_add_u32 v%d, v%d, 4, v%d" % (vr0, t0, vr0))
    e("v_xor_b32 v%d, 32, v%d" % (vr1, vr0))


def tr_addr(vd, hmul, stride, t0, t1):
    e("v_lshrrev_b32 v%d, 5, v1" % t0)
    e("v_mul_u32_u24 v%d, %d, v%d" % (t0, hmul, t0))
    e("v_bfe_u32 v%d, v1, 2, 2" % t1)
    e("v_add_u32 v%d, v%d, v%d" % (t0, t0, t1))
    e("v_mul_u32_u24 v%d, %d, v%d" % (vd, stride, t0))
    e("v_and_b32 v%d, 16, v1" % t0)
    e("v_lshl_add_u32 v%d, v%d, 1, v%d" % (vd, t0, vd))
    e("v_and_b32 v%d, 3, v1" % t0)
    e("v_lshl_add_u32 v%d, v%d, 3, v%d" % (vd, t0, vd))


def prologue():
    e("s_cmp_ge_u32 s2, 512")
    e("s_cbranch_scc1 L_end")
    if OPT["timing"]:
        e("s_memrealtime s[96:97]")
    if OPT["dbgts"]:
        e("s_memrealtime s[94:95]")
        e("s_load_dwordx2 s[50:51], s[0:1], 128")
    e("s_load_dwordx16 s[16:31], s[0:1], 0")
    e("s_load_dwordx16 s[32:47], s[0:1], 64")
    e("s_load_dwordx2 s[48:49], s[0:1], 136")
    e("v_and_b32 v1, 63, v0")
    e("v_lshrrev_b32 v2, 6, v0")
    e("v_readfirstlane_b32 s3, v2")
    e("s_cmp_lt_u32 s2, 256")
    e("s_cbranch_scc1 L_roleS")


A_IMG, A_XS, A_QX, A_INB = 0, 30720, 73728, 0
QF, OA, SS, PP, KVR = 64, 96, 160, 16, 192
V_G = 15


def role_a():
    S_HEAD, S_TT, S_X0, S_X1 = 8, 9, 10, 11
    SWQ, SG, SKV = 60, 64, 68
    XL = 128
    WF, DQ = 16, 240
    vXg, vXr0, vXr1, vXw, vWg, vWr, vGa, vGl = 2, 3, 4, 5, 6, 7, 8, 9
    vE, vG0, vG1 = 10, 11, 12
    e("s_and_b32 s5, s2, 7")
    e("s_bfe_u32 s6, s2, 0x50003")
    e("s_lshr_b32 s7, s6, 4")
    e("s_lshl_b32 s5, s5, 1")
    e("s_add_u32 s5, s5, s7")
    e("s_and_b32 s%d, s6, 15" % S_HEAD)
    e("s_lshl_b32 s%d, s5, 2" % S_TT)
    e("s_add_u32 s%d, s%d, s3" % (S_TT, S_TT))
    e("s_mul_i32 s%d, s%d, 28672" % (S_X0, S_TT))
    e("s_add_u32 s%d, s%d, 14336" % (S_X1, S_X0))
    e("s_setprio %d" % OPT["a0prio"])
    e("v_bfe_u32 v13, v1, 2, 3")
    e("v_mul_u32_u24 v%d, 3584, v13" % vXg)
    e("v_and_b32 v14, 3, v1")
    e("v_lshl_add_u32 v%d, v14, 4, v%d" % (vXg, vXg))
    e("v_lshrrev_b32 v13, 5, v1")
    e("v_lshl_add_u32 v%d, v13, 6, v%d" % (vXg, vXg))
    e("v_lshrrev_b32 v13, 2, v1")
    e("v_mul_u32_u24 v%d, 896, v13" % vWg)
    e("v_lshl_add_u32 v%d, v14, 4, v%d" % (vWg, vWg))
    e("v_lshlrev_b32 v%d, 1, v1" % vGa)
    e("s_mul_i32 s12, s3, %d" % (112 * 896))
    e("s_mul_i32 s13, s%d, 56" % S_HEAD)
    e("s_add_u32 s12, s12, s13")
    e("s_mul_i32 s13, s3, %d" % (112 * 64))
    e("s_mul_i32 s14, s3, 224")
    e("s_mov_b32 m0, s13")
    e("s_waitcnt lgkmcnt(0)")
    if OPT["timing"]:
        e("v_writelane_b32 v0, s96, 0")
    stamp(20)
    cstamp(29)
    e("s_load_dword s4, s[%d:%d], 0" % (P_WS, P_WS + 1))
    srd(SWQ, P_WQ, 448 * 896)
    srd(SX, P_X, 2048 * 896)
    for m in range(7):
        e("buffer_load_dwordx4 v%d, s[%d:%d], s12 offen lds" % (vWg, SWQ, SWQ + 3))
        if m < 6:
            e("s_add_u32 m0, m0, 1024")
            e("s_add_u32 s12, s12, 14336")
    srd(SG, P_GW, 896)
    e("buffer_load_ushort v%d, v%d, s[%d:%d], s14 offen" % (vG0, vGa, SG, SG + 3))
    e("buffer_load_ushort v%d, v%d, s[%d:%d], s14 offen offset:128" % (vG1, vGa, SG, SG + 3))
    PRE = OPT["xpre"]

    def xload(b):
        for g in range(4):
            e("buffer_load_dwordx4 %s, v%d, s[%d:%d], s%d offen offset:%d" % (vr(XL + 16 * b + 4 * g, 4), vXg, SX, SX + 3, S_X0, 896 * g + 128 * b))

    NT_A = 1 if OPT["touch"] else 0

    def touch_a():
        if OPT["touch"]:
            e("buffer_load_dword v14, v4, s[%d:%d], 0 offen sc1" % (SWS, SWS + 3))

    if OPT["obar"]:
        e("s_barrier")
    for b in range(PRE):
        xload(b)
    stampd(90)
    e("s_setprio %d" % OPT["a1prio"])
    srd(SWS, P_WS, WS_BYTES)
    if OPT["touch"]:
        e("s_lshl_b32 s5, s3, 16")
        e("s_add_u32 s5, s5, 0x%x" % KV)
        e("v_lshlrev_b32 v4, 12, v1")
        e("v_and_b32 v4, 0xffff, v4")
        e("v_add_u32 v4, s5, v4")
        e("s_lshl_b32 s5, s%d, 4" % S_TT)
        e("s_add_u32 s5, s5, s%d" % S_HEAD)
        e("s_lshl_b32 s6, s5, 11")
        e("s_add_u32 s6, s6, 0x%x" % OW)
        e("v_writelane_b32 v4, s6, 16")
        e("s_lshl_b32 s6, s5, 7")
        e("s_add_u32 s6, s6, 0x%x" % FLAG_O)
        e("v_writelane_b32 v4, s6, 17")
        e("s_lshl_b32 s5, s3, 13")
        e("s_add_u32 s5, s5, 0x%x" % FLAG_KV)
        e("v_writelane_b32 v4, s5, 18")
        e("s_add_u32 s5, s5, 4096")
        e("v_writelane_b32 v4, s5, 19")
        if PRE == 7:
            touch_a()
    tr_addr(vWr, 32, 64, 13, 14)
    e("v_lshlrev_b32 v13, 6, v1")
    e("v_add_u32 v%d, s13, v13" % vGl)
    e("s_add_u32 s12, s3, %d" % (KV >> 16))
    e("s_lshl_b32 s12, s12, 16")
    srd(SKV, P_WS, 65536, "s12")
    for k, msk in enumerate((0x55555555, 0xAAAAAAAA, 0x33333333, 0xCCCCCCCC)):
        e("s_mov_b32 s%d, 0x%x" % (72 + 2 * k, msk))
        e("s_mov_b32 s%d, 0x%x" % (73 + 2 * k, msk))
    e("s_waitcnt vmcnt(%d)" % (4 * PRE + (NT_A if PRE == 7 else 0)))
    e("ds_write_b16 v%d, v%d offset:56" % (vGl, vG0))
    e("ds_write_b16 v%d, v%d offset:%d" % (vGl, vG1, 56 + 4096))
    e("s_waitcnt lgkmcnt(0)")
    e("s_barrier")
    stampw(6, 90)
    stamp(1)
    cstamp(27)
    e("s_add_u32 s4, s4, 0x%x" % NONCE_ADD)

    def wread(b):
        for p in range(4):
            for q in range(2):
                e("ds_read_b64_tr_b16 %s, v%d offset:%d" % (vr(WF + 16 * b + 4 * p + 2 * q, 2), vWr, (64 * b + 8 * p + 4 * q) * 64))

    X1, X2 = "quad_perm:[1,0,3,2] row_mask:0xf bank_mask:0xf", "quad_perm:[2,3,0,1] row_mask:0xf bank_mask:0xf"

    first = [True]
    TREG = {}

    def qm(b, p):
        mfma(DQ, WF + 16 * b + 4 * p, TREG[(b, p)], None if first[0] else DQ)
        first[0] = False

    wread(0)
    for b in range(7):
        R = [XL + 16 * b + 4 * g for g in range(4)]
        P_, Q_ = 8, (12 if b == 0 else XL + 16 * (b - 1) + 4)
        TREG[(b, 0)], TREG[(b, 1)], TREG[(b, 2)], TREG[(b, 3)] = R[0], R[2], Q_, R[3]
        seq = [(R[0] + k, R[1] + k, P_ + k, X1) for k in range(4)] + [(R[2] + k, R[3] + k, Q_ + k, X1) for k in range(4)]
        seq += [(P_ + k, Q_ + k, R[0] + k, X2) for k in range(4)] + [(R[1] + k, R[3] + k, R[2] + k, X2) for k in range(4)]
        if b + PRE < 7:
            xload(b + PRE)
            if b + PRE == 6:
                touch_a()
        if b > 0:
            e("s_waitcnt lgkmcnt(0)")
        if b < 6:
            wread(b + 1)
        e("s_mov_b64 vcc, s[72:73]")
        e("s_waitcnt vmcnt(%d)" % (4 * (min(b + PRE, 6) - b) + (NT_A if b + PRE >= 6 else 0)))
        for i in range(18):
            if 1 <= i <= 16:
                A_, B_, N_, pat = seq[i - 1]
                e("v_xor_b32 v%d, v%d, v%d" % (A_, A_, N_))
            if i == 8:
                e("s_mov_b64 vcc, s[76:77]")
            if i < 16:
                A_, B_, N_, pat = seq[i]
                e("v_cndmask_b32_dpp v%d, v%d, v%d, vcc %s" % (N_, B_, A_, pat))
            if i == 17:
                qm(b, 2)
            if i >= 2:
                A_, B_, N_, pat = seq[i - 2]
                e("v_xor_b32_dpp v%d, v%d, v%d %s" % (B_, A_, B_, pat))
            if b > 0 and i == 2:
                qm(b - 1, 1)
            if b > 0 and i == 7:
                qm(b - 1, 3)
            if i == 12:
                if b == 0:
                    e("s_waitcnt lgkmcnt(8)")
                qm(b, 0)
    qm(6, 1)
    qm(6, 3)
    cstamp(28)
    stamp(7)
    e("s_cmp_lg_u32 s3, 0")
    e("s_cbranch_scc1 L_a_noalive")
    e("s_lshl_b32 s5, s2, 7")
    e("s_add_u32 s5, s5, 0x%x" % ALIVE)
    flag_store(5, 13)
    e("L_a_noalive:")
    e("s_mov_b32 s12, 0x%x" % f32(28 ** -0.5 * LOG2E))
    e("s_mov_b32 s14, 0")
    e("s_mov_b32 s15, -1")
    e("v_lshlrev_b32 v2, 4, v1")
    e("s_lshl_b32 s5, s3, 11")
    e("s_add_u32 s5, s5, %d" % A_QX)
    e("v_add_u32 v3, s5, v2")
    for i in range(1, 4):
        e("s_add_u32 s5, s3, %d" % i)
        e("s_and_b32 s5, s5, 3")
        e("s_lshl_b32 s6, s5, 11")
        e("s_add_u32 s6, s6, %d" % A_QX)
        e("v_add_u32 v%d, s6, v2" % (3 + i))
        e("s_mul_i32 s6, s5, 12288")
        e("s_add_u32 s6, s6, %d" % (A_INB + (i - 1) * 4096))
        e("v_add_u32 v%d, s6, v2" % (7 + i))
    e("s_mul_i32 s6, s3, 12288")
    e("v_add_u32 v11, s6, v2")
    e("v_mul_f32 v%d, 0x%x, v%d" % (V_G, f32(-LOG2E), DQ + 12))
    for k in range(8):
        e("v_pk_mul_f32 %s, %s, s[12:13] op_sel_hi:[1,0]" % (vr(DQ + 2 * k, 2), vr(DQ + 2 * k, 2)))
    e("v_exp_f32 v%d, v%d" % (V_G, V_G))
    for k in range(8):
        e("v_cvt_pk_bf16_f32 v%d, v%d, v%d" % (QF + k, DQ + 2 * k, DQ + 2 * k + 1))
    e("v_cndmask_b32 v%d, v%d, 0, s[14:15]" % (QF + 6, QF + 6))
    e("v_cndmask_b32 v%d, v%d, 0, s[14:15]" % (QF + 7, QF + 7))
    e("ds_write_b128 v3, %s" % vr(QF, 4))
    e("ds_write_b128 v3, %s offset:1024" % vr(QF + 4, 4))
    for k in range(4):
        e("v_pk_mov_b32 %s, 0, 0" % vr(PP + 8 + 2 * k, 2))
    for k in range(4):
        e("v_pk_mov_b32 %s, 0, 0" % vr(KVR + 56 + 2 * k, 2))
    e("v_add_f32 v%d, 1.0, v%d" % (V_G, V_G))
    e("v_rcp_f32 v%d, v%d" % (V_G, V_G))
    e("s_lshl_b32 s5, s3, 13")
    e("s_add_u32 s5, s5, 0x%x" % FLAG_KV)
    e("v_lshlrev_b32 v12, 7, v1")
    e("v_add_u32 v12, s5, v12")
    e("s_waitcnt lgkmcnt(0)")
    e("s_barrier")
    for i in range(1, 4):
        e("ds_read_b128 %s, v%d" % (vr(QF + 8 * i, 4), 3 + i))
        e("ds_read_b128 %s, v%d offset:1024" % (vr(QF + 8 * i + 4, 4), 3 + i))
    for i in range(4):
        mfma(OA + 16 * i, PP + 8, PP + 8, None)
    stamp(2)
    poll("kv", 12, 13, sleep=OPT["kvsleep"], cnt=24)
    stamp(3)

    def Kf(b, k):
        return KVR + 16 * b + 4 * k

    def Vf(b, k):
        return KVR + 16 * b + 8 + 4 * k

    def ld(reg, soff, off):
        e("buffer_load_dwordx4 %s, v2, s[%d:%d], %s offen offset:%d sc1" % (vr(reg, 4), SKV, SKV + 3, soff, off))

    S_OFF = 13
    for b in range(4):
        if b == 0:
            so = "0"
        else:
            e("s_mov_b32 s%d, %d" % (S_OFF, 4096 * b))
            so = "s%d" % S_OFF
        ld(Kf(b, 0), so, 0)
        ld(Kf(b, 1), so, 1024)
        if b < 3:
            ld(Vf(b, 0), so, 2048)
            ld(Vf(b, 1), so, 3072)
    e("s_setprio %d" % OPT["aprio"])
    e("s_waitcnt vmcnt(12) lgkmcnt(0)")
    stamp(8)
    cstamp(22)
    mfma(SS, Kf(0, 0), QF, None)
    mfma(SS, Kf(0, 1), QF + 4, SS)

    def M1(n):
        mfma(SS + 16 * ((n + 1) & 1), Kf(((n + 1) >> 2) & 3, 0), QF + 8 * ((n + 1) & 3), None)

    e("s_nop 10")
    M1(0)
    e("L_attn:")
    for n in range(16):
        S = SS + 16 * (n & 1)
        Sn = SS + 16 * ((n + 1) & 1)
        P = PP + 8 * (n & 1)
        Pp = PP + 8 * ((n - 1) & 1)
        ip, bp = (n - 1) & 3, ((n - 1) >> 2) & 3
        i1, b1 = (n + 1) & 3, ((n + 1) >> 2) & 3

        def ex(a, b_):
            for r in range(a, b_):
                e("v_exp_f32 v%d, v%d" % (S + r, S + r))

        def cv(a, b_):
            for k in range(a, b_):
                e("v_cvt_pk_bf16_f32 v%d, v%d, v%d" % (P + k, S + 2 * k, S + 2 * k + 1))

        if n % 4 == 1:
            e("s_waitcnt vmcnt(10)")
        if n % 4 == 3:
            ld(Kf((n >> 2) & 3, 0), "s%d" % S_OFF, 0)
        ex(0, 4)
        mfma(OA + 16 * ip, Vf(bp, 0), Pp, OA + 16 * ip)
        if n % 4 == 1:
            ld(Vf(((n >> 2) + 3) & 3, 0), "s%d" % S_OFF, 2048)
        if n % 4 == 3:
            ld(Kf((n >> 2) & 3, 1), "s%d" % S_OFF, 1024)
        ex(4, 8)
        cv(0, 2)
        mfma(Sn, Kf(b1, 1), QF + 8 * i1 + 4, Sn)
        if n % 4 == 1:
            ld(Vf(((n >> 2) + 3) & 3, 1), "s%d" % S_OFF, 3072)
        ex(8, 12)
        cv(2, 4)
        mfma(OA + 16 * ip, Vf(bp, 1), Pp + 4, OA + 16 * ip)
        if n % 4 == 1:
            e("s_add_u32 s%d, s%d, 4096" % (S_OFF, S_OFF))
        if n % 4 == 2:
            e("s_waitcnt vmcnt(10)")
        if n == 15:
            e("s_cmp_lt_u32 s%d, %d" % (S_OFF, 4096 * 19))
        ex(12, 16)
        cv(4, 8)
        M1(n + 1)
    e("s_cbranch_scc1 L_attn")
    mfma(OA + 48, Vf(3, 0), PP + 8, OA + 48)
    mfma(OA + 48, Vf(3, 1), PP + 12, OA + 48)
    cstamp(23)
    stamp(4)
    for i in range(1, 4):
        for q in range(4):
            e("ds_write_b128 v%d, %s offset:%d" % (7 + i, vr(OA + 16 * i + 4 * q, 4), q * 1024))
    e("s_waitcnt vmcnt(0) lgkmcnt(0)")
    e("s_barrier")
    T = 160
    for k in range(12):
        e("ds_read_b128 %s, v11 offset:%d" % (vr(T + 4 * k, 4), k * 1024))
    e("s_lshl_b32 s5, s%d, 4" % S_TT)
    e("s_add_u32 s5, s5, s%d" % S_HEAD)
    e("s_lshl_b32 s6, s5, 11")
    e("s_add_u32 s6, s6, 0x%x" % OW)
    e("s_lshl_b32 s7, s5, 7")
    e("s_add_u32 s7, s7, 0x%x" % FLAG_O)
    for i in range(3):
        e("s_waitcnt lgkmcnt(%d)" % (8 - 4 * i))
        for k in range(8):
            e("v_pk_add_f32 %s, %s, %s" % (vr(OA + 2 * k, 2), vr(OA + 2 * k, 2), vr(T + 16 * i + 2 * k, 2)))
    e("v_pk_mul_f32 v[4:5], %s, 0" % vr(OA, 2))
    for k in range(1, 8):
        e("v_pk_fma_f32 v[4:5], %s, 0, v[4:5]" % vr(OA + 2 * k, 2))
    e("s_mov_b32 s12, 0x%x" % f32(2.0 ** -60))
    e("s_mov_b32 s13, 0x%x" % f32(2.0 ** 60))
    e("v_cmp_nle_f32 s[72:73], s12, v%d" % (OA + 12))
    e("v_cmp_nge_f32 s[74:75], s13, v%d" % (OA + 12))
    e("v_cmp_u_f32 vcc, v4, v5")
    e("s_or_b32 s73, s73, s75")
    e("s_or_b32 s73, s73, vcc_hi")
    e("s_or_b32 s73, s73, vcc_lo")
    if OPT["force_fb"]:
        e("s_mov_b32 s73, 1")
    e("s_cmp_lg_u32 s73, 0")
    e("s_cbranch_scc1 L_fb")
    e("L_fin:")
    e("v_rcp_f32 v4, v%d" % (OA + 12))
    e("v_sub_f32 v6, 1.0, v%d" % V_G)
    e("v_mul_f32 v4, v4, v%d" % V_G)
    e("v_mov_b32 v5, v4")
    e("v_permlane32_swap_b32 v5, v4")
    for k in range(8):
        e("v_pk_mul_f32 %s, %s, v[4:5] op_sel_hi:[1,0]" % (vr(OA + 2 * k, 2), vr(OA + 2 * k, 2)))
    for k in range(8):
        e("v_cvt_pk_bf16_f32 v%d, v%d, v%d" % (32 + k, OA + 2 * k, OA + 2 * k + 1))
    e("v_cndmask_b32 v38, v38, 0, s[14:15]")
    e("v_cndmask_b32 v39, v39, 0, s[14:15]")
    e("buffer_store_dwordx4 v[32:35], v2, s[%d:%d], s6 offen sc1" % (SWS, SWS + 3))
    e("buffer_store_dwordx4 v[36:39], v2, s[%d:%d], s6 offen offset:1024 sc1" % (SWS, SWS + 3))
    e("s_cmp_lg_u32 s%d, 0" % S_HEAD)
    e("s_cbranch_scc1 L_a_nog")
    e("s_lshl_b32 s5, s%d, 7" % S_TT)
    e("s_add_u32 s5, s5, 0x%x" % (G1 - 128))
    e("v_lshlrev_b32 v7, 2, v1")
    e("s_mov_b32 exec_lo, 0")
    e("buffer_store_dword v6, v7, s[%d:%d], s5 offen sc1" % (SWS, SWS + 3))
    e("s_mov_b32 exec_lo, -1")
    e("L_a_nog:")
    e("s_waitcnt vmcnt(0)")
    flag_store(7, 8)
    stamp(5)
    cstamp(30)
    dbg_stamp(256, 264, 0, True)
    stamp_flush()
    e("s_endpgm")

    SALL = 76
    e("L_fb:")
    srd(SALL, P_WS, 262144, "0x%x" % KV)
    e("v_mov_b32 v7, 0xff800000")
    e("s_mov_b32 s12, 0")
    e("L_fb1:")
    e("buffer_load_dwordx4 v[192:195], v2, s[%d:%d], s12 offen sc1" % (SALL, SALL + 3))
    e("buffer_load_dwordx4 v[196:199], v2, s[%d:%d], s12 offen offset:1024 sc1" % (SALL, SALL + 3))
    e("s_waitcnt vmcnt(0)")
    mfma(SS, 192, QF, None)
    mfma(SS, 196, QF + 4, SS)
    for k in range(8):
        e("v_max3_f32 v7, v7, v%d, v%d" % (SS + 2 * k, SS + 2 * k + 1))
    e("s_add_u32 s12, s12, 4096")
    e("s_cmp_lt_u32 s12, 262144")
    e("s_cbranch_scc1 L_fb1")
    e("v_mov_b32 v8, v7")
    e("v_permlane32_swap_b32 v8, v7")
    e("v_max_f32 v7, v7, v8")
    for k in range(16):
        e("v_mov_b32 v%d, 0" % (OA + k))
    e("s_mov_b32 s12, 0")
    e("L_fb2:")
    for k in range(4):
        e("buffer_load_dwordx4 %s, v2, s[%d:%d], s12 offen offset:%d sc1" % (vr(192 + 4 * k, 4), SALL, SALL + 3, 1024 * k))
    e("s_waitcnt vmcnt(0)")
    mfma(SS, 192, QF, None)
    mfma(SS, 196, QF + 4, SS)
    for k in range(16):
        e("v_sub_f32 v%d, v%d, v7" % (SS + k, SS + k))
    for k in range(16):
        e("v_exp_f32 v%d, v%d" % (SS + k, SS + k))
    for k in range(8):
        e("v_cvt_pk_bf16_f32 v%d, v%d, v%d" % (PP + k, SS + 2 * k, SS + 2 * k + 1))
    mfma(OA, 200, PP, OA)
    mfma(OA, 204, PP + 4, OA)
    e("s_add_u32 s12, s12, 4096")
    e("s_cmp_lt_u32 s12, 262144")
    e("s_cbranch_scc1 L_fb2")
    e("s_nop 8")
    e("s_branch L_fin")


S_STG = 16896
S_INB1 = 16896
S_WL = 49664
S_PX = 67584
KR0, KR1, XC0 = 0, 7680, 15360
XCS = 4160
L_CPX = 48640
S_OF, S_G1, S_OT = 0, 32768, 40960


def cmul(d, x, m, t):
    e("v_pk_mul_f32 %s, %s, %s op_sel_hi:[1,0]" % (vr(t, 2), vr(x, 2), vr(m, 2)))
    e("v_pk_fma_f32 %s, %s, %s, %s op_sel:[1,1,0] op_sel_hi:[0,1,1] neg_lo:[1,0,0]" % (vr(d, 2), vr(x, 2), vr(m, 2), vr(t, 2)))


def role_s():
    S_ID, S_J, S_CP = 8, 9, 15
    SW, SWO, SOUT = 60, 64, 68
    vE = 10
    PRM = 240
    XTR = 128

    def xt_flag(tag):
        e("s_cmp_ge_u32 s84, 0x%x" % (FLAG_XT + 7 * 64 * 128))
        e("s_cbranch_scc1 L_s_noxf%s" % tag)
        e("s_waitcnt vmcnt(0)")
        flag_store(84, 14)
        e("L_s_noxf%s:" % tag)

    e("L_roleS:")
    e("s_setprio 3")
    e("s_mov_b32 s%d, s2" % S_ID)
    e("s_lshr_b32 s%d, s%d, 3" % (S_J, S_ID))
    e("s_and_b32 s10, s%d, 7" % S_ID)
    e("s_mul_i32 s%d, s10, 28" % S_CP)
    e("s_add_u32 s%d, s%d, s%d" % (S_CP, S_CP, S_J))
    vXg, vXr0, vXr1, vL16, vWr = 2, 3, 4, 5, 6
    S_TAU, S_KIND = 11, 12
    e("v_lshrrev_b32 v13, 2, v1")
    e("v_mul_u32_u24 v%d, 896, v13" % vXg)
    e("v_lshrrev_b32 v13, 4, v1")
    e("v_xor_b32 v13, v13, v1")
    e("v_and_b32 v13, 3, v13")
    e("v_lshl_add_u32 v%d, v13, 4, v%d" % (vXg, vXg))
    e("v_lshlrev_b32 v%d, 4, v1" % vL16)
    e("s_lshl_b32 s10, s10, 3")
    e("s_sub_u32 s5, s%d, 16" % S_J)
    e("s_lshr_b32 s5, s5, 1")
    e("s_add_u32 s%d, s10, s5" % S_TAU)
    e("s_and_b32 s%d, s%d, 1" % (S_KIND, S_J))
    e("s_lshl_b32 s5, s3, 13")
    e("s_add_u32 s5, s5, 16896")
    e("s_cmp_eq_u32 s3, 0")
    e("s_cselect_b32 s13, 8192, s5")
    e("s_mul_i32 s14, s3, 7232")
    e("s_add_u32 s14, s14, %d" % S_WL)
    e("s_mul_i32 s5, s%d, 28672" % S_TAU)
    e("s_lshl_b32 s6, s3, 8")
    e("s_add_u32 s5, s5, s6")
    e("s_add_u32 s6, s5, 14336")
    e("s_mov_b32 m0, s13")
    e("s_mov_b32 s%d, %d" % (SW + 2, 448 * 56))
    e("s_mov_b32 s%d, 0x20000" % (SW + 3))
    e("s_mov_b32 s%d, 0x%x" % (SX + 2, 2048 * 896))
    e("s_mov_b32 s%d, 0x20000" % (SX + 3))
    e("s_cmp_lt_u32 s%d, 28" % S_J)
    e("s_cselect_b32 s7, s%d, 0" % S_CP)
    e("s_lshl_b32 s74, s7, 2")
    e("s_cmp_lt_u32 s%d, 16" % S_J)
    e("s_waitcnt lgkmcnt(0)")
    if OPT["timing"]:
        e("v_writelane_b32 v0, s96, 0")
    stamp(20)
    e("s_load_dword s4, s[%d:%d], 0" % (P_WS, P_WS + 1))
    e("s_load_dword s72, s[%d:%d], s74" % (P_LDT, P_LDT + 1))
    e("s_load_dword s73, s[%d:%d], s74" % (P_DSK, P_DSK + 1))
    e("s_cbranch_scc1 L_s_nokv1")
    e("s_mov_b32 s%d, s%d" % (SX, P_X))
    e("s_mov_b32 s%d, s%d" % (SX + 1, P_X + 1))
    e("s_cmp_eq_u32 s%d, 0" % S_KIND)
    e("s_cselect_b32 s%d, s%d, s%d" % (SW, P_WK, P_WV))
    e("s_cselect_b32 s%d, s%d, s%d" % (SW + 1, P_WK + 1, P_WV + 1))
    for pp in range(4):
        for rh in range(2):
            e("buffer_load_dwordx4 v%d, s[%d:%d], s%d offen lds" % (vXg, SX, SX + 3, 6 if rh else 5))
            e("s_add_u32 m0, m0, 1024")
            if pp < 3:
                e("s_add_u32 s%d, s%d, 64" % (6 if rh else 5, 6 if rh else 5))
    e("s_mul_i32 s5, s3, 7168")
    e("s_mov_b32 m0, s14")
    e("s_add_u32 s6, s5, 4096")
    for m in range(4):
        e("buffer_load_dwordx4 v%d, s[%d:%d], s5 offen offset:%d lds" % (vL16, SW, SW + 3, 1024 * m))
    e("s_add_u32 m0, m0, 4096")
    for m in range(3):
        e("buffer_load_dwordx4 v%d, s[%d:%d], s6 offen offset:%d lds" % (vL16, SW, SW + 3, 1024 * m))
    e("L_s_nokv1:")
    e("s_lshl_b32 s5, s7, 10")
    e("s_lshl_b32 s6, s3, 8")
    e("s_add_u32 s5, s5, s6")
    e("v_lshlrev_b32 v7, 2, v1")
    e("v_add_u32 v7, s5, v7")
    for k, p in enumerate((P_ARE, P_AIM, P_BRE, P_BIM, P_CRE, P_CIM)):
        e("global_load_dword v%d, v7, s[%d:%d]" % (PRM + k, p, p + 1))
    srd(SWS, P_WS, WS_BYTES)
    srd(SWO, P_WO, 448 * 896)
    NPF = 0
    if OPT["wopf"]:
        e("s_lshl_b32 s5, s%d, 2" % S_J)
        e("s_add_u32 s5, s5, s3")
        e("s_mul_i32 s5, s5, 3200")
        e("v_min_u32 v8, 24, v1")
        e("v_lshlrev_b32 v8, 7, v8")
        e("buffer_load_dword v%d, v8, s[%d:%d], s5 offen" % (PRM + 6, SWO, SWO + 3))
        NPF += 1
    if OPT["touch"]:
        e("v_lshlrev_b32 v8, 16, v1")
        e("v_add_u32 v8, 0x8000, v8")
        e("buffer_load_dword v%d, v8, s[%d:%d], 0 offen sc1" % (PRM + 7, SWS, SWS + 3))
        e("v_add_u32 v8, 0x400000, v8")
        e("buffer_load_dword v%d, v8, s[%d:%d], 0 offen sc1" % (PRM + 8, SWS, SWS + 3))
        NPF += 2
    e("s_cmp_lt_u32 s%d, 16" % S_J)
    e("s_cbranch_scc1 L_s_nokv2")
    e("v_and_b32 v13, 31, v1")
    e("v_lshlrev_b32 v%d, 6, v13" % vXr0)
    e("v_lshrrev_b32 v13, 2, v1")
    e("v_lshrrev_b32 v14, 5, v1")
    e("v_xor_b32 v13, v13, v14")
    e("v_and_b32 v13, 3, v13")
    e("v_lshl_add_u32 v%d, v13, 4, v%d" % (vXr0, vXr0))
    e("v_xor_b32 v%d, 32, v%d" % (vXr1, vXr0))
    tr_addr(vWr, 8, 56, 13, 14)
    e("v_add_u32 v%d, s14, v%d" % (vWr, vWr))
    e("v_add_u32 v%d, s13, v%d" % (vXr0, vXr0))
    e("v_add_u32 v%d, s13, v%d" % (vXr1, vXr1))
    e("s_lshl_b32 s5, s3, 11")
    e("v_add_u32 v8, s5, v%d" % vL16)
    e("s_lshl_b32 s5, s%d, 12" % S_KIND)
    e("s_add_u32 s5, s5, s13")
    e("v_lshrrev_b32 v13, 5, v1")
    e("v_lshlrev_b32 v20, 11, v13")
    e("v_bfe_u32 v13, v1, 2, 2")
    e("v_lshl_add_u32 v20, v13, 6, v20")
    e("v_and_b32 v13, 1, v1")
    e("v_lshl_add_u32 v20, v13, 3, v20")
    e("v_add_u32 v20, s5, v20")
    e("v_bfe_u32 v13, v1, 4, 1")
    e("v_bfe_u32 v14, v1, 1, 1")
    e("v_lshl_add_u32 v13, v13, 1, v14")
    for m in range(4):
        e("v_xor_b32 v14, %d, v13" % m)
        e("v_lshl_add_u32 v%d, v14, 4, v20" % (16 + m))
    e("s_lshl_b32 s5, s3, 1")
    e("s_add_u32 s5, s5, s%d" % S_KIND)
    e("s_lshl_b32 s84, s5, 6")
    e("s_add_u32 s84, s84, s%d" % S_TAU)
    e("s_lshl_b32 s84, s84, 7")
    e("s_add_u32 s84, s84, 0x%x" % FLAG_XT)
    e("s_lshl_b32 s5, s5, 10")
    e("s_mul_i32 s85, s%d, %d" % (S_TAU, 4 * 7168))
    e("s_add_u32 s85, s85, s5")
    e("s_add_u32 s85, s85, 0x%x" % XT)
    XF, WF, DK = 64, 96, 48
    e("s_waitcnt vmcnt(%d) lgkmcnt(0)" % (6 + NPF))
    stamp(1)
    e("s_add_u32 s4, s4, 0x%x" % NONCE_ADD)
    for s in range(8):
        e("ds_read_b128 %s, v%d offset:%d" % (vr(XF + 4 * s, 4), vXr1 if s & 1 else vXr0, (s >> 1) * 2048))
        for q in range(2):
            e("ds_read_b64_tr_b16 %s, v%d offset:%d" % (vr(WF + 4 * s + 2 * q, 2), vWr, s * 896 + q * 224))
    e("s_cmp_eq_u32 s%d, 0" % S_KIND)
    e("s_cbranch_scc0 L_s_kind1")
    for s in range(8):
        e("s_waitcnt lgkmcnt(%d)" % min(15, 21 - 3 * s))
        mfma(DK, WF + 4 * s, XF + 4 * s, None if s == 0 else DK)
    e("s_branch L_s_kindj")
    e("L_s_kind1:")
    for s in range(8):
        e("s_waitcnt lgkmcnt(%d)" % min(15, 21 - 3 * s))
        mfma(DK, XF + 4 * s, WF + 4 * s, None if s == 0 else DK)
    e("L_s_kindj:")
    for m in range(8):
        e("ds_read_b64_tr_b16 %s, v%d offset:%d" % (vr(XTR + 2 * m, 2), 16 + (m & 3), 256 * (m & 3) + 1024 * (m >> 2)))
    e("s_cmp_eq_u32 s%d, 0" % S_KIND)
    e("s_cselect_b32 s74, 0, 0xe0000000")
    e("s_mov_b32 s75, s74")
    e("s_mov_b32 s76, s74")
    e("s_cselect_b32 s78, 0, 0x10000000")
    e("s_mov_b32 s79, s78")
    e("s_cselect_b32 s5, -1, 0")
    e("s_cmp_eq_u32 s3, 1")
    e("s_cselect_b32 s5, s5, 0")
    e("s_or_b32 s77, s74, s5")
    e("v_mov_b32 v9, 0x3f803f80")
    for q in range(4):
        e("ds_write_b128 v8, %s offset:%d" % (vr(DK + 4 * q, 4), (q >> 1) * S_INB1 + (q & 1) * 1024))
    e("s_waitcnt lgkmcnt(0)")
    e("s_barrier")
    e("s_cmp_ge_u32 s3, 2")
    e("s_cbranch_scc1 L_s_kvdone")
    e("s_mul_i32 s5, s3, %d" % S_INB1)
    e("v_add_u32 v8, s5, v%d" % vL16)
    for k in range(8):
        e("ds_read_b128 %s, v8 offset:%d" % (vr(64 + 4 * k, 4), k * 1024))
    e("s_lshl_b32 s5, s%d, 1" % S_TAU)
    e("s_add_u32 s5, s5, s%d" % S_KIND)
    e("s_lshl_b32 s5, s5, 1")
    e("s_add_u32 s5, s5, s3")
    e("s_lshl_b32 s6, s5, 10")
    e("s_add_u32 s6, s6, 0x%x" % KV)
    e("s_lshl_b32 s7, s5, 7")
    e("s_add_u32 s7, s7, 0x%x" % FLAG_KV)
    e("s_waitcnt lgkmcnt(4)")
    for k in range(4):
        e("v_pk_add_f32 %s, %s, %s" % (vr(64 + 2 * k, 2), vr(64 + 2 * k, 2), vr(72 + 2 * k, 2)))
    e("s_waitcnt lgkmcnt(0)")
    for k in range(4):
        e("v_pk_add_f32 %s, %s, %s" % (vr(80 + 2 * k, 2), vr(80 + 2 * k, 2), vr(88 + 2 * k, 2)))
    for k in range(4):
        e("v_pk_add_f32 %s, %s, %s" % (vr(64 + 2 * k, 2), vr(64 + 2 * k, 2), vr(80 + 2 * k, 2)))
    for k in range(4):
        e("v_cvt_pk_bf16_f32 v%d, v%d, v%d" % (72 + k, 64 + 2 * k, 65 + 2 * k))
    for k in range(4):
        e("v_cndmask_b32 v%d, v%d, 0, %s" % (72 + k, 72 + k, "s[74:75]" if k < 2 else "s[76:77]"))
    for k in range(4):
        e("v_cndmask_b32 v%d, v%d, v9, s[78:79]" % (72 + k, 72 + k))
    stamp(17)
    e("buffer_store_dwordx4 v[72:75], v%d, s[%d:%d], s6 offen sc1" % (vL16, SWS, SWS + 3))
    e("s_waitcnt vmcnt(0)")
    stamp(18)
    flag_store(7, 9)
    if OPT["timing"]:
        e("s_waitcnt vmcnt(0)")
    stamp(26)
    e("L_s_kvdone:")
    e("s_setprio %d" % OPT["kprio"])
    e("s_waitcnt vmcnt(%d)" % NPF)
    e("s_cmp_ge_u32 s84, 0x%x" % (FLAG_XT + 7 * 64 * 128))
    e("s_cbranch_scc1 L_s_noxt")
    for q in range(4):
        e("buffer_store_dwordx4 %s, v%d, s[%d:%d], s85 offen sc1" % (vr(XTR + 4 * q, 4), vL16, SWS, SWS + 3))
        if q < 3:
            e("s_add_u32 s85, s85, 7168")
    e("L_s_noxt:")
    stamp(2)
    e("s_cmp_lt_u32 s%d, 28" % S_J)
    e("s_cbranch_scc1 L_s_kgen")
    xt_flag("a")
    e("s_branch L_s_wo")
    e("L_s_nokv2:")
    e("s_setprio %d" % OPT["kprio"])
    e("s_mov_b32 s84, -1")
    e("s_waitcnt vmcnt(%d) lgkmcnt(0)" % NPF)
    e("s_add_u32 s4, s4, 0x%x" % NONCE_ADD)
    e("L_s_kgen:")
    stamp(11)
    e("s_lshr_b32 s5, s3, 1")
    e("s_lshl_b32 s5, s5, 4")
    e("s_lshr_b32 s72, s72, s5")
    e("s_lshl_b32 s72, s72, 16")
    e("s_lshr_b32 s73, s73, s5")
    e("s_lshl_b32 s73, s73, 16")
    c_hi = struct.unpack("<f", struct.pack("<I", f32(LOG2E) & 0xFFFFFF00))[0]
    c_lo = (LOG2E - c_hi) * math.log(2.0)
    e("v_mov_b32 v8, s72")
    e("v_mul_f32 v9, 0x%x, v8" % f32(c_hi))
    e("v_exp_f32 v9, v9")
    e("v_mul_f32 v8, 0x%x, v8" % f32(c_lo))
    e("v_fma_f32 v9, v9, v8, v9")
    e("v_cvt_pk_bf16_f32 v9, v9, v9")
    e("v_and_b32 v9, 0xffff0000, v9")
    ZR, ZI = (16, 17), (18, 19)
    E1, E8, EG, WW, TT, XX = (20, 22), (24, 26), (28, 30), (32, 34), (36, 38), (40, 42)
    R2, R4, R6 = (44, 46), (48, 50), (52, 54)
    OUT = 56

    def unp(d, src, m):
        if m == 0:
            e("v_lshlrev_b32 v%d, 16, v%d" % (d, src))
        else:
            e("v_and_b32 v%d, 0xffff0000, v%d" % (d, src))

    for m in range(2):
        unp(ZR[m], PRM + 0, m)
        unp(ZI[m], PRM + 1, m)
    for m in range(2):
        e("v_mul_f32 v%d, v9, v%d" % (ZR[m], ZR[m]))
        e("v_mul_f32 v%d, v9, v%d" % (ZI[m], ZI[m]))
    for m in range(2):
        e("v_mul_f32 v%d, 0x%x, v%d" % (ZR[m], f32(LOG2E), ZR[m]))
        e("v_mul_f32 v%d, 0x%x, v%d" % (ZI[m], f32(1.0 / (2 * math.pi)), ZI[m]))

    def cexp(dst, mult, conj):
        for m in range(2):
            if mult != 1:
                e("v_mul_f32 v%d, 0x%x, v%d" % (TT[m], f32(mult), ZR[m]))
                e("v_mul_f32 v%d, 0x%x, v%d" % (TT[m] + 1, f32(mult), ZI[m]))
                e("v_fract_f32 v%d, v%d" % (TT[m] + 1, TT[m] + 1))
            else:
                e("v_mov_b32 v%d, v%d" % (TT[m], ZR[m]))
                e("v_fract_f32 v%d, v%d" % (TT[m] + 1, ZI[m]))
        for m in range(2):
            e("v_exp_f32 v%d, v%d" % (TT[m], TT[m]))
            e("v_cos_f32 v%d, v%d" % (dst[m], TT[m] + 1))
            e("v_sin_f32 v%d, v%d" % (dst[m] + 1, TT[m] + 1))
        for m in range(2):
            e("v_pk_mul_f32 %s, %s, %s op_sel_hi:[1,0]%s" % (vr(dst[m], 2), vr(dst[m], 2), vr(TT[m], 2), " neg_hi:[1,0]" if conj else ""))

    cexp(E8, 8, True)
    e("s_mul_i32 s13, s3, %d" % S_STG)
    e("v_lshlrev_b32 v8, 3, v1")
    e("v_add_u32 v8, s13, v8")
    e("v_and_b32 v11, 31, v1")
    e("v_mul_u32_u24 v11, 528, v11")
    e("v_lshrrev_b32 v12, 5, v1")
    e("v_lshl_add_u32 v11, v12, 4, v11")
    e("v_add_u32 v11, s13, v11")
    ring = [0]

    def put(row, src):
        o = OUT + 2 * (ring[0] & 3)
        ring[0] += 1
        for m in range(2):
            e("v_cvt_pk_bf16_f32 v%d, v%d, v%d" % (o + m, src[m], src[m] + 1))
        e("ds_write_b64 v8, %s offset:%d" % (vr(o, 2), row * 528))

    e("v_mov_b32 v%d, 0x3f80" % OUT)
    e("v_mov_b32 v%d, 0x3f80" % (OUT + 1))
    e("ds_write_b64 v8, %s" % vr(OUT, 2))
    ring[0] = 1
    put(1, E8)
    for j in range(2, 32):
        src = E8 if j == 2 else XX
        for m in range(2):
            e("v_pk_mul_f32 %s, %s, %s op_sel_hi:[1,0]" % (vr(TT[m], 2), vr(src[m], 2), vr(E8[m], 2)))
        for m in range(2):
            e("v_pk_fma_f32 %s, %s, %s, %s op_sel:[1,1,0] op_sel_hi:[0,1,1] neg_lo:[1,0,0]" % (vr(XX[m], 2), vr(src[m], 2), vr(E8[m], 2), vr(TT[m], 2)))
        put(j, XX)
    BF, AF, DD = 64, 128, 192
    stamp(12)
    for s in range(16):
        e("ds_read_b128 %s, v11 offset:%d" % (vr(BF + 4 * s, 4), s * 32))
    xt_flag("b")
    stamp(13)
    cexp(E1, 1, False)
    cexp(EG, 256, False)

    def mul2(dst, src, mu):
        for m in range(2):
            e("v_pk_mul_f32 %s, %s, %s op_sel_hi:[1,0]" % (vr(TT[m], 2), vr(src[m], 2), vr(mu[m], 2)))
        for m in range(2):
            e("v_pk_fma_f32 %s, %s, %s, %s op_sel:[1,1,0] op_sel_hi:[0,1,1] neg_lo:[1,0,0]" % (vr(dst[m], 2), vr(src[m], 2), vr(mu[m], 2), vr(TT[m], 2)))

    for m in range(2):
        unp(XX[m], PRM + 2, m)
        unp(XX[m] + 1, PRM + 3, m)
        unp(R2[m], PRM + 4, m)
        unp(R2[m] + 1, PRM + 5, m)
    for m in range(2):
        e("v_mul_f32 v%d, v9, v%d" % (XX[m], XX[m]))
        e("v_mul_f32 v%d, v9, v%d" % (XX[m] + 1, XX[m] + 1))
    mul2(WW, R2, XX)
    put(0, WW)
    mul2(XX, WW, E1); put(1, XX)
    mul2(R2, XX, E1); put(2, R2)
    mul2(XX, R2, E1); put(3, XX)
    mul2(R4, XX, E1); put(4, R4)
    mul2(XX, R4, E1); put(5, XX)
    mul2(R6, XX, E1); put(6, R6)
    mul2(XX, R6, E1); put(7, XX)
    for row in (8, 12, 9, 13, 10, 14, 11, 15):
        mul2(WW, WW, EG); put(row, WW)
    mul2(R2, R2, EG); put(16, R2)
    mul2(R4, R4, EG); put(17, R4)
    mul2(R6, R6, EG); put(18, R6)
    mul2(R4, R4, EG); put(20, R4)
    mul2(R4, R4, EG); put(19, R4)
    stamp(14)
    for s in range(16):
        e("ds_read_b128 %s, v11 offset:%d" % (vr(AF + 4 * s, 4), s * 32))
    e("s_mul_i32 s5, s3, 3072")
    e("s_add_u32 s5, s5, %d" % S_PX)
    e("v_add_u32 v12, s5, v%d" % vL16)
    e("s_xor_b32 s6, s3, 1")
    e("s_mul_i32 s6, s6, 3072")
    e("s_add_u32 s6, s6, %d" % S_PX)
    e("v_add_u32 v13, s6, v%d" % vL16)
    for s in range(16):
        e("s_waitcnt lgkmcnt(%d)" % (15 - s))
        mfma(DD, AF + 4 * s, BF + 4 * s, None if s == 0 else DD)
    stamp(15)
    e("s_lshr_b32 s5, s3, 1")
    e("s_mul_i32 s14, s5, %d" % KR1)
    e("v_sub_u32 v14, 223, v1")
    e("v_lshrrev_b32 v15, 2, v14")
    e("v_mul_u32_u24 v15, 80, v15")
    e("v_and_b32 v14, 3, v14")
    e("v_lshl_add_u32 v14, v14, 4, v15")
    e("v_add_u32 v14, s14, v14")
    e("v_mov_b32 v16, 0")
    e("v_mov_b32 v17, 0")
    e("v_mov_b32 v18, 0")
    e("v_mov_b32 v19, 0")
    e("v_add_u32 v15, s14, v%d" % vL16)
    e("s_mov_b32 s74, 0")
    e("s_mov_b32 s75, -1")
    e("s_mov_b32 s76, 0xaaaaaaaa")
    e("s_mov_b32 s77, 0xaaaaaaaa")
    for q in range(3):
        e("ds_write_b128 v12, %s offset:%d" % (vr(DD + 4 * q, 4), q * 1024))
    e("s_waitcnt lgkmcnt(0)")
    e("s_barrier")
    stamp(3)
    e("s_setprio %d" % OPT["cprio"])
    for q in range(3):
        e("ds_read_b128 %s, v13 offset:%d" % (vr(64 + 4 * q, 4), q * 1024))
    e("s_waitcnt lgkmcnt(0)")
    for k in range(6):
        e("v_pk_add_f32 %s, %s, %s" % (vr(DD + 2 * k, 2), vr(DD + 2 * k, 2), vr(64 + 2 * k, 2)))
    D = lambda r: DD + r

    def nxt(dst, r):
        if r < 7:
            e("v_mov_b32_dpp v%d, v%d wave_rol:1 row_mask:0xf bank_mask:0xf" % (dst, D(r + 1)))
        e("v_mov_b32_dpp v%d, v%d wave_shl:1 row_mask:0xf bank_mask:0xf" % (dst, D(r)))

    def pk(d, lo, hi):
        e("v_cvt_pk_bf16_f32 v%d, v%d, v%d" % (d, lo, hi))

    e("s_bitcmp1_b32 s3, 0")
    e("s_cbranch_scc1 L_s_expB")
    e("ds_write_b128 v15, v[16:19] offset:5120")
    e("ds_write_b128 v15, v[16:19] offset:6144")
    e("v_mov_b32 v32, s73")
    e("v_cmp_eq_u32 vcc, 0, v1")
    e("v_cndmask_b32 v32, 0, v32, vcc")
    e("v_add_f32 v%d, v%d, v32" % (D(0), D(0)))
    e("v_and_b32 v33, 31, v1")
    e("v_sub_u32 v33, 255, v33")
    e("v_lshrrev_b32 v34, 2, v33")
    e("v_mul_u32_u24 v34, 80, v34")
    e("v_and_b32 v33, 3, v33")
    e("v_lshl_add_u32 v33, v33, 4, v34")
    e("v_add_u32 v33, s14, v33")
    e("v_add_u32 v34, 8, v33")
    e("v_cndmask_b32 v33, v34, v33, s[74:75]")
    pk(36, D(3), D(2))
    pk(37, D(1), D(0))
    e("ds_write_b64 v33, v[36:37]")
    nxt(40, 4)
    e("v_cndmask_b32 v41, v%d, v40, s[74:75]" % D(10))
    e("v_cndmask_b32 v42, v%d, v%d, s[74:75]" % (D(9), D(8)))
    e("v_cndmask_b32 v43, v%d, v%d, s[74:75]" % (D(8), D(4)))
    pk(44, 40, 41)
    pk(45, 42, 42)
    pk(46, 42, 43)
    pk(47, D(4), D(4))
    e("ds_write_b128 v14, v[44:47]")
    e("s_branch L_s_expJ")
    e("L_s_expB:")
    e("ds_write_b128 v15, v[16:19] offset:6656")
    e("v_subrev_u32 v14, 2560, v14")
    nxt(40, 5)
    e("v_cndmask_b32 v41, v%d, v40, s[76:77]" % D(5))
    e("v_cndmask_b32 v42, v%d, v40, s[74:75]" % D(11))
    e("v_cndmask_b32 v41, v%d, v41, s[74:75]" % D(11))
    e("v_cndmask_b32 v43, v%d, v%d, s[74:75]" % (D(11), D(5)))
    pk(44, 40, 40)
    pk(45, 42, 41)
    pk(46, 43, D(5))
    pk(47, D(5), D(5))
    e("ds_write_b128 v14, v[44:47] offset:1280")
    for r in (6, 7):
        o = 48 if r == 6 else 56
        nxt(o, r)
        e("v_cndmask_b32 v%d, v%d, v%d, s[76:77]" % (o + 1, D(r), o))
        pk(o + 4, o, o)
        pk(o + 5, o, o + 1)
        pk(o + 6, D(r), D(r))
        pk(o + 7, D(r), D(r))
        if r == 6:
            e("ds_write_b128 v14, %s" % vr(o + 4, 4))
        else:
            e("v_subrev_u32 v14, 1280, v14")
            e("s_mov_b32 exec_hi, 0")
            e("ds_write_b128 v14, %s" % vr(o + 4, 4))
            e("s_mov_b32 exec_hi, -1")
    e("L_s_expJ:")
    e("s_waitcnt lgkmcnt(0)")
    e("L_s_wo:")
    e("s_barrier")
    stamp(21)
    S_TT, S_JG = 11, 12
    WO = 128
    e("s_lshr_b32 s5, s%d, 2" % S_J)
    e("s_add_u32 s%d, s10, s5" % S_TT)
    e("s_and_b32 s%d, s%d, 3" % (S_JG, S_J))
    srd(SOUT, P_OUT, 2048 * 896)
    e("v_lshrrev_b32 v13, 4, v1")
    e("v_mul_u32_u24 v8, 896, v13")
    e("v_lshlrev_b32 v13, 2, v13")
    e("v_xor_b32 v13, v13, v1")
    e("v_and_b32 v13, 15, v13")
    e("v_min_u32 v13, 13, v13")
    e("v_lshl_add_u32 v8, v13, 4, v8")
    e("s_mul_i32 s5, s3, 7")
    e("v_bfe_u32 v13, v1, 4, 1")
    e("v_and_b32 v14, 3, v1")
    e("v_lshl_add_u32 v13, v13, 2, v14")
    e("v_add_u32 v13, s5, v13")
    e("v_bfe_u32 v14, v1, 2, 2")
    e("v_lshlrev_b32 v9, 3, v14")
    e("v_xor_b32 v13, v13, v9")
    e("v_lshlrev_b32 v13, 3, v13")
    e("v_lshl_add_u32 v13, v14, 8, v13")
    e("v_lshrrev_b32 v14, 5, v1")
    e("v_lshl_add_u32 v9, v14, 10, v13")
    e("v_add_u32 v9, %d, v9" % XC0)
    e("s_mul_i32 s13, s3, 14336")
    e("s_add_u32 s13, s13, %d" % XC0)
    e("s_mul_i32 s86, s%d, 224" % S_JG)
    e("s_mul_i32 s5, s3, %d" % (56 * 896))
    e("s_add_u32 s86, s86, s5")
    THR = OPT["wothr"]
    for ck in range(0 if OPT["xwo"] else 2):
        e("s_mov_b32 m0, s13")
        e("s_add_u32 s5, s86, %d" % (ck * 224 * 896))
        for m in range(15):
            if THR and m >= THR:
                e("s_waitcnt vmcnt(%d)" % (THR - 1))
            if m == 14:
                e("s_cmp_lg_u32 s3, 3")
                e("s_cbranch_scc1 L_s_wo%d" % ck)
            e("buffer_load_dwordx4 v8, s[%d:%d], s5 offen lds" % (SWO, SWO + 3))
            if m == 14:
                e("L_s_wo%d:" % ck)
            if m < 14:
                e("s_add_u32 m0, m0, 1024")
                e("s_add_u32 s5, s5, 3584")
        e("s_waitcnt vmcnt(0)")
        e("s_barrier")
        for hd in range(8):
            for kp in range(2):
                for q in range(2):
                    e("ds_read_b64_tr_b16 %s, v9 offset:%d" % (vr(WO + 64 * ck + 8 * hd + 4 * kp + 2 * q, 2), (28 * hd + 16 * kp + 8 * q) * 256))
        e("s_waitcnt lgkmcnt(0)")
        if ck == 0:
            e("s_barrier")
    e("s_barrier")
    stamp(16)
    e("s_cmp_ge_u32 s%d, 28" % S_J)
    e("s_cbranch_scc1 L_s_cons")
    e("s_lshr_b32 s5, s%d, 5" % S_CP)
    e("s_lshl_b32 s5, s5, 13")
    e("s_add_u32 s5, s5, 0x%x" % FLAG_XT)
    e("v_lshlrev_b32 v13, 7, v1")
    e("v_add_u32 v13, s5, v13")
    e("v_lshrrev_b32 v10, 1, v1")
    e("v_and_b32 v11, 1, v1")
    e("v_mul_u32_u24 v12, 7168, v10")
    e("v_lshl_add_u32 v12, v11, 4, v12")
    e("s_mul_i32 s74, s3, %d" % (64 * 7168))
    e("s_lshl_b32 s5, s%d, 5" % S_CP)
    e("s_add_u32 s74, s74, s5")
    e("s_add_u32 s74, s74, 0x%x" % XT)
    e("s_add_u32 s75, s74, %d" % (32 * 7168))
    e("v_mul_u32_u24 v15, %d, v11" % (4 * XCS))
    e("v_lshl_add_u32 v15, v10, 4, v15")
    e("s_lshl_b32 s5, s3, 10")
    e("s_add_u32 s5, s5, %d" % XC0)
    e("v_add_u32 v15, s5, v15")
    e("s_cmp_lg_u32 s3, 0")
    e("s_cbranch_scc1 L_s_nohead")
    for k in range(4):
        e("v_mov_b32 v%d, 0" % (16 + k))
    e("v_bfe_u32 v22, v1, 2, 3")
    e("v_mul_u32_u24 v22, %d, v22" % XCS)
    e("v_and_b32 v23, 3, v1")
    e("v_lshl_add_u32 v22, v23, 4, v22")
    e("ds_write_b128 v22, v[16:19] offset:%d" % XC0)
    e("L_s_nohead:")
    poll("xt", 13, 14, sleep=2)
    stamp(19)
    e("s_setprio %d" % OPT["cprio"])
    e("buffer_load_dwordx4 v[16:19], v12, s[%d:%d], s74 offen sc1" % (SWS, SWS + 3))
    e("buffer_load_dwordx4 v[20:23], v12, s[%d:%d], s75 offen sc1" % (SWS, SWS + 3))
    e("v_add_u32 v24, %d, v15" % (XCS + 60))
    e("v_add_u32 v25, %d, v15" % (3 * XCS + 56))
    e("v_add_u32 v26, %d, v15" % (2 * XCS + 56))
    for i in range(0 if OPT["xxc"] else 2):
        r = 16 + 4 * i
        o = 512 * i
        e("s_waitcnt vmcnt(%d)" % (1 - i))
        for k in range(3):
            e("v_alignbit_b32 v%d, v%d, v%d, 16" % (28 + k, r + k + 1, r + k))
        for a in (24, 25):
            e("ds_write2_b32 v%d, v%d, v%d offset0:%d offset1:%d" % (a, r, r + 1, o // 4, o // 4 + 1))
            e("ds_write2_b32 v%d, v%d, v%d offset0:%d offset1:%d" % (a, r + 2, r + 3, o // 4 + 2, o // 4 + 3))
        for a, b0 in ((15, 62), (26, 2)):
            e("ds_write_b16 v%d, v%d offset:%d" % (a, r, o + b0))
            e("ds_write2_b32 v%d, v28, v29 offset0:%d offset1:%d" % (a, (o + b0 + 2) // 4, (o + b0 + 2) // 4 + 1))
            e("ds_write_b32 v%d, v30 offset:%d" % (a, o + b0 + 10))
            e("ds_write_b16_d16_hi v%d, v%d offset:%d" % (a, r + 3, o + b0 + 14))
    vX, vK = 8, 9
    e("v_and_b32 v10, 3, v1")
    e("v_mul_u32_u24 v%d, %d, v10" % (vX, XCS))
    e("v_bfe_u32 v10, v1, 2, 3")
    e("v_lshl_add_u32 v%d, v10, 3, v%d" % (vX, vX))
    e("v_lshrrev_b32 v10, 5, v1")
    e("v_lshl_add_u32 v%d, v10, 4, v%d" % (vX, vX))
    e("v_and_b32 v11, 31, v1")
    e("v_sub_u32 v11, 31, v11")
    e("v_mul_u32_u24 v%d, 80, v11" % vK)
    e("v_lshl_add_u32 v%d, v10, 4, v%d" % (vK, vK))
    e("s_lshr_b32 s5, s3, 1")
    e("s_mul_i32 s5, s5, %d" % (4 * XCS))
    e("s_add_u32 s5, s5, %d" % XC0)
    e("s_and_b32 s6, s3, 1")
    e("s_mul_i32 s7, s6, %d" % (OPT["splitA"] * 8 * 32))
    e("s_add_u32 s5, s5, s7")
    e("v_add_u32 v%d, s5, v%d" % (vX, vX))
    e("s_mul_i32 s7, s6, %d" % (OPT["splitA"] * 4 * 80))
    e("s_add_u32 s7, s7, s14")
    e("v_add_u32 v%d, s7, v%d" % (vK, vK))
    e("s_cmp_eq_u32 s6, 0")
    e("s_cselect_b32 s13, %d, %d" % (OPT["splitA"], 8 - OPT["splitA"]))
    Y0, Y1, RG = 16, 32, 48
    for k in range(32):
        e("v_mov_b32 v%d, 0" % (Y0 + k))
    e("s_waitcnt lgkmcnt(0)")
    e("s_barrier")
    stamp(4)
    e("s_setprio %d" % OPT["cprio"])

    def rdx(st, sg):
        e("ds_read_b64 %s, v%d offset:%d" % (vr(RG + 12 * st, 2), vX, 32 * sg))
        e("ds_read_b64 %s, v%d offset:%d" % (vr(RG + 12 * st + 2, 2), vX, 32 * sg + 8))

    def rdk(st, sg, tile):
        e("ds_read_b128 %s, v%d offset:%d" % (vr(RG + 12 * st + 4 + 4 * tile, 4), vK, 80 * (sg >> 1) + 32 * (sg & 1) + (0 if tile else 2560)))

    NST = OPT["nst"]
    if OPT["xconv"]:
        e("s_branch L_conv_done")
    for st in range(NST - 1):
        rdx(st, st); rdk(st, st, 0); rdk(st, st, 1)
    e("L_conv2:")
    for sg in range(8):
        st = sg % NST
        sn = (sg + NST - 1) % NST
        rdx(sn, sg + NST - 1); rdk(sn, sg + NST - 1, 0); rdk(sn, sg + NST - 1, 1)
        e("s_waitcnt lgkmcnt(%d)" % (4 * (NST - 1)))
        mfma(Y0, RG + 12 * st + 4, RG + 12 * st, Y0)
        if sg == 7:
            e("v_add_u32 v%d, 256, v%d" % (vX, vX))
            e("v_add_u32 v%d, 320, v%d" % (vK, vK))
            e("s_sub_u32 s13, s13, 1")
            e("s_cmp_lg_u32 s13, 0")
        mfma(Y1, RG + 12 * st + 8, RG + 12 * st, Y1)
    e("s_cbranch_scc1 L_conv2")
    e("s_bitcmp1_b32 s3, 0")
    e("s_cbranch_scc0 L_conv_done")
    e("s_mov_b32 s13, 8")
    e("s_waitcnt lgkmcnt(0)")
    e("L_conv1:")
    for sg in range(8):
        st = sg % NST
        sn = (sg + NST - 1) % NST
        rdx(sn, sg + NST - 1); rdk(sn, sg + NST - 1, 1)
        e("s_waitcnt lgkmcnt(%d)" % (3 * (NST - 1)))
        if sg == 7:
            e("v_add_u32 v%d, 256, v%d" % (vX, vX))
            e("v_add_u32 v%d, 320, v%d" % (vK, vK))
            e("s_sub_u32 s13, s13, 1")
            e("s_cmp_lg_u32 s13, 0")
        mfma(Y1, RG + 12 * st + 8, RG + 12 * st, Y1)
    e("s_cbranch_scc1 L_conv1")
    e("L_conv_done:")
    stamp(5)
    e("s_lshl_b32 s5, s3, 13")
    e("s_add_u32 s5, s5, %d" % L_CPX)
    e("v_add_u32 v10, s5, v%d" % vL16)
    e("s_and_b32 s5, s3, 1")
    e("s_lshr_b32 s6, s3, 1")
    e("s_lshl_b32 s7, s5, 12")
    e("s_lshl_b32 s13, s6, 11")
    e("s_add_u32 s7, s7, s13")
    e("s_add_u32 s7, s7, %d" % L_CPX)
    e("v_add_u32 v11, s7, v%d" % vL16)
    e("s_lshl_b32 s5, s5, 1")
    e("s_add_u32 s5, s5, s6")
    e("s_mul_i32 s5, s5, %d" % (16 * 224))
    e("s_add_u32 s5, s5, s%d" % S_CP)
    e("s_lshl_b32 s5, s5, 7")
    e("s_add_u32 s13, s5, 0x%x" % B2)
    e("v_lshrrev_b32 v12, 5, v1")
    e("v_mul_u32_u24 v12, %d, v12" % (4 * 224 * 128))
    e("v_and_b32 v13, 31, v1")
    e("v_lshl_add_u32 v12, v13, 2, v12")
    e("s_waitcnt lgkmcnt(0)")
    for k in range(8):
        e("ds_write_b128 v10, %s offset:%d" % (vr(Y0 + 4 * k, 4), k * 1024))
    e("s_waitcnt lgkmcnt(0)")
    e("s_barrier")
    for w in range(4):
        for q in range(2):
            e("ds_read_b128 %s, v11 offset:%d" % (vr(48 + 8 * w + 4 * q, 4), w * 8192 + q * 1024))
    e("s_lshl_b32 s7, s%d, 2" % S_CP)
    e("s_add_u32 s7, s7, s3")
    e("s_lshl_b32 s7, s7, 7")
    e("s_add_u32 s7, s7, 0x%x" % FLAG_B)
    e("s_waitcnt lgkmcnt(0)")
    e("s_barrier")
    for k in range(4):
        e("v_pk_add_f32 %s, %s, %s" % (vr(48 + 2 * k, 2), vr(48 + 2 * k, 2), vr(56 + 2 * k, 2)))
        e("v_pk_add_f32 %s, %s, %s" % (vr(64 + 2 * k, 2), vr(64 + 2 * k, 2), vr(72 + 2 * k, 2)))
    for k in range(8):
        e("v_cvt_pk_bf16_f32 v%d, v%d, v%d" % (80 + k, 48 + k, 64 + k))
    for k in range(8):
        e("buffer_store_dword v%d, v12, s[%d:%d], s13 offen sc1" % (80 + k, SWS, SWS + 3))
        if k < 7:
            e("s_add_u32 s13, s13, %d" % ((5 if k == 3 else 1) * 28672))
    e("s_waitcnt vmcnt(0)")
    flag_store(7, 13)
    stamp(6)
    e("L_s_cons:")
    stamp(7)
    e("s_cmp_lg_u32 s3, 0")
    e("s_cbranch_scc1 L_s_noalive")
    e("s_lshl_b32 s5, s2, 7")
    e("s_add_u32 s5, s5, 0x%x" % ALIVE)
    flag_store(5, 13)
    e("s_cmp_lg_u32 s2, 255")
    e("s_cbranch_scc1 L_s_noalive")
    e("v_lshlrev_b32 v13, 7, v1")
    e("v_add_u32 v13, 0x%x, v13" % ALIVE)
    poll("alive", 13, 16, sleep=8, n=8, step=8192)
    e("s_mov_b32 s5, 0")
    flag_store(5, 13)
    e("L_s_noalive:")
    e("s_mul_i32 s13, s%d, 56" % S_JG)
    e("s_mul_i32 s5, s3, 14")
    e("s_add_u32 s13, s13, s5")
    e("s_lshr_b32 s5, s%d, 5" % S_TT)
    e("s_bfe_u32 s6, s%d, 0x10004" % S_TT)
    e("s_lshl_b32 s6, s6, 1")
    e("s_add_u32 s5, s5, s6")
    e("s_lshl_b32 s6, s13, 2")
    e("s_add_u32 s5, s5, s6")
    e("s_lshl_b32 s5, s5, 7")
    e("s_add_u32 s5, s5, 0x%x" % FLAG_B)
    e("v_min_u32 v13, 13, v1")
    e("v_lshlrev_b32 v13, 9, v13")
    e("v_add_u32 v13, s5, v13")
    poll("b", 13, 14, sleep=4)
    BB = 24
    e("s_mul_i32 s5, s%d, 224" % S_TT)
    e("s_add_u32 s5, s5, s13")
    e("s_lshl_b32 s5, s5, 7")
    e("s_add_u32 s5, s5, 0x%x" % B2)
    e("v_lshrrev_b32 v10, 5, v1")
    e("v_and_b32 v11, 31, v1")
    e("v_lshlrev_b32 v13, 8, v10")
    e("v_lshl_add_u32 v13, v11, 2, v13")
    for q in range(4):
        if q == 3:
            e("s_mov_b32 exec_hi, 0")
        for p in range(2):
            e("buffer_load_dword v%d, v13, s[%d:%d], s5 offen offset:%d sc1" % (BB + 2 * q + p, SWS, SWS + 3, (4 * q + p) * 128))
    e("s_mov_b32 exec_hi, -1")
    e("s_lshl_b32 s5, s%d, 4" % S_TT)
    e("s_lshl_b32 s6, s3, 2")
    e("s_add_u32 s5, s5, s6")
    e("s_lshl_b32 s14, s5, 11")
    e("s_add_u32 s14, s14, 0x%x" % OW)
    e("s_add_u32 s15, s14, 4096")
    e("s_lshl_b32 s5, s5, 7")
    e("s_add_u32 s5, s5, 0x%x" % FLAG_O)
    e("v_and_b32 v13, 3, v1")
    e("v_lshlrev_b32 v13, 7, v13")
    e("v_add_u32 v13, s5, v13")
    e("s_lshl_b32 s5, s3, 13")
    e("v_add_u32 v12, s5, v%d" % vL16)
    e("v_lshlrev_b32 v14, 2, v11")
    e("s_lshl_b32 s72, s%d, 7" % S_TT)
    e("s_add_u32 s72, s72, 0x%x" % G1)
    e("v_mul_u32_u24 v15, 240, v11")
    e("v_lshl_add_u32 v15, v10, 3, v15")
    e("s_mul_i32 s5, s3, 56")
    e("s_add_u32 s5, s5, %d" % S_OT)
    e("v_add_u32 v15, s5, v15")
    for k in range(2):
        e("v_add_u32 v16, %d, v1" % (64 * k))
        e("v_mul_u32_u24 v17, 4682, v16")
        e("v_lshrrev_b32 v17, 16, v17")
        e("v_mul_u32_u24 v18, 14, v17")
        e("v_sub_u32 v16, v16, v18")
        e("v_mul_u32_u24 v18, 240, v17")
        e("v_lshl_add_u32 v%d, v16, 4, v18" % (20 + 2 * k))
        e("v_mul_u32_u24 v18, 896, v17")
        e("v_lshl_add_u32 v%d, v16, 4, v18" % (21 + 2 * k))
    e("s_mul_i32 s5, s3, %d" % (8 * 240))
    e("s_add_u32 s5, s5, %d" % S_OT)
    e("v_add_u32 v20, s5, v20")
    e("v_add_u32 v22, s5, v22")
    e("s_lshl_b32 s5, s%d, 2" % S_TT)
    e("s_add_u32 s5, s5, s3")
    e("s_mul_i32 s73, s5, %d" % (8 * 896))
    e("s_mul_i32 s5, s%d, 224" % S_JG)
    e("s_add_u32 s73, s73, s5")
    stamp(8)
    e("s_setprio 0")
    poll("o", 13, 16, sleep=1)
    stamp(9)
    e("s_setprio 3")
    OL = 32
    for k in range(8):
        e("buffer_load_dwordx4 %s, v%d, s[%d:%d], s%d offen offset:%d sc1" % (vr(OL + 4 * k, 4), vL16, SWS, SWS + 3, 14 + (k >> 2), (k & 3) * 1024))
    e("s_cmp_lg_u32 s3, 0")
    e("s_cbranch_scc1 L_s_nog")
    e("buffer_load_dword v16, v14, s[%d:%d], s72 offen sc1" % (SWS, SWS + 3))
    e("s_waitcnt vmcnt(0)")
    e("ds_write_b32 v14, v16 offset:%d" % S_G1)
    e("L_s_nog:")
    for k in range(8):
        e("s_waitcnt vmcnt(%d)" % (7 - k))
        e("ds_write_b128 v12, %s offset:%d" % (vr(OL + 4 * k, 4), k * 1024))
    e("s_waitcnt lgkmcnt(0)")
    e("s_barrier")
    DO, OF = 64, 80
    e("ds_read_b32 v16, v14 offset:%d" % S_G1)
    for k in range(7):
        e("ds_read_b128 %s, v%d offset:%d" % (vr(OF + 4 * k, 4), vL16, k * 1024))
    for k in range(32):
        if k + 7 < 32:
            e("ds_read_b128 %s, v%d offset:%d" % (vr(OF + 4 * ((k + 7) & 7), 4), vL16, (k + 7) * 1024))
        e("s_waitcnt lgkmcnt(%d)" % min(7, 31 - k))
        mfma(DO, WO + 4 * k, OF + 4 * (k & 7), None if k == 0 else DO)
        if k < 8:
            e("v_lshlrev_b32 v%d, 16, v%d" % (OL + 2 * k, BB + k))
            e("v_and_b32 v%d, 0xffff0000, v%d" % (OL + 2 * k + 1, BB + k))
    for k in range(8):
        e("v_pk_fma_f32 %s, %s, v[16:17], %s op_sel_hi:[1,0,1]" % (vr(DO + 2 * k, 2), vr(OL + 2 * k, 2), vr(DO + 2 * k, 2)))
    for k in range(8):
        e("v_cvt_pk_bf16_f32 v%d, v%d, v%d" % (OL + k, DO + 2 * k, DO + 2 * k + 1))
    for q in range(4):
        if q == 3:
            e("s_mov_b32 exec_hi, 0")
        e("ds_write_b64 v15, %s offset:%d" % (vr(OL + 2 * q, 2), 16 * q))
    e("s_mov_b32 exec_hi, -1")
    e("s_waitcnt lgkmcnt(0)")
    e("s_barrier")
    e("ds_read_b128 v[40:43], v20")
    e("ds_read_b128 v[44:47], v22")
    e("s_waitcnt lgkmcnt(1)")
    e("buffer_store_dwordx4 v[40:43], v21, s[%d:%d], s73 offen" % (SOUT, SOUT + 3))
    e("s_mov_b32 exec_hi, 0xffff")
    e("s_waitcnt lgkmcnt(0)")
    e("buffer_store_dwordx4 v[44:47], v23, s[%d:%d], s73 offen" % (SOUT, SOUT + 3))
    e("s_mov_b32 exec_hi, -1")
    if OPT["timing"]:
        e("s_waitcnt vmcnt(0)")
    stamp(10)
    dbg_stamp(248, 256, 8, False)
    stamp_flush()
    e("L_end:")
    e("s_endpgm")


prologue()
role_a()
role_s()

lines, nops = asmcheck.fix_hazards(L, verbose=bool(OPT.get("v", 0)))
errs = asmcheck.check_waitcnt(lines)
for er in errs:
    print("WAITCNT?", er, file=sys.stderr)
print("instructions: %d, wait states inserted: %d" % (len(lines), nops), file=sys.stderr)

ref = open("cdna_kernels/%s.s.ref" % NAME).read()
head = ref[: ref.index("; Override launch")]
text = head + """; Override launch geometry by editing the next line (default: block=256,
; grid=ceil(out_elems/256), lds=0). Harness parses it; keep it on one line.
; @launch grid=(512,1,1) block=(256,1,1) lds=81920
.amdgcn_target "amdgcn-amd-amdhsa--gfx950"
.text
.globl %s_kernel
.p2align 8
.type %s_kernel,@function
%s_kernel:
""" % (NAME, NAME, NAME) + "\n".join(lines) + """
.section .rodata,"a"
.p2align 6
.amdhsa_kernel %s_kernel
  .amdhsa_next_free_vgpr 256
  .amdhsa_next_free_sgpr 102
  .amdhsa_accum_offset 256
  .amdhsa_group_segment_fixed_size 0
  .amdhsa_kernarg_size 144
  .amdhsa_user_sgpr_count 2
  .amdhsa_user_sgpr_kernarg_segment_ptr 1
  .amdhsa_system_sgpr_workgroup_id_x 1
.end_amdhsa_kernel
""" % NAME
open(sys.argv[1], "w").write(text)
```

```python
import sys, struct, math, os
sys.path.insert(0, os.path.dirname(os.path.abspath(__file__)))
import asmcheck

NAME = "gated_mix__grouped_kv_mqa__ssm_conv_s4__prompt"
OPT = dict(timing=0, force_fb=0, spin=400000, dbgts=0, nst=2, cprio=2, aprio=1, kvsleep=6, splitA=6, kprio=2, a1prio=3, xconv=0, xwo=0, xxc=0, xkgen=0, xpre=2, touch=0, a0prio=0, wopf=1, wothr=3, obar=1, mprio=0, pollcnt=0, xtrow=12, nslot=8, osleep=2, hintpos=4, oprio=0, otouch=0, nonear=0, early=0, eb=5, pmask=1)
for a in sys.argv[2:]:
    k, v = a.split("=")
    OPT[k] = int(v)

NONCE_OFF = 12
FLAG_KV = 0x1000 + 12
FLAG_O = 0x10000 + 12
FLAG_B = 0x30000 + 12
ALIVE = 0x50000 + 12
G1 = 0x60000
FLAG_XT = 0x70000 + 12
XT = 0x600000
KV = 0x100000
OW = 0x200000
B2 = 0x400000
FLAG_O2 = 0x80000 + 12
OW2 = 0x900000
TSB = 0x800000
WS_BYTES = 0x1000000
NONCE_ADD = 0x9E3779B9

L = []


def e(s):
    for x in s.split("\n"):
        x = x.strip()
        if x:
            L.append(x if x.endswith(":") else "    " + x)


def f32(x):
    return struct.unpack("<I", struct.pack("<f", x))[0]


def vr(a, n=1):
    return "v%d" % a if n == 1 else "v[%d:%d]" % (a, a + n - 1)


def sr(a, n=1):
    return "s%d" % a if n == 1 else "s[%d:%d]" % (a, a + n - 1)


def srd(d, base, nbytes, add=None):
    if add is None:
        e("s_mov_b32 s%d, s%d" % (d, base))
        e("s_mov_b32 s%d, s%d" % (d + 1, base + 1))
    else:
        e("s_add_u32 s%d, s%d, %s" % (d, base, add))
        e("s_addc_u32 s%d, s%d, 0" % (d + 1, base + 1))
    e("s_mov_b32 s%d, 0x%x" % (d + 2, nbytes))
    e("s_mov_b32 s%d, 0x20000" % (d + 3))


def mfma(d, a, b, c):
    e("v_mfma_f32_32x32x16_bf16 %s, %s, %s, %s" % (vr(d, 16), vr(a, 4), vr(b, 4), "0" if c is None else vr(c, 16)))


P_X, P_WQ, P_WK, P_WV, P_WO = 16, 18, 20, 22, 24
P_ARE, P_AIM, P_BRE, P_BIM, P_CRE, P_CIM, P_LDT, P_DSK, P_GW, P_OUT, P_WS = 28, 30, 32, 34, 36, 38, 40, 42, 44, 46, 48
SX, SWS = 52, 56
S_WAVE, S_NONCE = 3, 4
V_LANE = 1
LOG2E = 1.4426950408889634

stamp_n = [0]


def stamp(idx):
    if OPT["timing"]:
        e("s_memrealtime s[96:97]")
        e("s_waitcnt lgkmcnt(0)")
        e("v_writelane_b32 v0, s96, %d" % idx)


def stampd(reg):
    if OPT["timing"]:
        e("s_memrealtime s[%d:%d]" % (reg, reg + 1))


def stampw(idx, reg):
    if OPT["timing"]:
        e("v_writelane_b32 v0, s%d, %d" % (reg, idx))


def cstamp(idx):
    if OPT["timing"]:
        e("s_memtime s[96:97]")
        e("s_waitcnt lgkmcnt(0)")
        e("v_writelane_b32 v0, s96, %d" % idx)


def dbg_stamp(lo, hi, slot0, start):
    if not OPT["dbgts"]:
        return
    tag = "%d" % slot0
    e("s_sub_u32 s96, s2, %d" % lo)
    e("s_cmp_ge_u32 s96, %d" % (hi - lo))
    e("s_cbranch_scc1 L_dbg%s" % tag)
    e("s_cmp_lg_u32 s3, 0")
    e("s_cbranch_scc1 L_dbg%s" % tag)
    if not start:
        e("s_waitcnt vmcnt(0)")
        e("s_memrealtime s[94:95]")
        e("s_waitcnt lgkmcnt(0)")
    e("s_mov_b32 s72, s50")
    e("s_mov_b32 s73, s51")
    e("s_mov_b32 s74, 256")
    e("s_mov_b32 s75, 0x20000")
    e("s_add_u32 s96, s96, %d" % slot0)
    e("s_lshl_b32 s96, s96, 2")
    e("v_mov_b32 v2, s94")
    e("s_mov_b32 exec_lo, 1")
    e("s_mov_b32 exec_hi, 0")
    e("buffer_store_dword v2, off, s[72:75], s96")
    e("s_mov_b64 exec, -1")
    e("L_dbg%s:" % tag)


def stamp_flush():
    if OPT["timing"]:
        e("s_lshl_b32 s96, s2, 2")
        e("s_add_u32 s96, s96, s3")
        e("s_lshl_b32 s96, s96, 8")
        e("s_add_u32 s96, s96, 0x%x" % TSB)
        e("v_lshlrev_b32 v3, 2, v%d" % V_LANE)
        e("buffer_store_dword v0, v3, s[%d:%d], s96 offen" % (SWS, SWS + 3))


def poll(tag, vaddr, vtmp, sleep=0, n=1, step=0, cnt=None):
    if OPT["timing"] and cnt is not None:
        e("buffer_load_dword v%d, v%d, s[%d:%d], 0 offen sc1" % (vtmp, vaddr, SWS, SWS + 3))
        e("s_waitcnt vmcnt(0)")
        stamp(cnt + 1)
    e("s_mov_b32 s5, 0")
    e("L_poll_%s:" % tag)
    for k in range(n):
        if k == 0:
            e("buffer_load_dword v%d, v%d, s[%d:%d], 0 offen sc1" % (vtmp, vaddr, SWS, SWS + 3))
        else:
            e("s_mov_b32 s6, 0x%x" % (k * step))
            e("buffer_load_dword v%d, v%d, s[%d:%d], s6 offen sc1" % (vtmp + k, vaddr, SWS, SWS + 3))
    e("s_waitcnt vmcnt(0)")
    e("v_cmp_ne_u32 vcc, s%d, v%d" % (S_NONCE, vtmp))
    for k in range(1, n):
        e("v_cmp_ne_u32 s[6:7], s%d, v%d" % (S_NONCE, vtmp + k))
        e("s_or_b64 vcc, vcc, s[6:7]")
    e("s_cmp_eq_u64 vcc, 0")
    e("s_cbranch_scc1 L_pollok_%s" % tag)
    if OPT["pmask"] and n == 1:
        e("s_mov_b64 exec, vcc")
    if sleep:
        e("s_sleep %d" % sleep)
    e("s_add_u32 s5, s5, 1")
    e("s_cmp_lt_u32 s5, %d" % OPT["spin"])
    e("s_cbranch_scc1 L_poll_%s" % tag)
    e("L_pollok_%s:" % tag)
    if OPT["pmask"] and n == 1:
        e("s_mov_b64 exec, -1")
    if OPT["timing"] and cnt is not None:
        e("v_writelane_b32 v0, s5, %d" % cnt)


def flag_store(soff_reg, vtmp, scope=" sc1"):
    e("v_mov_b32 v%d, s%d" % (vtmp, S_NONCE))
    e("s_mov_b32 exec_lo, 1")
    e("s_mov_b32 exec_hi, 0")
    e("buffer_store_dword v%d, off, s[%d:%d], s%d%s" % (vtmp, SWS, SWS + 3, soff_reg, scope))
    e("s_mov_b64 exec, -1")


def x_swizzle_addrs(vg, vr0, vr1, t0, t1):
    e("v_lshrrev_b32 v%d, 2, v1" % t0)
    e("v_mul_u32_u24 v%d, 896, v%d" % (vg, t0))
    e("v_lshrrev_b32 v%d, 4, v1" % t0)
    e("v_xor_b32 v%d, v%d, v1" % (t0, t0))
    e("v_and_b32 v%d, 3, v%d" % (t0, t0))
    e("v_lshl_add_u32 v%d, v%d, 4, v%d" % (vg, t0, vg))
    e("v_and_b32 v%d, 31, v1" % t0)
    e("v_lshlrev_b32 v%d, 6, v%d" % (vr0, t0))
    e("v_lshrrev_b32 v%d, 2, v1" % t0)
    e("v_lshrrev_b32 v%d, 5, v1" % t1)
    e("v_xor_b32 v%d, v%d, v%d" % (t0, t0, t1))
    e("v_and_b32 v%d, 3, v%d" % (t0, t0))
    e("v_lshl_add_u32 v%d, v%d, 4, v%d" % (vr0, t0, vr0))
    e("v_xor_b32 v%d, 32, v%d" % (vr1, vr0))


def tr_addr(vd, hmul, stride, t0, t1):
    e("v_lshrrev_b32 v%d, 5, v1" % t0)
    e("v_mul_u32_u24 v%d, %d, v%d" % (t0, hmul, t0))
    e("v_bfe_u32 v%d, v1, 2, 2" % t1)
    e("v_add_u32 v%d, v%d, v%d" % (t0, t0, t1))
    e("v_mul_u32_u24 v%d, %d, v%d" % (vd, stride, t0))
    e("v_and_b32 v%d, 16, v1" % t0)
    e("v_lshl_add_u32 v%d, v%d, 1, v%d" % (vd, t0, vd))
    e("v_and_b32 v%d, 3, v1" % t0)
    e("v_lshl_add_u32 v%d, v%d, 3, v%d" % (vd, t0, vd))


def prologue():
    e("s_cmp_ge_u32 s2, 512")
    e("s_cbranch_scc1 L_end")
    if OPT["timing"]:
        e("s_memrealtime s[96:97]")
    if OPT["dbgts"]:
        e("s_memrealtime s[94:95]")
        e("s_load_dwordx2 s[50:51], s[0:1], 128")
    e("s_load_dwordx16 s[16:31], s[0:1], 0")
    e("s_load_dwordx16 s[32:47], s[0:1], 64")
    e("s_load_dwordx2 s[48:49], s[0:1], 136")
    e("v_and_b32 v1, 63, v0")
    e("v_lshrrev_b32 v2, 6, v0")
    e("v_readfirstlane_b32 s3, v2")
    e("s_cmp_lt_u32 s2, 256")
    e("s_cbranch_scc1 L_roleS")


A_IMG, A_XS, A_QX, A_INB = 0, 30720, 73728, 0
QF, OA, SS, PP, KVR = 64, 96, 160, 16, 192
V_G = 15


def role_a():
    S_HEAD, S_TT, S_X0, S_X1 = 8, 9, 10, 11
    SWQ, SG, SKV = 60, 64, 68
    XL = 128
    WF, DQ = 16, 96
    OQ, OO = QF + 24, OA + 48
    vXg, vXr0, vXr1, vXw, vWg, vWr, vGa, vGl = 2, 3, 4, 5, 6, 7, 8, 9
    vE, vG0, vG1 = 10, 11, 12
    e("s_and_b32 s5, s2, 7")
    e("s_bfe_u32 s6, s2, 0x50003")
    e("s_lshr_b32 s7, s6, 4")
    e("s_lshl_b32 s5, s5, 1")
    e("s_add_u32 s5, s5, s7")
    e("s_and_b32 s%d, s6, 15" % S_HEAD)
    e("s_lshl_b32 s%d, s5, 2" % S_TT)
    e("s_add_u32 s%d, s%d, s3" % (S_TT, S_TT))
    e("s_mul_i32 s%d, s%d, 28672" % (S_X0, S_TT))
    e("s_add_u32 s%d, s%d, 14336" % (S_X1, S_X0))
    e("s_setprio %d" % OPT["a0prio"])
    e("v_bfe_u32 v13, v1, 2, 3")
    e("v_mul_u32_u24 v%d, 3584, v13" % vXg)
    e("v_and_b32 v14, 3, v1")
    e("v_lshl_add_u32 v%d, v14, 4, v%d" % (vXg, vXg))
    e("v_lshrrev_b32 v13, 5, v1")
    e("v_lshl_add_u32 v%d, v13, 6, v%d" % (vXg, vXg))
    e("v_lshrrev_b32 v13, 2, v1")
    e("v_mul_u32_u24 v%d, 896, v13" % vWg)
    e("v_lshl_add_u32 v%d, v14, 4, v%d" % (vWg, vWg))
    e("v_lshlrev_b32 v%d, 1, v1" % vGa)
    e("s_mul_i32 s12, s3, %d" % (112 * 896))
    e("s_mul_i32 s13, s%d, 56" % S_HEAD)
    e("s_add_u32 s12, s12, s13")
    e("s_mul_i32 s13, s3, %d" % (112 * 64))
    e("s_mul_i32 s14, s3, 224")
    e("s_mov_b32 m0, s13")
    e("s_waitcnt lgkmcnt(0)")
    if OPT["timing"]:
        e("v_writelane_b32 v0, s96, 0")
    stamp(20)
    cstamp(29)
    e("s_load_dword s4, s[%d:%d], %d" % (P_WS, P_WS + 1, NONCE_OFF))
    srd(SWQ, P_WQ, 448 * 896)
    srd(SX, P_X, 2048 * 896)
    for m in range(7):
        e("buffer_load_dwordx4 v%d, s[%d:%d], s12 offen lds" % (vWg, SWQ, SWQ + 3))
        if m < 6:
            e("s_add_u32 m0, m0, 1024")
            e("s_add_u32 s12, s12, 14336")
    srd(SG, P_GW, 896)
    e("buffer_load_ushort v%d, v%d, s[%d:%d], s14 offen" % (vG0, vGa, SG, SG + 3))
    e("buffer_load_ushort v%d, v%d, s[%d:%d], s14 offen offset:128" % (vG1, vGa, SG, SG + 3))
    PRE = OPT["xpre"]
    assert PRE <= 2

    def xload(b):
        for g in range(4):
            e("buffer_load_dwordx4 %s, v%d, s[%d:%d], s%d offen offset:%d" % (vr(XL + 16 * (b & 3) + 4 * g, 4), vXg, SX, SX + 3, S_X0, 896 * g + 128 * b))

    NT_A = 1 if OPT["touch"] else 0

    def touch_a():
        if OPT["touch"]:
            e("buffer_load_dword v14, v4, s[%d:%d], 0 offen sc1" % (SWS, SWS + 3))

    if OPT["obar"]:
        e("s_barrier")
    for b in range(PRE):
        xload(b)
    stampd(90)
    e("s_setprio %d" % OPT["a1prio"])
    srd(SWS, P_WS, WS_BYTES)
    if OPT["touch"]:
        e("s_lshl_b32 s5, s3, 16")
        e("s_add_u32 s5, s5, 0x%x" % KV)
        e("v_lshlrev_b32 v4, 12, v1")
        e("v_and_b32 v4, 0xffff, v4")
        e("v_add_u32 v4, s5, v4")
        e("s_lshl_b32 s5, s%d, 4" % S_TT)
        e("s_add_u32 s5, s5, s%d" % S_HEAD)
        e("s_lshl_b32 s6, s5, 11")
        e("s_add_u32 s6, s6, 0x%x" % OW)
        e("v_writelane_b32 v4, s6, 16")
        e("s_lshl_b32 s6, s5, 7")
        e("s_add_u32 s6, s6, 0x%x" % FLAG_O)
        e("v_writelane_b32 v4, s6, 17")
        e("s_lshl_b32 s5, s3, 13")
        e("s_add_u32 s5, s5, 0x%x" % FLAG_KV)
        e("v_writelane_b32 v4, s5, 18")
        e("s_add_u32 s5, s5, 4096")
        e("v_writelane_b32 v4, s5, 19")
        if PRE == 7:
            touch_a()
    tr_addr(vWr, 32, 64, 13, 14)
    e("s_lshl_b32 s5, s3, 13")
    e("s_add_u32 s5, s5, 0x%x" % FLAG_KV)
    e("v_lshlrev_b32 v3, 7, v1")
    e("v_add_u32 v3, s5, v3")
    e("v_lshlrev_b32 v13, 6, v1")
    e("v_add_u32 v%d, s13, v13" % vGl)
    e("s_add_u32 s12, s3, %d" % (KV >> 16))
    e("s_lshl_b32 s12, s12, 16")
    srd(SKV, P_WS, 65536, "s12")
    for k, msk in enumerate((0x55555555, 0xAAAAAAAA, 0x33333333, 0xCCCCCCCC)):
        e("s_mov_b32 s%d, 0x%x" % (72 + 2 * k, msk))
        e("s_mov_b32 s%d, 0x%x" % (73 + 2 * k, msk))
    e("s_waitcnt vmcnt(%d)" % (4 * PRE + (NT_A if PRE == 7 else 0)))
    e("ds_write_b16 v%d, v%d offset:56" % (vGl, vG0))
    e("ds_write_b16 v%d, v%d offset:%d" % (vGl, vG1, 56 + 4096))
    e("s_waitcnt lgkmcnt(0)")
    e("s_barrier")
    stampw(6, 90)
    stamp(1)
    cstamp(27)
    e("s_add_u32 s4, s4, 0x%x" % NONCE_ADD)

    def wread(b):
        for p in range(4):
            for q in range(2):
                e("ds_read_b64_tr_b16 %s, v%d offset:%d" % (vr(WF + 16 * (b & 3) + 4 * p + 2 * q, 2), vWr, (64 * b + 8 * p + 4 * q) * 64))

    X1, X2 = "quad_perm:[1,0,3,2] row_mask:0xf bank_mask:0xf", "quad_perm:[2,3,0,1] row_mask:0xf bank_mask:0xf"

    first = [True]
    TREG = {}

    def qm(b, p):
        mfma(DQ, WF + 16 * (b & 3) + 4 * p, TREG[(b, p)], None if first[0] else DQ)
        first[0] = False

    wread(0)
    for b in range(7):
        R = [XL + 16 * (b & 3) + 4 * g for g in range(4)]
        P_, Q_ = 8, (12 if b == 0 else XL + 16 * ((b - 1) & 3) + 4)
        TREG[(b, 0)], TREG[(b, 1)], TREG[(b, 2)], TREG[(b, 3)] = R[0], R[2], Q_, R[3]
        seq = [(R[0] + k, R[1] + k, P_ + k, X1) for k in range(4)] + [(R[2] + k, R[3] + k, Q_ + k, X1) for k in range(4)]
        seq += [(P_ + k, Q_ + k, R[0] + k, X2) for k in range(4)] + [(R[1] + k, R[3] + k, R[2] + k, X2) for k in range(4)]
        if b + PRE < 7:
            xload(b + PRE)
            if b + PRE == 6:
                touch_a()
        if b > 0:
            e("s_waitcnt lgkmcnt(0)")
        if b < 6:
            wread(b + 1)
        e("s_mov_b64 vcc, s[72:73]")
        e("s_waitcnt vmcnt(%d)" % (4 * (min(b + PRE, 6) - b) + (1 if OPT["early"] == 2 and b > OPT["eb"] else 0)))
        if b == OPT["eb"] and OPT["early"] == 2:
            e("buffer_load_dword v4, v3, s[%d:%d], 0 offen sc1" % (SWS, SWS + 3))
        if b == 6:
            e("v_lshlrev_b32 v2, 4, v1")
        for i in range(18):
            if 1 <= i <= 16:
                A_, B_, N_, pat = seq[i - 1]
                e("v_xor_b32 v%d, v%d, v%d" % (A_, A_, N_))
            if i == 8:
                e("s_mov_b64 vcc, s[76:77]")
            if i < 16:
                A_, B_, N_, pat = seq[i]
                e("v_cndmask_b32_dpp v%d, v%d, v%d, vcc %s" % (N_, B_, A_, pat))
            if i == 17:
                qm(b, 2)
            if i >= 2:
                A_, B_, N_, pat = seq[i - 2]
                e("v_xor_b32_dpp v%d, v%d, v%d %s" % (B_, A_, B_, pat))
            if b > 0 and i == 2:
                qm(b - 1, 1)
            if b > 0 and i == 7:
                qm(b - 1, 3)
            if i == 12:
                if b == 0:
                    e("s_waitcnt lgkmcnt(8)")
                qm(b, 0)
    qm(6, 1)
    qm(6, 3)
    cstamp(28)
    stamp(7)

    def Kf(b, k):
        return KVR + 16 * b + 4 * k

    def Vf(b, k):
        return KVR + 16 * b + 8 + 4 * k

    def ld(reg, soff, off):
        e("buffer_load_dwordx4 %s, v2, s[%d:%d], %s offen offset:%d sc1" % (vr(reg, 4), SKV, SKV + 3, soff, off))

    S_OFF, S_EARLY = 13, 11

    def kv_first():
        for b in range(4):
            if b == 0:
                so = "0"
            else:
                e("s_mov_b32 s%d, %d" % (S_OFF, 4096 * b))
                so = "s%d" % S_OFF
            ld(Kf(b, 0), so, 0)
            ld(Kf(b, 1), so, 1024)
            if b < 3:
                ld(Vf(b, 0), so, 2048)
                ld(Vf(b, 1), so, 3072)

    if OPT["early"] == 1:
        e("buffer_load_dword v4, v3, s[%d:%d], 0 offen sc1" % (SWS, SWS + 3))
    e("s_mov_b32 s12, 0x%x" % f32(28 ** -0.5 * LOG2E))
    e("s_mov_b32 s14, 0")
    e("s_mov_b32 s15, -1")
    e("s_lshl_b32 s5, s3, 11")
    e("s_add_u32 s5, s5, %d" % A_QX)
    e("v_add_u32 v12, s5, v2")
    for i in range(1, 4):
        e("s_add_u32 s5, s3, %d" % i)
        e("s_and_b32 s5, s5, 3")
        e("s_lshl_b32 s6, s5, 11")
        e("s_add_u32 s6, s6, %d" % A_QX)
        e("v_add_u32 v%d, s6, v2" % (4 + i))
        e("s_mul_i32 s6, s5, 12288")
        e("s_add_u32 s6, s6, %d" % (A_INB + (i - 1) * 4096))
        e("v_add_u32 v%d, s6, v2" % (7 + i))
    e("s_mul_i32 s6, s3, 12288")
    e("v_add_u32 v11, s6, v2")
    e("v_mul_f32 v%d, 0x%x, v%d" % (V_G, f32(-LOG2E), DQ + 12))
    for k in range(8):
        e("v_pk_mul_f32 %s, %s, s[12:13] op_sel_hi:[1,0]" % (vr(DQ + 2 * k, 2), vr(DQ + 2 * k, 2)))
    e("v_exp_f32 v%d, v%d" % (V_G, V_G))
    for k in range(8):
        e("v_cvt_pk_bf16_f32 v%d, v%d, v%d" % (OQ + k, DQ + 2 * k, DQ + 2 * k + 1))
    e("v_cndmask_b32 v%d, v%d, 0, s[14:15]" % (OQ + 6, OQ + 6))
    e("v_cndmask_b32 v%d, v%d, 0, s[14:15]" % (OQ + 7, OQ + 7))
    e("ds_write_b128 v12, %s" % vr(OQ, 4))
    e("ds_write_b128 v12, %s offset:1024" % vr(OQ + 4, 4))
    for k in range(4):
        e("v_pk_mov_b32 %s, 0, 0" % vr(PP + 8 + 2 * k, 2))
    for k in range(4):
        e("v_pk_mov_b32 %s, 0, 0" % vr(KVR + 56 + 2 * k, 2))
    e("v_add_f32 v%d, 1.0, v%d" % (V_G, V_G))
    e("v_rcp_f32 v%d, v%d" % (V_G, V_G))
    if OPT["early"] == 2:
        e("s_waitcnt vmcnt(0)")
        e("v_cmp_ne_u32 vcc, s4, v4")
        e("s_cmp_eq_u64 vcc, 0")
        e("s_cselect_b32 s%d, 1, 0" % S_EARLY)
        e("s_cbranch_scc0 L_a_late1")
        kv_first()
        e("s_branch L_a_j1")
        e("L_a_late1:")
        e("buffer_load_dword v4, v3, s[%d:%d], 0 offen sc1" % (SWS, SWS + 3))
        e("L_a_j1:")
    e("s_waitcnt lgkmcnt(0)")
    e("s_barrier")
    for i in range(3):
        e("ds_read_b128 %s, v%d" % (vr(QF + 8 * i, 4), 5 + i))
        e("ds_read_b128 %s, v%d offset:1024" % (vr(QF + 8 * i + 4, 4), 5 + i))
    for i in range(4):
        mfma(OA + 16 * i, PP + 8, PP + 8, None)
    stamp(2)
    if OPT["early"] == 2:
        e("s_cmp_lg_u32 s%d, 0" % S_EARLY)
        e("s_cbranch_scc1 L_a_go")
    if OPT["early"]:
        e("s_waitcnt vmcnt(0)")
        e("v_cmp_ne_u32 vcc, s4, v4")
        e("s_cmp_eq_u64 vcc, 0")
        e("s_cbranch_scc1 L_pollok_kv")
    poll("kv", 3, 4, sleep=OPT["kvsleep"])
    kv_first()
    e("L_a_go:")
    e("s_cmp_lg_u32 s3, 0")
    e("s_cbranch_scc1 L_a_noalive")
    e("s_lshl_b32 s5, s2, 7")
    e("s_add_u32 s5, s5, 0x%x" % ALIVE)
    flag_store(5, 13)
    e("L_a_noalive:")
    e("s_cmp_lg_u32 s%d, 0" % S_HEAD)
    e("s_cbranch_scc1 L_a_nog")
    e("s_lshl_b32 s5, s%d, 8" % S_TT)
    e("s_add_u32 s5, s5, 0x%x" % (G1 - 256))
    e("v_lshlrev_b32 v14, 3, v1")
    e("v_sub_f32 v12, 1.0, v%d" % V_G)
    e("v_mov_b32 v13, s4")
    e("s_mov_b32 exec_lo, 0")
    e("buffer_store_dwordx2 v[12:13], v14, s[%d:%d], s5 offen sc1" % (SWS, SWS + 3))
    e("s_mov_b32 exec_lo, -1")
    e("L_a_nog:")
    stamp(3)
    e("s_setprio %d" % OPT["aprio"])
    e("s_waitcnt vmcnt(12) lgkmcnt(0)")
    stamp(8)
    cstamp(22)
    mfma(SS, Kf(0, 0), QF, None)
    mfma(SS, Kf(0, 1), QF + 4, SS)

    def M1(n, bi):
        mfma(SS + 16 * (n & 1), Kf(bi[0], 0), QF + 8 * bi[1], None)

    def step(n, prev, nx1, nx2, X):
        S = SS + 16 * (n & 1)
        Sn = SS + 16 * ((n + 1) & 1)
        P = PP + 8 * (n & 1)
        Pp = PP + 8 * ((n - 1) & 1)

        def ex(a, b_):
            for r in range(a, b_):
                e("v_exp_f32 v%d, v%d" % (S + r, S + r))

        def cv(a, b_):
            for k in range(a, b_):
                e("v_cvt_pk_bf16_f32 v%d, v%d, v%d" % (P + k, S + 2 * k, S + 2 * k + 1))

        def xx(k):
            for f in X.get(k, ()):
                f() if callable(f) else e(f)

        xx(0)
        ex(0, 4)
        mfma(OA + 16 * prev[1], Vf(prev[0], 0), Pp, OA + 16 * prev[1])
        xx(1)
        ex(4, 8)
        cv(0, 2)
        if nx1:
            mfma(Sn, Kf(nx1[0], 1), QF + 8 * nx1[1] + 4, Sn)
        xx(2)
        ex(8, 12)
        cv(2, 4)
        mfma(OA + 16 * prev[1], Vf(prev[0], 1), Pp + 4, OA + 16 * prev[1])
        xx(3)
        ex(12, 16)
        cv(4, 8)
        xx(4)
        if nx2:
            M1(n, nx2)

    BI = lambda n: ((n >> 2) & 3, n & 3)
    e("s_nop 10")
    M1(1, BI(1))
    e("L_attn:")
    for n in range(16):
        X = {}
        so = "s%d" % S_OFF
        if n % 4 == 1:
            vb = ((n >> 2) + 3) & 3
            X = {0: ["s_waitcnt vmcnt(10)"], 1: [lambda: ld(Vf(vb, 0), so, 2048)], 2: [lambda: ld(Vf(vb, 1), so, 3072)],
                 3: ["s_add_u32 s%d, s%d, 4096" % (S_OFF, S_OFF)]}
        if n % 4 == 2:
            X = {3: ["s_waitcnt vmcnt(10)"]}
        if n % 4 == 3:
            kb = (n >> 2) & 3
            X = {0: [lambda: ld(Kf(kb, 0), so, 0)], 1: [lambda: ld(Kf(kb, 1), so, 1024)]}
            if n == 15:
                X[3] = ["s_cmp_lt_u32 s%d, %d" % (S_OFF, 4096 * 15)]
        step(n, BI(n - 1), BI(n + 1), BI(n + 2), X)
    e("s_cbranch_scc1 L_attn")
    SEQ = [(0, 0), (0, 1), (1, 0), (1, 1), (2, 0), (2, 1), (3, 0), (3, 1)] + [(b, 2) for b in range(4)] + [(b, 3) for b in range(4)]

    def wr(sl, q):
        return "ds_write_b128 v%d, %s offset:%d" % (8 + sl, vr(OA + 16 * sl + 4 * q, 4), q * 1024)

    def rd(k):
        return "ds_read_b128 %s, v11 offset:%d" % (vr(OA + 4 * k, 4), k * 1024)

    def pa(d, a_):
        return "v_pk_add_f32 %s, %s, %s" % (vr(d, 2), vr(d, 2), vr(a_, 2))

    def hint():
        flag_store(7, 7, "")

    so = "s%d" % S_OFF
    XP = {n: {} for n in range(16)}
    XP[0] = {4: ["s_waitcnt vmcnt(8)"]}
    XP[1] = {1: [lambda: ld(Vf(3, 0), so, 2048)], 2: [lambda: ld(Vf(3, 1), so, 3072)]}
    XP[2] = {4: ["s_waitcnt vmcnt(6)"]}
    XP[4] = {4: ["s_waitcnt vmcnt(2)"]}
    XP[7] = {0: ["s_waitcnt vmcnt(0)"]}
    XP[5] = {0: ["s_lshl_b32 s5, s%d, 4" % S_TT, "s_add_u32 s5, s5, s%d" % S_HEAD], 1: ["s_lshl_b32 s6, s5, 11", "s_add_u32 s6, s6, 0x%x" % OW],
             2: ["s_lshl_b32 s7, s5, 7", "s_add_u32 s7, s7, 0x%x" % FLAG_O], 3: ["s_and_b32 s5, s4, 0xbfff0000", "s_mov_b32 s10, 0x07060100", "s_mov_b32 s11, 0x07060302"]}
    XP[6] = {0: ["v_mov_b32 v40, s5", "v_mov_b32 v41, 0x03020100"], 1: ["v_mov_b32 v42, 0x07060100", "v_mov_b32 v43, 0x07060302"],
             2: ["v_cndmask_b32 v41, v41, v42, s[14:15]"], 3: ["v_cndmask_b32 v42, v42, v43, s[14:15]"]}
    XP[8] = {k + 1: [wr(0, k)] for k in range(4)}
    XP[9] = {k + 1: [wr(1, k)] for k in range(4)}
    XP[13] = {1: [wr(2, 0), wr(2, 1)], 2: [wr(2, 2), wr(2, 3)], 4: ["s_waitcnt lgkmcnt(0)", "s_barrier"] + ([hint] if OPT["hintpos"] == 1 else [])}
    XP[14] = {0: [rd(0), rd(4), rd(1), rd(5)], 1: [rd(2), rd(6), rd(3), rd(7)], 2: [rd(8), rd(9), rd(10), rd(11)],
              4: ["s_waitcnt lgkmcnt(4)"] + [pa(OA + 2 * k, OA + 16 + 2 * k) for k in range(4)]}
    XP[15] = {0: ([hint] if OPT["hintpos"] == 3 else []) + [pa(OA + 2 * k, OA + 16 + 2 * k) for k in range(4, 8)],
              1: ["s_waitcnt lgkmcnt(0)"] + [pa(OA + 2 * k, OA + 32 + 2 * k) for k in range(4)],
              2: [pa(OA + 2 * k, OA + 32 + 2 * k) for k in range(4, 8)],
              3: ["s_mov_b32 s12, 0x%x" % f32(2.0 ** -60), "s_mov_b32 s13, 0x%x" % f32(2.0 ** 60)]}
    for n in range(16):
        step(n, SEQ[n - 1] if n else (3, 3), SEQ[n + 1] if n < 15 else None, SEQ[n + 2] if n < 14 else None, XP[n])
    mfma(OO, Vf(3, 0), PP + 8, OO)
    mfma(OO, Vf(3, 1), PP + 12, OO)
    if OPT["hintpos"] == 4:
        hint()
    cstamp(23)
    stamp(4)
    for k in range(8):
        e(pa(OO + 2 * k, OA + 2 * k))
    e("v_pk_mul_f32 v[4:5], %s, 0" % vr(OO, 2))
    for k in range(1, 8):
        e("v_pk_fma_f32 v[4:5], %s, 0, v[4:5]" % vr(OO + 2 * k, 2))
    e("v_cmp_nle_f32 s[72:73], s12, v%d" % (OO + 12))
    e("v_cmp_nge_f32 s[74:75], s13, v%d" % (OO + 12))
    e("v_cmp_u_f32 vcc, v4, v5")
    e("s_or_b32 s73, s73, s75")
    e("s_or_b32 s73, s73, vcc_hi")
    e("s_or_b32 s73, s73, vcc_lo")
    if OPT["force_fb"]:
        e("s_mov_b32 s73, 1")
    e("s_cmp_lg_u32 s73, 0")
    e("s_cbranch_scc1 L_fb")
    e("L_fin:")
    e("v_rcp_f32 v4, v%d" % (OO + 12))
    e("v_mul_f32 v4, v4, v%d" % V_G)
    e("v_mov_b32 v5, v4")
    e("v_permlane32_swap_b32 v5, v4")
    for k in (3, 5, 7, 6, 0, 1, 2, 4):
        e("v_pk_mul_f32 %s, %s, v[4:5] op_sel_hi:[1,0]" % (vr(OO + 2 * k, 2), vr(OO + 2 * k, 2)))
    for k in (3, 7):
        e("v_cvt_pk_bf16_f32 v%d, v%d, v%d" % (32 + k, OO + 2 * k, OO + 2 * k + 1))
    e("v_perm_b32 v44, v39, v35, s11")
    e("v_cvt_pk_bf16_f32 v38, v%d, v%d" % (OO + 12, OO + 13))
    e("v_mov_b32 v45, v44")
    for k in (0, 1):
        e("v_cvt_pk_bf16_f32 v%d, v%d, v%d" % (32 + k, OO + 2 * k, OO + 2 * k + 1))
    e("v_permlane32_swap_b32 v45, v44")
    for k in (2, 4, 5):
        e("v_cvt_pk_bf16_f32 v%d, v%d, v%d" % (32 + k, OO + 2 * k, OO + 2 * k + 1))
    e("v_cndmask_b32 v38, v38, v45, s[14:15]")
    e("v_cndmask_b32 v39, v39, v45, s[14:15]")
    e("v_perm_b32 v38, v35, v38, v41")
    e("v_perm_b32 v35, v40, v35, s10")
    e("v_perm_b32 v39, v40, v39, v42")
    e("buffer_store_dwordx4 v[32:35], v2, s[%d:%d], s6 offen" % (SWS, SWS + 3))
    e("buffer_store_dwordx4 v[36:39], v2, s[%d:%d], s6 offen offset:1024" % (SWS, SWS + 3))
    if OPT["hintpos"] == 2 and not OPT["nonear"]:
        flag_store(7, 7, "")
    e("s_add_u32 s6, s6, 0x%x" % (OW2 - OW))
    e("s_add_u32 s7, s7, 0x%x" % (FLAG_O2 - FLAG_O))
    e("buffer_store_dwordx4 v[32:35], v2, s[%d:%d], s6 offen sc1" % (SWS, SWS + 3))
    e("buffer_store_dwordx4 v[36:39], v2, s[%d:%d], s6 offen offset:1024 sc1" % (SWS, SWS + 3))
    flag_store(7, 7)
    stamp(5)
    cstamp(30)
    dbg_stamp(256, 264, 0, True)
    stamp_flush()
    e("s_endpgm")

    SALL = 76
    e("L_fb:")
    srd(SALL, P_WS, 262144, "0x%x" % KV)
    e("v_mov_b32 v7, 0xff800000")
    e("s_mov_b32 s12, 0")
    e("L_fb1:")
    e("buffer_load_dwordx4 v[192:195], v2, s[%d:%d], s12 offen sc1" % (SALL, SALL + 3))
    e("buffer_load_dwordx4 v[196:199], v2, s[%d:%d], s12 offen offset:1024 sc1" % (SALL, SALL + 3))
    e("s_waitcnt vmcnt(0)")
    mfma(SS, 192, OQ, None)
    mfma(SS, 196, OQ + 4, SS)
    for k in range(8):
        e("v_max3_f32 v7, v7, v%d, v%d" % (SS + 2 * k, SS + 2 * k + 1))
    e("s_add_u32 s12, s12, 4096")
    e("s_cmp_lt_u32 s12, 262144")
    e("s_cbranch_scc1 L_fb1")
    e("v_mov_b32 v8, v7")
    e("v_permlane32_swap_b32 v8, v7")
    e("v_max_f32 v7, v7, v8")
    for k in range(16):
        e("v_mov_b32 v%d, 0" % (OO + k))
    e("s_mov_b32 s12, 0")
    e("L_fb2:")
    for k in range(4):
        e("buffer_load_dwordx4 %s, v2, s[%d:%d], s12 offen offset:%d sc1" % (vr(192 + 4 * k, 4), SALL, SALL + 3, 1024 * k))
    e("s_waitcnt vmcnt(0)")
    mfma(SS, 192, OQ, None)
    mfma(SS, 196, OQ + 4, SS)
    for k in range(16):
        e("v_sub_f32 v%d, v%d, v7" % (SS + k, SS + k))
    for k in range(16):
        e("v_exp_f32 v%d, v%d" % (SS + k, SS + k))
    for k in range(8):
        e("v_cvt_pk_bf16_f32 v%d, v%d, v%d" % (PP + k, SS + 2 * k, SS + 2 * k + 1))
    mfma(OO, 200, PP, OO)
    mfma(OO, 204, PP + 4, OO)
    e("s_add_u32 s12, s12, 4096")
    e("s_cmp_lt_u32 s12, 262144")
    e("s_cbranch_scc1 L_fb2")
    e("s_nop 8")
    e("s_branch L_fin")


S_STG = 16896
S_INB1 = 16896
S_WL = 49664
S_PX = 67584
KR0, KR1, XC0 = 0, 7680, 15360
XCS = 4160
L_CPX = 48640
S_OF, S_G1, S_OT = 0, 32768, 40960


def cmul(d, x, m, t):
    e("v_pk_mul_f32 %s, %s, %s op_sel_hi:[1,0]" % (vr(t, 2), vr(x, 2), vr(m, 2)))
    e("v_pk_fma_f32 %s, %s, %s, %s op_sel:[1,1,0] op_sel_hi:[0,1,1] neg_lo:[1,0,0]" % (vr(d, 2), vr(x, 2), vr(m, 2), vr(t, 2)))


def role_s():
    S_ID, S_J, S_CP = 8, 9, 15
    SW, SWO, SOUT = 60, 64, 68
    vE = 10
    PRM = 240
    XTR = 128

    def xt_flag(tag):
        e("s_cmp_ge_u32 s84, 0x%x" % (FLAG_XT + 7 * 64 * 128))
        e("s_cbranch_scc1 L_s_noxf%s" % tag)
        e("s_waitcnt vmcnt(0)")
        flag_store(84, 14)
        e("L_s_noxf%s:" % tag)

    def alive(tag):
        e("s_cmp_lg_u32 s3, 3")
        e("s_cbranch_scc1 L_s_al%s" % tag)
        e("s_lshl_b32 s5, s2, 7")
        e("s_add_u32 s5, s5, 0x%x" % ALIVE)
        flag_store(5, 13)
        e("L_s_al%s:" % tag)

    e("L_roleS:")
    e("s_setprio 3")
    e("s_mov_b32 s%d, s2" % S_ID)
    e("s_lshr_b32 s%d, s%d, 3" % (S_J, S_ID))
    e("s_and_b32 s10, s%d, 7" % S_ID)
    e("s_mul_i32 s%d, s10, 28" % S_CP)
    e("s_add_u32 s%d, s%d, s%d" % (S_CP, S_CP, S_J))
    vXg, vXr0, vXr1, vL16, vWr = 2, 3, 4, 5, 6
    S_TAU, S_KIND = 11, 12
    e("v_lshrrev_b32 v13, 2, v1")
    e("v_mul_u32_u24 v%d, 896, v13" % vXg)
    e("v_lshrrev_b32 v13, 4, v1")
    e("v_xor_b32 v13, v13, v1")
    e("v_and_b32 v13, 3, v13")
    e("v_lshl_add_u32 v%d, v13, 4, v%d" % (vXg, vXg))
    e("v_lshlrev_b32 v%d, 4, v1" % vL16)
    e("s_lshl_b32 s10, s10, 3")
    e("s_sub_u32 s5, s%d, 16" % S_J)
    e("s_lshr_b32 s5, s5, 1")
    e("s_add_u32 s%d, s10, s5" % S_TAU)
    e("s_and_b32 s%d, s%d, 1" % (S_KIND, S_J))
    e("s_lshl_b32 s5, s3, 13")
    e("s_add_u32 s5, s5, 16896")
    e("s_cmp_eq_u32 s3, 0")
    e("s_cselect_b32 s13, 8192, s5")
    e("s_mul_i32 s14, s3, 7232")
    e("s_add_u32 s14, s14, %d" % S_WL)
    e("s_mul_i32 s5, s%d, 28672" % S_TAU)
    e("s_lshl_b32 s6, s3, 8")
    e("s_add_u32 s5, s5, s6")
    e("s_add_u32 s6, s5, 14336")
    e("s_mov_b32 m0, s13")
    e("s_mov_b32 s%d, %d" % (SW + 2, 448 * 56))
    e("s_mov_b32 s%d, 0x20000" % (SW + 3))
    e("s_mov_b32 s%d, 0x%x" % (SX + 2, 2048 * 896))
    e("s_mov_b32 s%d, 0x20000" % (SX + 3))
    e("s_cmp_lt_u32 s%d, 28" % S_J)
    e("s_cselect_b32 s7, s%d, 0" % S_CP)
    e("s_lshl_b32 s74, s7, 2")
    e("s_cmp_lt_u32 s%d, 16" % S_J)
    e("s_waitcnt lgkmcnt(0)")
    if OPT["timing"]:
        e("v_writelane_b32 v0, s96, 0")
    stamp(20)
    e("s_load_dword s4, s[%d:%d], %d" % (P_WS, P_WS + 1, NONCE_OFF))
    e("s_load_dword s72, s[%d:%d], s74" % (P_LDT, P_LDT + 1))
    e("s_load_dword s73, s[%d:%d], s74" % (P_DSK, P_DSK + 1))
    e("s_cbranch_scc1 L_s_nokv1")
    e("s_mov_b32 s%d, s%d" % (SX, P_X))
    e("s_mov_b32 s%d, s%d" % (SX + 1, P_X + 1))
    e("s_cmp_eq_u32 s%d, 0" % S_KIND)
    e("s_cselect_b32 s%d, s%d, s%d" % (SW, P_WK, P_WV))
    e("s_cselect_b32 s%d, s%d, s%d" % (SW + 1, P_WK + 1, P_WV + 1))
    for pp in range(4):
        for rh in range(2):
            e("buffer_load_dwordx4 v%d, s[%d:%d], s%d offen lds" % (vXg, SX, SX + 3, 6 if rh else 5))
            e("s_add_u32 m0, m0, 1024")
            if pp < 3:
                e("s_add_u32 s%d, s%d, 64" % (6 if rh else 5, 6 if rh else 5))
    e("s_mul_i32 s5, s3, 7168")
    e("s_mov_b32 m0, s14")
    e("s_add_u32 s6, s5, 4096")
    for m in range(4):
        e("buffer_load_dwordx4 v%d, s[%d:%d], s5 offen offset:%d lds" % (vL16, SW, SW + 3, 1024 * m))
    e("s_add_u32 m0, m0, 4096")
    for m in range(3):
        e("buffer_load_dwordx4 v%d, s[%d:%d], s6 offen offset:%d lds" % (vL16, SW, SW + 3, 1024 * m))
    e("L_s_nokv1:")
    e("s_lshl_b32 s5, s7, 10")
    e("s_lshl_b32 s6, s3, 8")
    e("s_add_u32 s5, s5, s6")
    e("v_lshlrev_b32 v7, 2, v1")
    e("v_add_u32 v7, s5, v7")
    for k, p in enumerate((P_ARE, P_AIM, P_BRE, P_BIM, P_CRE, P_CIM)):
        e("global_load_dword v%d, v7, s[%d:%d]" % (PRM + k, p, p + 1))
    srd(SWS, P_WS, WS_BYTES)
    srd(SWO, P_WO, 448 * 896)
    NPF = 0
    if OPT["wopf"]:
        e("s_lshl_b32 s5, s%d, 2" % S_J)
        e("s_add_u32 s5, s5, s3")
        e("s_mul_i32 s5, s5, 3200")
        e("v_min_u32 v8, 24, v1")
        e("v_lshlrev_b32 v8, 7, v8")
        e("buffer_load_dword v%d, v8, s[%d:%d], s5 offen" % (PRM + 6, SWO, SWO + 3))
        NPF += 1
    if OPT["touch"]:
        e("v_lshlrev_b32 v8, 16, v1")
        e("v_add_u32 v8, 0x8000, v8")
        e("buffer_load_dword v%d, v8, s[%d:%d], 0 offen sc1" % (PRM + 7, SWS, SWS + 3))
        e("v_add_u32 v8, 0x400000, v8")
        e("buffer_load_dword v%d, v8, s[%d:%d], 0 offen sc1" % (PRM + 8, SWS, SWS + 3))
        NPF += 2
    e("s_cmp_lt_u32 s%d, 16" % S_J)
    e("s_cbranch_scc1 L_s_nokv2")
    e("v_and_b32 v13, 31, v1")
    e("v_lshlrev_b32 v%d, 6, v13" % vXr0)
    e("v_lshrrev_b32 v13, 2, v1")
    e("v_lshrrev_b32 v14, 5, v1")
    e("v_xor_b32 v13, v13, v14")
    e("v_and_b32 v13, 3, v13")
    e("v_lshl_add_u32 v%d, v13, 4, v%d" % (vXr0, vXr0))
    e("v_xor_b32 v%d, 32, v%d" % (vXr1, vXr0))
    tr_addr(vWr, 8, 56, 13, 14)
    e("v_add_u32 v%d, s14, v%d" % (vWr, vWr))
    e("v_add_u32 v%d, s13, v%d" % (vXr0, vXr0))
    e("v_add_u32 v%d, s13, v%d" % (vXr1, vXr1))
    e("s_lshl_b32 s5, s3, 11")
    e("v_add_u32 v8, s5, v%d" % vL16)
    e("s_lshl_b32 s5, s%d, 12" % S_KIND)
    e("s_add_u32 s5, s5, s13")
    e("v_lshrrev_b32 v13, 5, v1")
    e("v_lshlrev_b32 v20, 11, v13")
    e("v_bfe_u32 v13, v1, 2, 2")
    e("v_lshl_add_u32 v20, v13, 6, v20")
    e("v_and_b32 v13, 1, v1")
    e("v_lshl_add_u32 v20, v13, 3, v20")
    e("v_add_u32 v20, s5, v20")
    e("v_bfe_u32 v13, v1, 4, 1")
    e("v_bfe_u32 v14, v1, 1, 1")
    e("v_lshl_add_u32 v13, v13, 1, v14")
    for m in range(4):
        e("v_xor_b32 v14, %d, v13" % m)
        e("v_lshl_add_u32 v%d, v14, 4, v20" % (16 + m))
    e("s_lshl_b32 s5, s3, 1")
    e("s_add_u32 s5, s5, s%d" % S_KIND)
    e("s_lshl_b32 s84, s5, 6")
    e("s_add_u32 s84, s84, s%d" % S_TAU)
    e("s_lshl_b32 s84, s84, 7")
    e("s_add_u32 s84, s84, 0x%x" % FLAG_XT)
    e("s_lshl_b32 s5, s5, 10")
    e("s_mul_i32 s85, s%d, %d" % (S_TAU, 4 * 7168))
    e("s_add_u32 s85, s85, s5")
    e("s_add_u32 s85, s85, 0x%x" % XT)
    XF, WF, DK = 64, 96, 48
    e("s_waitcnt vmcnt(%d) lgkmcnt(0)" % (6 + NPF))
    stamp(1)
    e("s_add_u32 s4, s4, 0x%x" % NONCE_ADD)
    for s in range(8):
        e("ds_read_b128 %s, v%d offset:%d" % (vr(XF + 4 * s, 4), vXr1 if s & 1 else vXr0, (s >> 1) * 2048))
        for q in range(2):
            e("ds_read_b64_tr_b16 %s, v%d offset:%d" % (vr(WF + 4 * s + 2 * q, 2), vWr, s * 896 + q * 224))
    e("s_cmp_eq_u32 s%d, 0" % S_KIND)
    e("s_cbranch_scc0 L_s_kind1")
    for s in range(8):
        e("s_waitcnt lgkmcnt(%d)" % min(15, 21 - 3 * s))
        mfma(DK, WF + 4 * s, XF + 4 * s, None if s == 0 else DK)
    e("s_branch L_s_kindj")
    e("L_s_kind1:")
    for s in range(8):
        e("s_waitcnt lgkmcnt(%d)" % min(15, 21 - 3 * s))
        mfma(DK, XF + 4 * s, WF + 4 * s, None if s == 0 else DK)
    e("L_s_kindj:")
    for m in range(8):
        e("ds_read_b64_tr_b16 %s, v%d offset:%d" % (vr(XTR + 2 * m, 2), 16 + (m & 3), 256 * (m & 3) + 1024 * (m >> 2)))
    e("s_cmp_eq_u32 s%d, 0" % S_KIND)
    e("s_cselect_b32 s74, 0, 0xe0000000")
    e("s_mov_b32 s75, s74")
    e("s_mov_b32 s76, s74")
    e("s_cselect_b32 s78, 0, 0x10000000")
    e("s_mov_b32 s79, s78")
    e("s_cselect_b32 s5, -1, 0")
    e("s_cmp_eq_u32 s3, 1")
    e("s_cselect_b32 s5, s5, 0")
    e("s_or_b32 s77, s74, s5")
    e("v_mov_b32 v9, 0x3f803f80")
    for q in range(4):
        e("ds_write_b128 v8, %s offset:%d" % (vr(DK + 4 * q, 4), (q >> 1) * S_INB1 + (q & 1) * 1024))
    e("s_waitcnt lgkmcnt(0)")
    e("s_barrier")
    e("s_cmp_ge_u32 s3, 2")
    e("s_cbranch_scc1 L_s_kvdone")
    e("s_mul_i32 s5, s3, %d" % S_INB1)
    e("v_add_u32 v8, s5, v%d" % vL16)
    for k in range(8):
        e("ds_read_b128 %s, v8 offset:%d" % (vr(64 + 4 * k, 4), k * 1024))
    e("s_lshl_b32 s5, s%d, 1" % S_TAU)
    e("s_add_u32 s5, s5, s%d" % S_KIND)
    e("s_lshl_b32 s5, s5, 1")
    e("s_add_u32 s5, s5, s3")
    e("s_lshl_b32 s6, s5, 10")
    e("s_add_u32 s6, s6, 0x%x" % KV)
    e("s_lshl_b32 s7, s5, 7")
    e("s_add_u32 s7, s7, 0x%x" % FLAG_KV)
    e("s_waitcnt lgkmcnt(4)")
    for k in range(4):
        e("v_pk_add_f32 %s, %s, %s" % (vr(64 + 2 * k, 2), vr(64 + 2 * k, 2), vr(72 + 2 * k, 2)))
    e("s_waitcnt lgkmcnt(0)")
    for k in range(4):
        e("v_pk_add_f32 %s, %s, %s" % (vr(80 + 2 * k, 2), vr(80 + 2 * k, 2), vr(88 + 2 * k, 2)))
    for k in range(4):
        e("v_pk_add_f32 %s, %s, %s" % (vr(64 + 2 * k, 2), vr(64 + 2 * k, 2), vr(80 + 2 * k, 2)))
    for k in range(4):
        e("v_cvt_pk_bf16_f32 v%d, v%d, v%d" % (72 + k, 64 + 2 * k, 65 + 2 * k))
    for k in range(4):
        e("v_cndmask_b32 v%d, v%d, 0, %s" % (72 + k, 72 + k, "s[74:75]" if k < 2 else "s[76:77]"))
    for k in range(4):
        e("v_cndmask_b32 v%d, v%d, v9, s[78:79]" % (72 + k, 72 + k))
    stamp(17)
    e("buffer_store_dwordx4 v[72:75], v%d, s[%d:%d], s6 offen sc1" % (vL16, SWS, SWS + 3))
    e("s_waitcnt vmcnt(0)")
    stamp(18)
    flag_store(7, 9)
    if OPT["timing"]:
        e("s_waitcnt vmcnt(0)")
    stamp(26)
    e("L_s_kvdone:")
    e("s_setprio %d" % OPT["kprio"])
    e("s_waitcnt vmcnt(%d)" % NPF)
    e("s_cmp_ge_u32 s84, 0x%x" % (FLAG_XT + 7 * 64 * 128))
    e("s_cbranch_scc1 L_s_noxt")
    for q in range(4):
        e("buffer_store_dwordx4 %s, v%d, s[%d:%d], s85 offen sc1" % (vr(XTR + 4 * q, 4), vL16, SWS, SWS + 3))
        if q < 3:
            e("s_add_u32 s85, s85, 7168")
    e("L_s_noxt:")
    stamp(2)
    e("s_cmp_lt_u32 s%d, 28" % S_J)
    e("s_cbranch_scc1 L_s_kgen")
    alive("i")
    xt_flag("a")
    e("s_barrier")
    e("s_branch L_s_wo")
    e("L_s_nokv2:")
    e("s_setprio %d" % OPT["kprio"])
    e("s_mov_b32 s84, -1")
    e("s_waitcnt vmcnt(%d) lgkmcnt(0)" % NPF)
    e("s_add_u32 s4, s4, 0x%x" % NONCE_ADD)
    e("L_s_kgen:")
    alive("k")
    stamp(11)
    e("s_lshr_b32 s5, s3, 1")
    e("s_lshl_b32 s5, s5, 4")
    e("s_lshr_b32 s72, s72, s5")
    e("s_lshl_b32 s72, s72, 16")
    e("s_lshr_b32 s73, s73, s5")
    e("s_lshl_b32 s73, s73, 16")
    c_hi = struct.unpack("<f", struct.pack("<I", f32(LOG2E) & 0xFFFFFF00))[0]
    c_lo = (LOG2E - c_hi) * math.log(2.0)
    e("v_mov_b32 v8, s72")
    e("v_mul_f32 v9, 0x%x, v8" % f32(c_hi))
    e("v_exp_f32 v9, v9")
    e("v_mul_f32 v8, 0x%x, v8" % f32(c_lo))
    e("v_fma_f32 v9, v9, v8, v9")
    e("v_cvt_pk_bf16_f32 v9, v9, v9")
    e("v_and_b32 v9, 0xffff0000, v9")
    ZR, ZI = (16, 17), (18, 19)
    E1, E8, EG, WW, TT, XX = (20, 22), (24, 26), (28, 30), (32, 34), (36, 38), (40, 42)
    R2, R4, R6 = (44, 46), (48, 50), (52, 54)
    OUT = 56

    def unp(d, src, m):
        if m == 0:
            e("v_lshlrev_b32 v%d, 16, v%d" % (d, src))
        else:
            e("v_and_b32 v%d, 0xffff0000, v%d" % (d, src))

    for m in range(2):
        unp(ZR[m], PRM + 0, m)
        unp(ZI[m], PRM + 1, m)
    for m in range(2):
        e("v_mul_f32 v%d, v9, v%d" % (ZR[m], ZR[m]))
        e("v_mul_f32 v%d, v9, v%d" % (ZI[m], ZI[m]))
    for m in range(2):
        e("v_mul_f32 v%d, 0x%x, v%d" % (ZR[m], f32(LOG2E), ZR[m]))
        e("v_mul_f32 v%d, 0x%x, v%d" % (ZI[m], f32(1.0 / (2 * math.pi)), ZI[m]))

    def cexp(dst, mult, conj):
        for m in range(2):
            if mult != 1:
                e("v_mul_f32 v%d, 0x%x, v%d" % (TT[m], f32(mult), ZR[m]))
                e("v_mul_f32 v%d, 0x%x, v%d" % (TT[m] + 1, f32(mult), ZI[m]))
                e("v_fract_f32 v%d, v%d" % (TT[m] + 1, TT[m] + 1))
            else:
                e("v_mov_b32 v%d, v%d" % (TT[m], ZR[m]))
                e("v_fract_f32 v%d, v%d" % (TT[m] + 1, ZI[m]))
        for m in range(2):
            e("v_exp_f32 v%d, v%d" % (TT[m], TT[m]))
            e("v_cos_f32 v%d, v%d" % (dst[m], TT[m] + 1))
            e("v_sin_f32 v%d, v%d" % (dst[m] + 1, TT[m] + 1))
        for m in range(2):
            e("v_pk_mul_f32 %s, %s, %s op_sel_hi:[1,0]%s" % (vr(dst[m], 2), vr(dst[m], 2), vr(TT[m], 2), " neg_hi:[1,0]" if conj else ""))

    cexp(E8, 8, True)
    e("s_mul_i32 s13, s3, %d" % S_STG)
    e("v_lshlrev_b32 v8, 3, v1")
    e("v_add_u32 v8, s13, v8")
    e("v_and_b32 v11, 31, v1")
    e("v_mul_u32_u24 v11, 528, v11")
    e("v_lshrrev_b32 v12, 5, v1")
    e("v_lshl_add_u32 v11, v12, 4, v11")
    e("v_add_u32 v11, s13, v11")
    ring = [0]

    def put(row, src):
        o = OUT + 2 * (ring[0] & 3)
        ring[0] += 1
        for m in range(2):
            e("v_cvt_pk_bf16_f32 v%d, v%d, v%d" % (o + m, src[m], src[m] + 1))
        e("ds_write_b64 v8, %s offset:%d" % (vr(o, 2), row * 528))

    e("v_mov_b32 v%d, 0x3f80" % OUT)
    e("v_mov_b32 v%d, 0x3f80" % (OUT + 1))
    e("ds_write_b64 v8, %s" % vr(OUT, 2))
    ring[0] = 1
    put(1, E8)
    for j in range(2, 32):
        src = E8 if j == 2 else XX
        for m in range(2):
            e("v_pk_mul_f32 %s, %s, %s op_sel_hi:[1,0]" % (vr(TT[m], 2), vr(src[m], 2), vr(E8[m], 2)))
        for m in range(2):
            e("v_pk_fma_f32 %s, %s, %s, %s op_sel:[1,1,0] op_sel_hi:[0,1,1] neg_lo:[1,0,0]" % (vr(XX[m], 2), vr(src[m], 2), vr(E8[m], 2), vr(TT[m], 2)))
        put(j, XX)
        if j == OPT["xtrow"]:
            xt_flag("b")
    BF, AF, DD = 64, 128, 192
    stamp(12)
    for s in range(16):
        e("ds_read_b128 %s, v11 offset:%d" % (vr(BF + 4 * s, 4), s * 32))
    stamp(13)
    cexp(E1, 1, False)
    cexp(EG, 256, False)

    def mul2(dst, src, mu):
        for m in range(2):
            e("v_pk_mul_f32 %s, %s, %s op_sel_hi:[1,0]" % (vr(TT[m], 2), vr(src[m], 2), vr(mu[m], 2)))
        for m in range(2):
            e("v_pk_fma_f32 %s, %s, %s, %s op_sel:[1,1,0] op_sel_hi:[0,1,1] neg_lo:[1,0,0]" % (vr(dst[m], 2), vr(src[m], 2), vr(mu[m], 2), vr(TT[m], 2)))

    for m in range(2):
        unp(XX[m], PRM + 2, m)
        unp(XX[m] + 1, PRM + 3, m)
        unp(R2[m], PRM + 4, m)
        unp(R2[m] + 1, PRM + 5, m)
    for m in range(2):
        e("v_mul_f32 v%d, v9, v%d" % (XX[m], XX[m]))
        e("v_mul_f32 v%d, v9, v%d" % (XX[m] + 1, XX[m] + 1))
    mul2(WW, R2, XX)
    put(0, WW)
    mul2(XX, WW, E1); put(1, XX)
    mul2(R2, XX, E1); put(2, R2)
    mul2(XX, R2, E1); put(3, XX)
    mul2(R4, XX, E1); put(4, R4)
    mul2(XX, R4, E1); put(5, XX)
    mul2(R6, XX, E1); put(6, R6)
    mul2(XX, R6, E1); put(7, XX)
    for row in (8, 12, 9, 13, 10, 14, 11, 15):
        mul2(WW, WW, EG); put(row, WW)
    mul2(R2, R2, EG); put(16, R2)
    mul2(R4, R4, EG); put(17, R4)
    mul2(R6, R6, EG); put(18, R6)
    mul2(R4, R4, EG); put(20, R4)
    mul2(R4, R4, EG); put(19, R4)
    stamp(14)
    for s in range(16):
        e("ds_read_b128 %s, v11 offset:%d" % (vr(AF + 4 * s, 4), s * 32))
    e("s_mul_i32 s5, s3, 3072")
    e("s_add_u32 s5, s5, %d" % S_PX)
    e("v_add_u32 v12, s5, v%d" % vL16)
    e("s_xor_b32 s6, s3, 1")
    e("s_mul_i32 s6, s6, 3072")
    e("s_add_u32 s6, s6, %d" % S_PX)
    e("v_add_u32 v13, s6, v%d" % vL16)
    for s in range(16):
        e("s_waitcnt lgkmcnt(%d)" % (15 - s))
        mfma(DD, AF + 4 * s, BF + 4 * s, None if s == 0 else DD)
    stamp(15)
    e("s_lshr_b32 s5, s3, 1")
    e("s_mul_i32 s14, s5, %d" % KR1)
    e("v_sub_u32 v14, 223, v1")
    e("v_lshrrev_b32 v15, 1, v14")
    e("v_mul_u32_u24 v15, 48, v15")
    e("v_and_b32 v14, 1, v14")
    e("v_lshl_add_u32 v14, v14, 4, v15")
    e("v_add_u32 v14, s14, v14")
    e("v_mov_b32 v16, 0")
    e("v_mov_b32 v17, 0")
    e("v_mov_b32 v18, 0")
    e("v_mov_b32 v19, 0")
    e("v_add_u32 v15, s14, v%d" % vL16)
    e("s_mov_b32 s74, 0")
    e("s_mov_b32 s75, -1")
    e("s_mov_b32 s76, 0xaaaaaaaa")
    e("s_mov_b32 s77, 0xaaaaaaaa")
    for q in range(3):
        e("ds_write_b128 v12, %s offset:%d" % (vr(DD + 4 * q, 4), q * 1024))
    e("s_waitcnt lgkmcnt(0)")
    e("s_barrier")
    stamp(3)
    e("s_setprio %d" % OPT["cprio"])
    for q in range(3):
        e("ds_read_b128 %s, v13 offset:%d" % (vr(64 + 4 * q, 4), q * 1024))
    e("s_waitcnt lgkmcnt(0)")
    for k in range(6):
        e("v_pk_add_f32 %s, %s, %s" % (vr(DD + 2 * k, 2), vr(DD + 2 * k, 2), vr(64 + 2 * k, 2)))
    D = lambda r: DD + r

    def nxt(dst, r):
        if r < 7:
            e("v_mov_b32_dpp v%d, v%d wave_rol:1 row_mask:0xf bank_mask:0xf" % (dst, D(r + 1)))
        e("v_mov_b32_dpp v%d, v%d wave_shl:1 row_mask:0xf bank_mask:0xf" % (dst, D(r)))

    def pk(d, lo, hi):
        e("v_cvt_pk_bf16_f32 v%d, v%d, v%d" % (d, lo, hi))

    e("s_bitcmp1_b32 s3, 0")
    e("s_cbranch_scc1 L_s_expB")
    e("ds_write_b128 v15, v[16:19] offset:6144")
    e("v_mov_b32 v32, s73")
    e("v_cmp_eq_u32 vcc, 0, v1")
    e("v_cndmask_b32 v32, 0, v32, vcc")
    e("v_add_f32 v%d, v%d, v32" % (D(0), D(0)))
    e("v_and_b32 v33, 31, v1")
    e("v_sub_u32 v33, 255, v33")
    e("v_lshrrev_b32 v34, 1, v33")
    e("v_mul_u32_u24 v34, 48, v34")
    e("v_and_b32 v33, 1, v33")
    e("v_lshl_add_u32 v33, v33, 4, v34")
    e("v_add_u32 v33, s14, v33")
    e("v_add_u32 v34, 8, v33")
    e("v_cndmask_b32 v33, v34, v33, s[74:75]")
    pk(36, D(3), D(2))
    pk(37, D(1), D(0))
    e("ds_write_b64 v33, v[36:37]")
    nxt(40, 4)
    e("v_cndmask_b32 v41, v%d, v40, s[74:75]" % D(10))
    e("v_cndmask_b32 v42, v%d, v%d, s[74:75]" % (D(9), D(8)))
    e("v_cndmask_b32 v43, v%d, v%d, s[74:75]" % (D(8), D(4)))
    pk(44, 40, 41)
    pk(45, 42, 42)
    pk(46, 42, 43)
    pk(47, D(4), D(4))
    e("ds_write_b128 v14, v[44:47]")
    e("s_branch L_s_expJ")
    e("L_s_expB:")
    e("v_subrev_u32 v14, 3072, v14")
    nxt(40, 5)
    e("v_cndmask_b32 v41, v%d, v40, s[76:77]" % D(5))
    e("v_cndmask_b32 v42, v%d, v40, s[74:75]" % D(11))
    e("v_cndmask_b32 v41, v%d, v41, s[74:75]" % D(11))
    e("v_cndmask_b32 v43, v%d, v%d, s[74:75]" % (D(11), D(5)))
    pk(44, 40, 40)
    pk(45, 42, 41)
    pk(46, 43, D(5))
    pk(47, D(5), D(5))
    e("ds_write_b128 v14, v[44:47] offset:1536")
    for r in (6, 7):
        o = 48 if r == 6 else 56
        nxt(o, r)
        e("v_cndmask_b32 v%d, v%d, v%d, s[76:77]" % (o + 1, D(r), o))
        pk(o + 4, o, o)
        pk(o + 5, o, o + 1)
        pk(o + 6, D(r), D(r))
        pk(o + 7, D(r), D(r))
        if r == 6:
            e("ds_write_b128 v14, %s" % vr(o + 4, 4))
        else:
            e("v_subrev_u32 v14, 1536, v14")
            e("s_mov_b32 exec_hi, 0")
            e("ds_write_b128 v14, %s" % vr(o + 4, 4))
            e("s_mov_b32 exec_hi, -1")
    e("L_s_expJ:")
    stamp(21)
    e("s_lshr_b32 s5, s%d, 5" % S_CP)
    e("s_lshl_b32 s5, s5, 13")
    e("s_add_u32 s5, s5, 0x%x" % FLAG_XT)
    e("v_lshlrev_b32 v13, 7, v1")
    e("v_add_u32 v13, s5, v13")
    e("v_lshrrev_b32 v10, 1, v1")
    e("v_and_b32 v11, 1, v1")
    e("v_mul_u32_u24 v12, 7168, v10")
    e("v_lshl_add_u32 v12, v11, 4, v12")
    e("s_mul_i32 s74, s3, %d" % (64 * 7168))
    e("s_lshl_b32 s5, s%d, 5" % S_CP)
    e("s_add_u32 s74, s74, s5")
    e("s_add_u32 s74, s74, 0x%x" % XT)
    e("s_add_u32 s75, s74, %d" % (32 * 7168))
    e("v_mul_u32_u24 v15, %d, v11" % (4 * XCS))
    e("v_lshl_add_u32 v15, v10, 4, v15")
    e("s_lshl_b32 s5, s3, 10")
    e("s_add_u32 s5, s5, %d" % XC0)
    e("v_add_u32 v15, s5, v15")
    e("s_cmp_lg_u32 s3, 0")
    e("s_cbranch_scc1 L_s_nohead")
    for k in range(4):
        e("v_mov_b32 v%d, 0" % (16 + k))
    e("v_bfe_u32 v22, v1, 2, 3")
    e("v_mul_u32_u24 v22, %d, v22" % XCS)
    e("v_and_b32 v23, 3, v1")
    e("v_lshl_add_u32 v22, v23, 4, v22")
    e("ds_write_b128 v22, v[16:19] offset:%d" % XC0)
    e("L_s_nohead:")
    poll("xt", 13, 14, sleep=2)
    stamp(19)
    e("s_setprio %d" % OPT["cprio"])
    e("buffer_load_dwordx4 v[16:19], v12, s[%d:%d], s74 offen sc1" % (SWS, SWS + 3))
    e("buffer_load_dwordx4 v[20:23], v12, s[%d:%d], s75 offen sc1" % (SWS, SWS + 3))
    e("v_add_u32 v24, %d, v15" % (XCS + 60))
    e("v_add_u32 v25, %d, v15" % (3 * XCS + 56))
    e("v_add_u32 v26, %d, v15" % (2 * XCS + 56))
    for i in range(0 if OPT["xxc"] else 2):
        r = 16 + 4 * i
        o = 512 * i
        e("s_waitcnt vmcnt(%d)" % (1 - i))
        for k in range(3):
            e("v_alignbit_b32 v%d, v%d, v%d, 16" % (28 + k, r + k + 1, r + k))
        for a in (24, 25):
            e("ds_write2_b32 v%d, v%d, v%d offset0:%d offset1:%d" % (a, r, r + 1, o // 4, o // 4 + 1))
            e("ds_write2_b32 v%d, v%d, v%d offset0:%d offset1:%d" % (a, r + 2, r + 3, o // 4 + 2, o // 4 + 3))
        for a, b0 in ((15, 62), (26, 2)):
            e("ds_write_b16 v%d, v%d offset:%d" % (a, r, o + b0))
            e("ds_write2_b32 v%d, v28, v29 offset0:%d offset1:%d" % (a, (o + b0 + 2) // 4, (o + b0 + 2) // 4 + 1))
            e("ds_write_b32 v%d, v30 offset:%d" % (a, o + b0 + 10))
            e("ds_write_b16_d16_hi v%d, v%d offset:%d" % (a, r + 3, o + b0 + 14))
    vX, vK = 8, 9
    e("v_and_b32 v10, 3, v1")
    e("v_mul_u32_u24 v%d, %d, v10" % (vX, XCS))
    e("v_bfe_u32 v10, v1, 2, 2")
    e("v_lshl_add_u32 v%d, v10, 3, v%d" % (vX, vX))
    e("v_lshrrev_b32 v10, 4, v1")
    e("v_lshl_add_u32 v%d, v10, 4, v%d" % (vX, vX))
    e("v_and_b32 v11, 15, v1")
    e("v_sub_u32 v11, 15, v11")
    e("v_lshrrev_b32 v12, 5, v1")
    e("v_add_u32 v11, v11, v12")
    e("v_mul_u32_u24 v%d, 48, v11" % vK)
    e("v_and_b32 v10, 1, v10")
    e("v_lshl_add_u32 v%d, v10, 4, v%d" % (vK, vK))
    e("s_lshr_b32 s5, s3, 1")
    e("s_mul_i32 s5, s5, %d" % (4 * XCS))
    e("s_add_u32 s5, s5, %d" % (XC0 + 32))
    e("s_and_b32 s6, s3, 1")
    e("s_lshl_b32 s7, s6, 8")
    e("s_add_u32 s5, s5, s7")
    e("v_add_u32 v%d, s5, v%d" % (vX, vX))
    e("s_mul_i32 s7, s6, 384")
    e("s_add_u32 s7, s7, s14")
    e("v_add_u32 v%d, s7, v%d" % (vK, vK))
    Y0 = 16
    FA = lambda st, d: 48 + 64 * st + 4 * d
    FB = lambda st, q: 80 + 64 * st + 4 * q
    e("s_waitcnt lgkmcnt(0)")
    e("s_barrier")
    stamp(4)

    def frag_reads(g):
        st = g & 1
        R = []
        for k in range(8):
            R.append("ds_read_b128 %s, v%d offset:%d" % (vr(FA(st, k), 4), vK, 96 * g + 768 * (7 - k)))
            R.append("ds_read_b64 %s, v%d offset:%d" % (vr(FB(st, k), 2), vX, 512 * k + 64 * g))
            R.append("ds_read_b64 %s, v%d offset:%d" % (vr(FB(st, k) + 2, 2), vX, 512 * k + 64 * g + 8))
        return R

    if not OPT["xconv"]:
        for r in frag_reads(0):
            e(r)
        e("s_setprio %d" % OPT["mprio"])
        for g in range(4):
            st = g & 1
            nxt_reads = frag_reads(g + 1) if g < 3 else []
            e("s_waitcnt lgkmcnt(0)")
            n = 0
            for q in range(8):
                for j in range(q, 8):
                    c = "0" if (g == 0 and q == 0) else vr(Y0 + 4 * j, 4)
                    e("v_mfma_f32_16x16x32_bf16 %s, %s, %s, %s" % (vr(Y0 + 4 * j, 4), vr(FA(st, j - q), 4), vr(FB(st, q), 4), c))
                    n += 1
                    if n <= len(nxt_reads):
                        e(nxt_reads[n - 1])
    e("s_setprio %d" % OPT["cprio"])
    stamp(5)
    e("s_lshl_b32 s5, s3, 13")
    e("s_add_u32 s5, s5, %d" % L_CPX)
    e("v_add_u32 v10, s5, v%d" % vL16)
    e("s_lshl_b32 s7, s3, 11")
    e("s_add_u32 s7, s7, %d" % L_CPX)
    e("v_add_u32 v11, s7, v%d" % vL16)
    e("s_mul_i32 s5, s3, %d" % (16 * 224))
    e("s_add_u32 s5, s5, s%d" % S_CP)
    e("s_lshl_b32 s5, s5, 7")
    e("s_add_u32 s13, s5, 0x%x" % B2)
    e("v_lshrrev_b32 v12, 5, v1")
    e("v_mul_u32_u24 v12, %d, v12" % (4 * 224 * 128))
    e("v_and_b32 v13, 31, v1")
    e("v_lshl_add_u32 v12, v13, 2, v12")
    for k in range(8):
        e("ds_write_b128 v10, %s offset:%d" % (vr(Y0 + 4 * k, 4), k * 1024))
    e("s_waitcnt lgkmcnt(0)")
    e("s_barrier")
    for w in range(4):
        for q in range(2):
            e("ds_read_b128 %s, v11 offset:%d" % (vr(48 + 8 * w + 4 * q, 4), w * 8192 + q * 1024))
    e("s_lshl_b32 s7, s%d, 2" % S_CP)
    e("s_add_u32 s7, s7, s3")
    e("s_lshl_b32 s7, s7, 7")
    e("s_add_u32 s7, s7, 0x%x" % FLAG_B)
    e("s_waitcnt lgkmcnt(0)")
    e("s_barrier")
    for k in range(4):
        e("v_pk_add_f32 %s, %s, %s" % (vr(48 + 2 * k, 2), vr(48 + 2 * k, 2), vr(56 + 2 * k, 2)))
        e("v_pk_add_f32 %s, %s, %s" % (vr(64 + 2 * k, 2), vr(64 + 2 * k, 2), vr(72 + 2 * k, 2)))
    for k in range(8):
        e("v_cvt_pk_bf16_f32 v%d, v%d, v%d" % (80 + k, 48 + k, 64 + k))
    for k in range(4):
        e("v_permlane16_swap_b32 v%d, v%d" % (80 + 2 * k, 81 + 2 * k))
    order = sorted(range(8), key=lambda k: 8 * (k >> 2) + 2 * (k & 1) + ((k >> 1) & 1))
    prev = 0
    for k in order:
        tt = 8 * (k >> 2) + 2 * (k & 1) + ((k >> 1) & 1)
        if tt != prev:
            e("s_add_u32 s13, s13, %d" % ((tt - prev) * 28672))
            prev = tt
        e("buffer_store_dword v%d, v12, s[%d:%d], s13 offen sc1" % (80 + k, SWS, SWS + 3))
    e("s_waitcnt vmcnt(0)")
    flag_store(7, 13)
    stamp(6)
    e("L_s_wo:")
    S_TT, S_CG, S_OB, S_H, S_V, S_P, S_TAG, S_F, S_U, S_CB = 11, 12, 80, 76, 77, 78, 75, 79, 84, 85
    WO = 128
    job = []
    for j in range(32):
        job.append((j // 3, j % 3) if j < 12 else (j - 8, 0) if j < 16 else (j - 16, 3) if j < 24 else (j - 20, 2) if j < 28 else (j - 24, 1))
    assert sorted(job) == sorted((a_, c_) for a_ in range(8) for c_ in range(4))
    tab = [sum((job[4 * d + k][0] | job[4 * d + k][1] << 4) << (8 * k) for k in range(4)) for d in range(8)]
    e("s_lshr_b32 s5, s%d, 2" % S_J)
    e("s_mov_b32 s6, 0x%x" % tab[0])
    for d in range(1, 8):
        e("s_cmp_eq_u32 s5, %d" % d)
        e("s_cselect_b32 s6, 0x%x, s6" % tab[d])
    e("s_and_b32 s5, s%d, 3" % S_J)
    e("s_lshl_b32 s5, s5, 3")
    e("s_lshr_b32 s6, s6, s5")
    e("s_and_b32 s5, s6, 7")
    e("s_add_u32 s%d, s10, s5" % S_TT)
    e("s_bfe_u32 s%d, s6, 0x20004" % S_CG)
    e("s_cmp_eq_u32 s%d, 3" % S_CG)
    e("s_cselect_b32 s7, 7, 15")
    e("s_cselect_b32 s5, 1, 3")
    e("s_and_b32 s%d, s3, s5" % S_CB)
    srd(SOUT, P_OUT, 2048 * 896)
    e("v_lshrrev_b32 v13, 4, v1")
    e("v_mul_u32_u24 v8, 896, v13")
    e("v_lshlrev_b32 v13, 2, v13")
    e("v_xor_b32 v13, v13, v1")
    e("v_and_b32 v13, s7, v13")
    e("v_lshl_add_u32 v8, v13, 4, v8")
    e("s_mul_i32 s13, s3, 14336")
    e("s_lshl_b32 s86, s%d, 8" % S_CG)
    e("s_mul_i32 s5, s3, %d" % (56 * 896))
    e("s_add_u32 s86, s86, s5")
    THR = OPT["wothr"]

    def wo_dma(ck):
        e("s_mov_b32 m0, s13")
        e("s_add_u32 s5, s86, %d" % (ck * 224 * 896))
        for m in range(14):
            if THR and m >= THR:
                e("s_waitcnt vmcnt(%d)" % (THR - 1))
            e("buffer_load_dwordx4 v8, s[%d:%d], s5 offen lds" % (SWO, SWO + 3))
            if m < 13:
                e("s_add_u32 m0, m0, 1024")
                e("s_add_u32 s5, s5, 3584")

    def wo_read(ck):
        for hd in range(8):
            for q in range(3):
                e("ds_read_b64_tr_b16 %s, v9 offset:%d" % (vr(WO + 64 * ck + 8 * hd + 2 * q, 2), (28 * hd + 8 * q) * 256))
            e("ds_read_b64_tr_b16 %s, v10 offset:%d" % (vr(WO + 64 * ck + 8 * hd + 6, 2), 28 * hd * 256))
        e("s_waitcnt lgkmcnt(0)")
        e("s_barrier")

    wo_dma(0)
    e("s_lshl_b32 s5, s3, 3")
    e("v_bfe_u32 v13, v1, 4, 1")
    e("v_and_b32 v14, 3, v1")
    e("v_lshl_add_u32 v13, v13, 2, v14")
    e("v_add_u32 v13, s5, v13")
    e("v_bfe_u32 v14, v1, 2, 2")
    e("v_lshlrev_b32 v15, 3, v14")
    e("v_xor_b32 v16, v13, v15")
    e("v_lshlrev_b32 v16, 3, v16")
    e("v_lshl_add_u32 v16, v14, 8, v16")
    e("v_lshrrev_b32 v14, 5, v1")
    e("v_lshl_add_u32 v9, v14, 10, v16")
    e("s_mov_b32 s5, 0x1b1b0f0b")
    e("v_lshrrev_b32 v15, v15, s5")
    e("v_and_b32 v15, 0xff, v15")
    e("v_xor_b32 v13, 24, v13")
    e("v_lshlrev_b32 v13, 3, v13")
    e("v_lshl_add_u32 v13, v15, 8, v13")
    e("v_add_u32 v10, %d, v9" % (24 * 256))
    e("s_mov_b32 s72, 0")
    e("s_mov_b32 s73, -1")
    e("v_cndmask_b32 v10, v10, v13, s[72:73]")
    vFA, vOA, vOW = 11, 12, 20
    e("s_lshl_b32 s5, s%d, 4" % S_TT)
    e("s_lshl_b32 s6, s3, 2")
    e("s_add_u32 s5, s5, s6")
    e("s_lshl_b32 s%d, s5, 11" % S_OB)
    e("s_add_u32 s%d, s%d, 0x%x" % (S_OB, S_OB, OW))
    e("s_add_u32 s%d, s%d, 4096" % (S_OB + 1, S_OB))
    e("s_lshl_b32 s5, s5, 7")
    e("s_add_u32 s5, s5, 0x%x" % FLAG_O)
    e("v_and_b32 v13, 3, v1")
    e("v_lshlrev_b32 v16, 7, v13")
    e("v_bfe_u32 v13, v1, 2, 1")
    e("v_mul_u32_u24 v13, 0x%x, v13" % (FLAG_O2 - FLAG_O))
    e("v_add3_u32 v%d, s5, v16, v13" % vFA)
    e("s_lshl_b32 s5, s3, 13")
    e("v_add_u32 v%d, s5, v%d" % (vOW, vL16))
    e("v_and_b32 v14, 31, v1")
    e("v_lshrrev_b32 v15, 5, v1")
    e("v_mul_u32_u24 v%d, 896, v14" % vOA)
    e("v_lshl_add_u32 v%d, v15, 4, v%d" % (vOA, vOA))
    e("s_mul_i32 s74, s%d, 28672" % S_TT)
    e("s_lshl_b32 s5, s%d, 8" % S_CG)
    e("s_add_u32 s74, s74, s5")
    e("s_lshl_b32 s5, s%d, 6" % S_CB)
    e("s_add_u32 s74, s74, s5")
    e("s_lshr_b32 s%d, s4, 16" % S_TAG)
    e("s_and_b32 s%d, s%d, 0xbfff" % (S_TAG, S_TAG))
    e("s_lshl_b32 s87, s%d, 6" % S_CG)
    e("s_lshl_b32 s5, s%d, 4" % S_CB)
    e("s_add_u32 s87, s87, s5")
    e("s_lshr_b32 s5, s%d, 4" % S_TT)
    e("s_lshl_b32 s6, s87, 2")
    e("s_add_u32 s5, s5, s6")
    e("s_lshl_b32 s5, s5, 7")
    e("s_add_u32 s5, s5, 0x%x" % FLAG_B)
    e("v_and_b32 v13, 15, v1")
    e("v_lshlrev_b32 v13, 9, v13")
    e("v_add_u32 v21, s5, v13")
    e("v_lshlrev_b32 v16, 8, v15")
    e("v_lshl_add_u32 v16, v14, 2, v16")
    e("v_lshlrev_b32 v17, 3, v14")
    e("s_mul_i32 s5, s%d, 224" % S_TT)
    e("s_add_u32 s87, s5, s87")
    e("s_lshl_b32 s87, s87, 7")
    e("s_add_u32 s87, s87, 0x%x" % B2)
    e("s_lshl_b32 s15, s%d, 8" % S_TT)
    e("s_add_u32 s15, s15, 0x%x" % G1)
    e("s_waitcnt vmcnt(0)")
    e("s_barrier")
    wo_read(0)
    wo_dma(1)
    e("buffer_load_dword v14, v21, s[%d:%d], 0 offen sc1" % (SWS, SWS + 3))
    for k in range(16):
        e("v_and_b32 v%d, 0xffff, v%d" % (WO + 4 * k + 3, WO + 4 * k + 3))
    e("s_waitcnt vmcnt(0)")
    e("s_barrier")
    stamp(16)
    e("v_cmp_ne_u32 vcc, s4, v14")
    e("s_cmp_eq_u64 vcc, 0")
    e("s_cbranch_scc1 L_pollok_b")
    poll("b", 21, 14, sleep=4)
    BB, OL, DO, OF = 24, 32, 64, 80
    for q in range(4):
        for p in range(2):
            e("buffer_load_dword v%d, v16, s[%d:%d], s87 offen offset:%d sc1" % (BB + 2 * q + p, SWS, SWS + 3, (4 * q + p) * 128))
    e("buffer_load_dwordx2 v[18:19], v17, s[%d:%d], s15 offen sc1" % (SWS, SWS + 3))
    wo_read(1)
    for k in range(16, 32):
        e("v_and_b32 v%d, 0xffff, v%d" % (WO + 4 * k + 3, WO + 4 * k + 3))
    e("s_cmp_lg_u32 s2, 255")
    e("s_cbranch_scc1 L_s_noalive")
    e("s_cmp_lg_u32 s3, 0")
    e("s_cbranch_scc1 L_s_noalive")
    e("v_lshlrev_b32 v21, 7, v1")
    e("v_add_u32 v21, 0x%x, v21" % ALIVE)
    poll("alive", 21, 40, sleep=8, n=8, step=8192)
    e("s_mov_b32 s5, %d" % NONCE_OFF)
    flag_store(5, 21)
    e("L_s_noalive:")
    e("s_mov_b32 s5, 0")
    e("s_branch L_s_g1w")
    e("L_s_g1:")
    e("buffer_load_dwordx2 v[18:19], v17, s[%d:%d], s15 offen sc1" % (SWS, SWS + 3))
    e("L_s_g1w:")
    e("s_waitcnt vmcnt(0)")
    e("v_cmp_ne_u32 vcc, s4, v19")
    e("s_cmp_eq_u64 vcc, 0")
    e("s_cbranch_scc1 L_s_g1ok")
    e("s_add_u32 s5, s5, 1")
    e("s_cmp_lt_u32 s5, %d" % OPT["spin"])
    e("s_cbranch_scc1 L_s_g1")
    e("L_s_g1ok:")
    for k in range(8):
        e("v_lshlrev_b32 v%d, 16, v%d" % (DO + 2 * k, BB + k))
        e("v_and_b32 v%d, 0xffff0000, v%d" % (DO + 2 * k + 1, BB + k))
    for k in range(8):
        e("v_pk_mul_f32 %s, %s, v[18:19] op_sel_hi:[1,0]" % (vr(DO + 2 * k, 2), vr(DO + 2 * k, 2)))
    e("v_not_b32 v14, s4")
    stamp(8)
    e("s_setprio %d" % OPT["oprio"])
    e("s_mov_b32 s%d, 0" % S_H)
    e("s_mov_b32 s%d, 0" % S_V)
    e("s_mov_b32 s%d, 0" % S_F)
    e("s_mov_b32 s%d, 0" % S_U)
    e("s_mov_b32 s15, 0")
    if OPT["timing"] and OPT["pollcnt"]:
        e("s_mov_b32 s90, 0")
        e("s_mov_b32 s91, -1")
        e("s_mov_b32 s92, -1")
    e("L_or:")
    e("s_andn2_b32 s%d, s%d, s%d" % (S_P, S_H, S_V))
    e("s_cbranch_scc0 L_ol3")
    for t in range(4):
        e("s_bitcmp1_b32 s%d, %d" % (S_P, t))
        e("s_cbranch_scc0 L_ol%d" % t)
        e("s_bitcmp1_b32 s%d, %d" % (S_U, t))
        e("s_cselect_b32 s5, 0x%x, 0" % (OW2 - OW))
        e("s_add_u32 s5, s5, s%d" % (S_OB + (t >> 1)))
        for c in range(2):
            e("buffer_load_dwordx4 %s, v%d, s[%d:%d], s5 offen offset:%d sc1" % (vr(OL + 8 * t + 4 * c, 4), vL16, SWS, SWS + 3, (t & 1) * 2048 + c * 1024))
        e("L_ol%d:" % t)
    e("s_and_b32 s5, s15, 7")
    e("s_cmp_eq_u32 s5, 7")
    e("s_cselect_b32 exec_lo, 0xff, 15")
    e("s_mov_b32 exec_hi, 0")
    e("buffer_load_dword v14, v%d, s[%d:%d], 0 offen sc1" % (vFA, SWS, SWS + 3))
    e("s_mov_b64 exec, -1")
    e("s_cmp_eq_u32 s%d, 0" % S_P)
    e("s_waitcnt vmcnt(0)")
    e("v_cmp_eq_u32 vcc, s4, v14")
    e("s_mov_b32 s%d, vcc_lo" % S_H)
    e("s_cbranch_scc1 L_oc3")
    for t in range(4):
        e("s_bitcmp1_b32 s%d, %d" % (S_P, t))
        e("s_cbranch_scc0 L_oc%d" % t)
        e("v_cmp_ne_u32_sdwa vcc, v%d, s%d src0_sel:WORD_1 src1_sel:DWORD" % (OL + 8 * t + 3, S_TAG))
        e("v_cmp_ne_u32_sdwa s[6:7], v%d, s%d src0_sel:WORD_1 src1_sel:DWORD" % (OL + 8 * t + 7, S_TAG))
        e("s_or_b64 vcc, vcc, s[6:7]")
        e("s_cbranch_scc1 L_oc%d" % t)
        e("ds_write_b128 v%d, %s offset:%d" % (vOW, vr(OL + 8 * t, 4), 2048 * t))
        e("ds_write_b128 v%d, %s offset:%d" % (vOW, vr(OL + 8 * t + 4, 4), 2048 * t + 1024))
        e("s_bitset1_b32 s%d, %d" % (S_V, t))
        e("L_oc%d:" % t)
    e("s_andn2_b32 s5, s%d, s%d" % (S_P, S_V))
    e("s_or_b32 s%d, s%d, s5" % (S_F, S_F))
    e("s_lshr_b32 s6, s%d, 4" % S_H)
    e("s_orn2_b32 s5, s%d, s%d" % (S_F, S_H))
    e("s_and_b32 s%d, s6, s5" % S_U)
    e("s_or_b32 s%d, s%d, s6" % (S_H, S_H))
    e("s_and_b32 s%d, s%d, 15" % (S_H, S_H))
    if OPT["timing"] and OPT["pollcnt"]:
        e("s_andn2_b32 s5, s%d, s%d" % (S_P, S_V))
        e("s_bcnt1_i32_b32 s5, s5")
        e("s_add_u32 s90, s90, s5")
        e("s_memrealtime s[96:97]")
        e("s_waitcnt lgkmcnt(0)")
        e("s_cmp_eq_u32 s%d, 15" % S_H)
        e("s_cselect_b32 s5, s96, -1")
        e("s_min_u32 s91, s91, s5")
        e("s_cmp_lg_u32 s%d, 0" % S_H)
        e("s_cselect_b32 s5, s96, -1")
        e("s_min_u32 s92, s92, s5")
        e("v_writelane_b32 v0, s90, 27")
        e("v_writelane_b32 v0, s91, 25")
        e("v_writelane_b32 v0, s92, 28")
        e("v_writelane_b32 v0, s15, 24")
        e("s_min_u32 s5, s15, 15")
        e("s_lshl_b32 s5, s5, 1")
        e("s_add_u32 m0, s5, 32")
        e("s_lshl_b32 s5, s%d, 8" % S_V)
        e("s_or_b32 s5, s5, s%d" % S_P)
        e("s_lshl_b32 s6, s%d, 16" % S_H)
        e("s_or_b32 s5, s5, s6")
        e("v_writelane_b32 v0, s96, m0")
        e("s_add_u32 m0, m0, 1")
        e("s_nop 3")
        e("v_writelane_b32 v0, s5, m0")
    e("s_cmp_eq_u32 s%d, 15" % S_V)
    e("s_cbranch_scc1 L_od")
    e("s_andn2_b32 s5, s%d, s%d" % (S_H, S_V))
    e("s_cbranch_scc1 L_ob")
    if OPT["osleep"]:
        e("s_sleep %d" % OPT["osleep"])
    e("L_ob:")
    e("s_add_u32 s15, s15, 1")
    e("s_cmp_lt_u32 s15, %d" % OPT["spin"])
    e("s_cbranch_scc1 L_or")
    e("L_od:")
    e("s_setprio 3")
    e("s_waitcnt lgkmcnt(0)")
    stamp(9)
    e("s_barrier")
    stamp(7)
    e("s_cmp_lg_u32 s3, s%d" % S_CB)
    e("s_cbranch_scc1 L_s_fin")
    for k in range(7):
        e("ds_read_b128 %s, v%d offset:%d" % (vr(OF + 4 * k, 4), vL16, k * 1024))
    for k in range(32):
        if k + 7 < 32:
            e("ds_read_b128 %s, v%d offset:%d" % (vr(OF + 4 * ((k + 7) & 7), 4), vL16, (k + 7) * 1024))
        e("s_waitcnt lgkmcnt(%d)" % min(7, 31 - k))
        mfma(DO, WO + 4 * k, OF + 4 * (k & 7), DO)
    for k in range(8):
        e("v_cvt_pk_bf16_f32 v%d, v%d, v%d" % (48 + k, DO + 2 * k, DO + 2 * k + 1))
    for (x_, y_) in ((48, 50), (49, 51), (52, 54), (53, 55)):
        e("v_permlane32_swap_b32 v%d, v%d" % (x_, y_))
    e("buffer_store_dwordx4 v[48:51], v%d, s[%d:%d], s74 offen" % (vOA, SOUT, SOUT + 3))
    e("buffer_store_dwordx4 v[52:55], v%d, s[%d:%d], s74 offen offset:32" % (vOA, SOUT, SOUT + 3))
    e("L_s_fin:")
    if OPT["timing"]:
        e("s_waitcnt vmcnt(0)")
    stamp(10)
    dbg_stamp(248, 256, 8, False)
    stamp_flush()
    e("L_end:")
    e("s_endpgm")


prologue()
role_a()
role_s()

lines, nops = asmcheck.fix_hazards(L, verbose=bool(OPT.get("v", 0)))
errs = asmcheck.check_waitcnt(lines)
for er in errs:
    print("WAITCNT?", er, file=sys.stderr)
print("instructions: %d, wait states inserted: %d" % (len(lines), nops), file=sys.stderr)

ref = open("cdna_kernels/%s.s.ref" % NAME).read()
head = ref[: ref.index("; Override launch")]
text = head + """; Override launch geometry by editing the next line (default: block=256,
; grid=ceil(out_elems/256), lds=0). Harness parses it; keep it on one line.
; @launch grid=(512,1,1) block=(256,1,1) lds=81920
.amdgcn_target "amdgcn-amd-amdhsa--gfx950"
.text
.globl %s_kernel
.p2align 8
.type %s_kernel,@function
%s_kernel:
""" % (NAME, NAME, NAME) + "\n".join(lines) + """
.section .rodata,"a"
.p2align 6
.amdhsa_kernel %s_kernel
  .amdhsa_next_free_vgpr 256
  .amdhsa_next_free_sgpr 102
  .amdhsa_accum_offset 256
  .amdhsa_group_segment_fixed_size 0
  .amdhsa_kernarg_size 144
  .amdhsa_user_sgpr_count 2
  .amdhsa_user_sgpr_kernarg_segment_ptr 1
  .amdhsa_system_sgpr_workgroup_id_x 1
.end_amdhsa_kernel
""" % NAME
open(sys.argv[1], "w").write(text)
```

```python
import sys, struct, math, os
sys.path.insert(0, os.path.dirname(os.path.abspath(__file__)))
import asmcheck

NAME = "gated_mix__grouped_kv_mqa__ssm_conv_s4__prompt"
OPT = dict(timing=0, force_fb=0, spin=400000, dbgts=0, nst=2, cprio=2, aprio=1, kvsleep=6, splitA=6, kprio=2, a1prio=3, xconv=0, xwo=0, xxc=0, xkgen=0, xpre=2, touch=0, a0prio=0, wopf=0, wothr=3, obar=1, mprio=0, pollcnt=0, xtrow=12, nslot=8, osleep=2, hintpos=4, oprio=0, otouch=0, nonear=0, early=0, eb=5, pmask=1, kvmask=0x552b552b, dummy=0, split16=0, agg=1, agsleep=0, xtouch=0, ptouch=0, tscope=1, nofar=2, wpos=4, withr=0, dthr=2, dh=1, bsleep=12, dsleep=1)
for a in sys.argv[2:]:
    k, v = a.split("=")
    OPT[k] = int(v, 0)

NONCE_OFF = 12
FLAG_KV = 0x1000 + 12
FLAG_O = 0x10000 + 12
FLAG_B = 0x30000 + 12
ALIVE = 0x50000 + 12
G1 = 0x60000
FLAG_XT = 0x70000 + 12
XT = 0x600000
KV = 0x100000
OW = 0x200000
B2 = 0x400000
FLAG_O2 = 0x80000 + 12
OW2 = 0x900000
FLAG_W = 0xB0000 + 12
WT = 0xC00000
FLAG_AG = 0xA0000 + 12
FLAG_AG2 = 0xA8000 + 12
TSB = 0x800000
WS_BYTES = 0x1000000
NONCE_ADD = 0x9E3779B9

L = []


def e(s):
    for x in s.split("\n"):
        x = x.strip()
        if x:
            L.append(x if x.endswith(":") else "    " + x)


def f32(x):
    return struct.unpack("<I", struct.pack("<f", x))[0]


def vr(a, n=1):
    return "v%d" % a if n == 1 else "v[%d:%d]" % (a, a + n - 1)


def sr(a, n=1):
    return "s%d" % a if n == 1 else "s[%d:%d]" % (a, a + n - 1)


def srd(d, base, nbytes, add=None):
    if add is None:
        e("s_mov_b32 s%d, s%d" % (d, base))
        e("s_mov_b32 s%d, s%d" % (d + 1, base + 1))
    else:
        e("s_add_u32 s%d, s%d, %s" % (d, base, add))
        e("s_addc_u32 s%d, s%d, 0" % (d + 1, base + 1))
    e("s_mov_b32 s%d, 0x%x" % (d + 2, nbytes))
    e("s_mov_b32 s%d, 0x20000" % (d + 3))


def mfma(d, a, b, c):
    e("v_mfma_f32_32x32x16_bf16 %s, %s, %s, %s" % (vr(d, 16), vr(a, 4), vr(b, 4), "0" if c is None else vr(c, 16)))


P_X, P_WQ, P_WK, P_WV, P_WO = 16, 18, 20, 22, 24
P_ARE, P_AIM, P_BRE, P_BIM, P_CRE, P_CIM, P_LDT, P_DSK, P_GW, P_OUT, P_WS = 28, 30, 32, 34, 36, 38, 40, 42, 44, 46, 48
SX, SWS = 52, 56
S_WAVE, S_NONCE = 3, 4
V_LANE = 1
LOG2E = 1.4426950408889634

stamp_n = [0]


def stamp(idx):
    if OPT["timing"]:
        e("s_memrealtime s[96:97]")
        e("s_waitcnt lgkmcnt(0)")
        e("v_writelane_b32 v0, s96, %d" % idx)


def stampd(reg):
    if OPT["timing"]:
        e("s_memrealtime s[%d:%d]" % (reg, reg + 1))


def stampw(idx, reg):
    if OPT["timing"]:
        e("v_writelane_b32 v0, s%d, %d" % (reg, idx))


def cstamp(idx):
    if OPT["timing"]:
        e("s_memtime s[96:97]")
        e("s_waitcnt lgkmcnt(0)")
        e("v_writelane_b32 v0, s96, %d" % idx)


def dbg_stamp(lo, hi, slot0, start):
    if not OPT["dbgts"]:
        return
    tag = "%d" % slot0
    e("s_sub_u32 s96, s2, %d" % lo)
    e("s_cmp_ge_u32 s96, %d" % (hi - lo))
    e("s_cbranch_scc1 L_dbg%s" % tag)
    e("s_cmp_lg_u32 s3, 0")
    e("s_cbranch_scc1 L_dbg%s" % tag)
    if not start:
        e("s_waitcnt vmcnt(0)")
        e("s_memrealtime s[94:95]")
        e("s_waitcnt lgkmcnt(0)")
    e("s_mov_b32 s72, s50")
    e("s_mov_b32 s73, s51")
    e("s_mov_b32 s74, 256")
    e("s_mov_b32 s75, 0x20000")
    e("s_add_u32 s96, s96, %d" % slot0)
    e("s_lshl_b32 s96, s96, 2")
    e("v_mov_b32 v2, s94")
    e("s_mov_b32 exec_lo, 1")
    e("s_mov_b32 exec_hi, 0")
    e("buffer_store_dword v2, off, s[72:75], s96")
    e("s_mov_b64 exec, -1")
    e("L_dbg%s:" % tag)


def stamp_flush():
    if OPT["timing"]:
        e("s_lshl_b32 s96, s2, 2")
        e("s_add_u32 s96, s96, s3")
        e("s_lshl_b32 s96, s96, 8")
        e("s_add_u32 s96, s96, 0x%x" % TSB)
        e("v_lshlrev_b32 v3, 2, v%d" % V_LANE)
        e("buffer_store_dword v0, v3, s[%d:%d], s96 offen" % (SWS, SWS + 3))


def poll(tag, vaddr, vtmp, sleep=0, n=1, step=0, cnt=None):
    if OPT["timing"] and cnt is not None:
        e("buffer_load_dword v%d, v%d, s[%d:%d], 0 offen sc1" % (vtmp, vaddr, SWS, SWS + 3))
        e("s_waitcnt vmcnt(0)")
        stamp(cnt + 1)
    e("s_mov_b32 s5, 0")
    e("L_poll_%s:" % tag)
    for k in range(n):
        if k == 0:
            e("buffer_load_dword v%d, v%d, s[%d:%d], 0 offen sc1" % (vtmp, vaddr, SWS, SWS + 3))
        else:
            e("s_mov_b32 s6, 0x%x" % (k * step))
            e("buffer_load_dword v%d, v%d, s[%d:%d], s6 offen sc1" % (vtmp + k, vaddr, SWS, SWS + 3))
    e("s_waitcnt vmcnt(0)")
    e("v_cmp_ne_u32 vcc, s%d, v%d" % (S_NONCE, vtmp))
    for k in range(1, n):
        e("v_cmp_ne_u32 s[6:7], s%d, v%d" % (S_NONCE, vtmp + k))
        e("s_or_b64 vcc, vcc, s[6:7]")
    e("s_cmp_eq_u64 vcc, 0")
    e("s_cbranch_scc1 L_pollok_%s" % tag)
    if OPT["pmask"] and n == 1:
        e("s_mov_b64 exec, vcc")
    if sleep:
        e("s_sleep %d" % sleep)
    e("s_add_u32 s5, s5, 1")
    e("s_cmp_lt_u32 s5, %d" % OPT["spin"])
    e("s_cbranch_scc1 L_poll_%s" % tag)
    e("L_pollok_%s:" % tag)
    if OPT["pmask"] and n == 1:
        e("s_mov_b64 exec, -1")
    if OPT["timing"] and cnt is not None:
        e("v_writelane_b32 v0, s5, %d" % cnt)


def flag_store(soff_reg, vtmp, scope=" sc1"):
    e("v_mov_b32 v%d, s%d" % (vtmp, S_NONCE))
    e("s_mov_b32 exec_lo, 1")
    e("s_mov_b32 exec_hi, 0")
    e("buffer_store_dword v%d, off, s[%d:%d], s%d%s" % (vtmp, SWS, SWS + 3, soff_reg, scope))
    e("s_mov_b64 exec, -1")


def x_swizzle_addrs(vg, vr0, vr1, t0, t1):
    e("v_lshrrev_b32 v%d, 2, v1" % t0)
    e("v_mul_u32_u24 v%d, 896, v%d" % (vg, t0))
    e("v_lshrrev_b32 v%d, 4, v1" % t0)
    e("v_xor_b32 v%d, v%d, v1" % (t0, t0))
    e("v_and_b32 v%d, 3, v%d" % (t0, t0))
    e("v_lshl_add_u32 v%d, v%d, 4, v%d" % (vg, t0, vg))
    e("v_and_b32 v%d, 31, v1" % t0)
    e("v_lshlrev_b32 v%d, 6, v%d" % (vr0, t0))
    e("v_lshrrev_b32 v%d, 2, v1" % t0)
    e("v_lshrrev_b32 v%d, 5, v1" % t1)
    e("v_xor_b32 v%d, v%d, v%d" % (t0, t0, t1))
    e("v_and_b32 v%d, 3, v%d" % (t0, t0))
    e("v_lshl_add_u32 v%d, v%d, 4, v%d" % (vr0, t0, vr0))
    e("v_xor_b32 v%d, 32, v%d" % (vr1, vr0))


def tr_addr(vd, hmul, stride, t0, t1):
    e("v_lshrrev_b32 v%d, 5, v1" % t0)
    e("v_mul_u32_u24 v%d, %d, v%d" % (t0, hmul, t0))
    e("v_bfe_u32 v%d, v1, 2, 2" % t1)
    e("v_add_u32 v%d, v%d, v%d" % (t0, t0, t1))
    e("v_mul_u32_u24 v%d, %d, v%d" % (vd, stride, t0))
    e("v_and_b32 v%d, 16, v1" % t0)
    e("v_lshl_add_u32 v%d, v%d, 1, v%d" % (vd, t0, vd))
    e("v_and_b32 v%d, 3, v1" % t0)
    e("v_lshl_add_u32 v%d, v%d, 3, v%d" % (vd, t0, vd))


def prologue():
    e("s_cmp_ge_u32 s2, 512")
    e("s_cbranch_scc1 L_end")
    if OPT["timing"]:
        e("s_memrealtime s[96:97]")
    if OPT["dbgts"]:
        e("s_memrealtime s[94:95]")
        e("s_load_dwordx2 s[50:51], s[0:1], 128")
    e("s_load_dwordx16 s[16:31], s[0:1], 0")
    e("s_load_dwordx16 s[32:47], s[0:1], 64")
    e("s_load_dwordx2 s[48:49], s[0:1], 136")
    e("v_and_b32 v1, 63, v0")
    e("v_lshrrev_b32 v2, 6, v0")
    e("v_readfirstlane_b32 s3, v2")
    e("s_cmp_lt_u32 s2, 256")
    e("s_cbranch_scc1 L_roleS")


A_IMG, A_XS, A_QX, A_INB = 0, 30720, 73728, 0
QF, OA, SS, PP, KVR = 64, 96, 160, 16, 192
V_G = 15


def role_a():
    S_HEAD, S_TT, S_X0, S_X1 = 8, 9, 10, 11
    SWQ, SG, SKV = 60, 64, 68
    XL = 128
    WF, DQ = 16, 96
    OQ, OO = QF + 24, OA + 48
    vXg, vXr0, vXr1, vXw, vWg, vWr, vGa, vGl = 2, 3, 4, 5, 6, 7, 8, 9
    vE, vG0, vG1 = 10, 11, 12
    e("s_and_b32 s5, s2, 7")
    e("s_bfe_u32 s6, s2, 0x50003")
    e("s_lshr_b32 s7, s6, 4")
    e("s_lshl_b32 s5, s5, 1")
    e("s_add_u32 s5, s5, s7")
    e("s_and_b32 s%d, s6, 15" % S_HEAD)
    e("s_lshl_b32 s%d, s5, 2" % S_TT)
    e("s_add_u32 s%d, s%d, s3" % (S_TT, S_TT))
    e("s_mul_i32 s%d, s%d, 28672" % (S_X0, S_TT))
    e("s_add_u32 s%d, s%d, 14336" % (S_X1, S_X0))
    e("s_setprio %d" % OPT["a0prio"])
    e("v_bfe_u32 v13, v1, 2, 3")
    e("v_mul_u32_u24 v%d, 3584, v13" % vXg)
    e("v_and_b32 v14, 3, v1")
    e("v_lshl_add_u32 v%d, v14, 4, v%d" % (vXg, vXg))
    e("v_lshrrev_b32 v13, 5, v1")
    e("v_lshl_add_u32 v%d, v13, 6, v%d" % (vXg, vXg))
    e("v_lshrrev_b32 v13, 2, v1")
    e("v_mul_u32_u24 v%d, 896, v13" % vWg)
    e("v_lshl_add_u32 v%d, v14, 4, v%d" % (vWg, vWg))
    e("v_lshlrev_b32 v%d, 1, v1" % vGa)
    e("s_mul_i32 s12, s3, %d" % (112 * 896))
    e("s_mul_i32 s13, s%d, 56" % S_HEAD)
    e("s_add_u32 s12, s12, s13")
    e("s_mul_i32 s13, s3, %d" % (112 * 64))
    e("s_mul_i32 s14, s3, 224")
    e("s_mov_b32 m0, s13")
    e("s_waitcnt lgkmcnt(0)")
    if OPT["timing"]:
        e("v_writelane_b32 v0, s96, 0")
    stamp(20)
    cstamp(29)
    e("s_load_dword s4, s[%d:%d], %d" % (P_WS, P_WS + 1, NONCE_OFF))
    srd(SX, P_X, 2048 * 896)
    if OPT["xtouch"]:
        e("v_lshlrev_b32 v13, 12, v1")
        e("s_mov_b64 exec, 0x%x" % ((1 << OPT["xtouch"]) - 1))
        e("buffer_load_dword v14, v13, s[%d:%d], s%d offen" % (SX, SX + 3, S_X0))
        e("s_mov_b64 exec, -1")
    srd(SWQ, P_WQ, 448 * 896)
    for m in range(7):
        e("buffer_load_dwordx4 v%d, s[%d:%d], s12 offen lds" % (vWg, SWQ, SWQ + 3))
        if m < 6:
            e("s_add_u32 m0, m0, 1024")
            e("s_add_u32 s12, s12, 14336")
    srd(SG, P_GW, 896)
    e("buffer_load_ushort v%d, v%d, s[%d:%d], s14 offen" % (vG0, vGa, SG, SG + 3))
    e("buffer_load_ushort v%d, v%d, s[%d:%d], s14 offen offset:128" % (vG1, vGa, SG, SG + 3))
    PRE = OPT["xpre"]
    assert PRE <= 2

    def xload(b):
        for g in range(4):
            e("buffer_load_dwordx4 %s, v%d, s[%d:%d], s%d offen offset:%d" % (vr(XL + 16 * (b & 3) + 4 * g, 4), vXg, SX, SX + 3, S_X0, 896 * g + 128 * b))

    NT_A = 1 if OPT["touch"] else 0

    def touch_a():
        if OPT["touch"]:
            e("buffer_load_dword v14, v4, s[%d:%d], 0 offen sc1" % (SWS, SWS + 3))

    if OPT["obar"]:
        e("s_barrier")
    for b in range(PRE):
        xload(b)
    stampd(90)
    e("s_setprio %d" % OPT["a1prio"])
    srd(SWS, P_WS, WS_BYTES)
    if OPT["touch"]:
        e("s_lshl_b32 s5, s3, 16")
        e("s_add_u32 s5, s5, 0x%x" % KV)
        e("v_lshlrev_b32 v4, 12, v1")
        e("v_and_b32 v4, 0xffff, v4")
        e("v_add_u32 v4, s5, v4")
        e("s_lshl_b32 s5, s%d, 4" % S_TT)
        e("s_add_u32 s5, s5, s%d" % S_HEAD)
        e("s_lshl_b32 s6, s5, 11")
        e("s_add_u32 s6, s6, 0x%x" % OW)
        e("v_writelane_b32 v4, s6, 16")
        e("s_lshl_b32 s6, s5, 7")
        e("s_add_u32 s6, s6, 0x%x" % FLAG_O)
        e("v_writelane_b32 v4, s6, 17")
        e("s_lshl_b32 s5, s3, 13")
        e("s_add_u32 s5, s5, 0x%x" % FLAG_KV)
        e("v_writelane_b32 v4, s5, 18")
        e("s_add_u32 s5, s5, 4096")
        e("v_writelane_b32 v4, s5, 19")
        if PRE == 7:
            touch_a()
    tr_addr(vWr, 32, 64, 13, 14)
    if OPT["agg"]:
        e("s_and_b32 s5, s2, 7")
        e("s_lshl_b32 s5, s5, 2")
        e("s_add_u32 s5, s5, s3")
        e("s_lshl_b32 s5, s5, 7")
        e("s_add_u32 s5, s5, 0x%x" % FLAG_AG)
        e("v_lshlrev_b32 v3, 15, v1")
        e("v_add_u32 v3, s5, v3")
    else:
        e("s_lshl_b32 s5, s3, 13")
        e("s_add_u32 s5, s5, 0x%x" % FLAG_KV)
        e("v_lshlrev_b32 v3, 7, v1")
        e("v_add_u32 v3, s5, v3")
    e("v_lshlrev_b32 v13, 6, v1")
    e("v_add_u32 v%d, s13, v13" % vGl)
    e("s_add_u32 s12, s3, %d" % (KV >> 16))
    e("s_lshl_b32 s12, s12, 16")
    srd(SKV, P_WS, 65536, "s12")
    for k, msk in enumerate((0x55555555, 0xAAAAAAAA, 0x33333333, 0xCCCCCCCC)):
        e("s_mov_b32 s%d, 0x%x" % (72 + 2 * k, msk))
        e("s_mov_b32 s%d, 0x%x" % (73 + 2 * k, msk))
    e("s_waitcnt vmcnt(%d)" % (4 * PRE + (NT_A if PRE == 7 else 0)))
    e("ds_write_b16 v%d, v%d offset:56" % (vGl, vG0))
    e("ds_write_b16 v%d, v%d offset:%d" % (vGl, vG1, 56 + 4096))
    e("s_waitcnt lgkmcnt(0)")
    e("s_barrier")
    stampw(6, 90)
    stamp(1)
    cstamp(27)
    e("s_add_u32 s4, s4, 0x%x" % NONCE_ADD)

    def wread(b):
        for p in range(4):
            for q in range(2):
                e("ds_read_b64_tr_b16 %s, v%d offset:%d" % (vr(WF + 16 * (b & 3) + 4 * p + 2 * q, 2), vWr, (64 * b + 8 * p + 4 * q) * 64))

    X1, X2 = "quad_perm:[1,0,3,2] row_mask:0xf bank_mask:0xf", "quad_perm:[2,3,0,1] row_mask:0xf bank_mask:0xf"

    first = [True]
    TREG = {}

    def qm(b, p):
        mfma(DQ, WF + 16 * (b & 3) + 4 * p, TREG[(b, p)], None if first[0] else DQ)
        first[0] = False

    wread(0)
    for b in range(7):
        R = [XL + 16 * (b & 3) + 4 * g for g in range(4)]
        P_, Q_ = 8, (12 if b == 0 else XL + 16 * ((b - 1) & 3) + 4)
        TREG[(b, 0)], TREG[(b, 1)], TREG[(b, 2)], TREG[(b, 3)] = R[0], R[2], Q_, R[3]
        seq = [(R[0] + k, R[1] + k, P_ + k, X1) for k in range(4)] + [(R[2] + k, R[3] + k, Q_ + k, X1) for k in range(4)]
        seq += [(P_ + k, Q_ + k, R[0] + k, X2) for k in range(4)] + [(R[1] + k, R[3] + k, R[2] + k, X2) for k in range(4)]
        if b + PRE < 7:
            xload(b + PRE)
            if b + PRE == 6:
                touch_a()
        if b > 0:
            e("s_waitcnt lgkmcnt(0)")
        if b < 6:
            wread(b + 1)
        e("s_mov_b64 vcc, s[72:73]")
        e("s_waitcnt vmcnt(%d)" % (4 * (min(b + PRE, 6) - b) + (1 if OPT["early"] == 2 and b > OPT["eb"] else 0)))
        if b == OPT["eb"] and OPT["early"] == 2:
            e("buffer_load_dword v4, v3, s[%d:%d], 0 offen sc1" % (SWS, SWS + 3))
        if b == 6:
            e("v_lshlrev_b32 v2, 4, v1")
        for i in range(18):
            if 1 <= i <= 16:
                A_, B_, N_, pat = seq[i - 1]
                e("v_xor_b32 v%d, v%d, v%d" % (A_, A_, N_))
            if i == 8:
                e("s_mov_b64 vcc, s[76:77]")
            if i < 16:
                A_, B_, N_, pat = seq[i]
                e("v_cndmask_b32_dpp v%d, v%d, v%d, vcc %s" % (N_, B_, A_, pat))
            if i == 17:
                qm(b, 2)
            if i >= 2:
                A_, B_, N_, pat = seq[i - 2]
                e("v_xor_b32_dpp v%d, v%d, v%d %s" % (B_, A_, B_, pat))
            if b > 0 and i == 2:
                qm(b - 1, 1)
            if b > 0 and i == 7:
                qm(b - 1, 3)
            if i == 12:
                if b == 0:
                    e("s_waitcnt lgkmcnt(8)")
                qm(b, 0)
    qm(6, 1)
    qm(6, 3)
    cstamp(28)
    stamp(7)

    def Kf(b, k):
        return KVR + 16 * b + 4 * k

    def Vf(b, k):
        return KVR + 16 * b + 8 + 4 * k

    def ld(reg, soff, off):
        e("buffer_load_dwordx4 %s, v2, s[%d:%d], %s offen offset:%d sc1" % (vr(reg, 4), SKV, SKV + 3, soff, off))

    S_OFF, S_EARLY = 13, 11

    def kv_first():
        for b in range(4):
            if b == 0:
                so = "0"
            else:
                e("s_mov_b32 s%d, %d" % (S_OFF, 4096 * b))
                so = "s%d" % S_OFF
            ld(Kf(b, 0), so, 0)
            ld(Kf(b, 1), so, 1024)
            if b < 3:
                ld(Vf(b, 0), so, 2048)
                ld(Vf(b, 1), so, 3072)

    if OPT["early"] == 1:
        e("buffer_load_dword v4, v3, s[%d:%d], 0 offen sc1" % (SWS, SWS + 3))
    e("s_mov_b32 s12, 0x%x" % f32(28 ** -0.5 * LOG2E))
    e("s_mov_b32 s14, 0")
    e("s_mov_b32 s15, -1")
    e("s_lshl_b32 s5, s3, 11")
    e("s_add_u32 s5, s5, %d" % A_QX)
    e("v_add_u32 v12, s5, v2")
    for i in range(1, 4):
        e("s_add_u32 s5, s3, %d" % i)
        e("s_and_b32 s5, s5, 3")
        e("s_lshl_b32 s6, s5, 11")
        e("s_add_u32 s6, s6, %d" % A_QX)
        e("v_add_u32 v%d, s6, v2" % (4 + i))
        e("s_mul_i32 s6, s5, 12288")
        e("s_add_u32 s6, s6, %d" % (A_INB + (i - 1) * 4096))
        e("v_add_u32 v%d, s6, v2" % (7 + i))
    e("s_mul_i32 s6, s3, 12288")
    e("v_add_u32 v11, s6, v2")
    e("v_mul_f32 v%d, 0x%x, v%d" % (V_G, f32(-LOG2E), DQ + 12))
    for k in range(8):
        e("v_pk_mul_f32 %s, %s, s[12:13] op_sel_hi:[1,0]" % (vr(DQ + 2 * k, 2), vr(DQ + 2 * k, 2)))
    e("v_exp_f32 v%d, v%d" % (V_G, V_G))
    for k in range(8):
        e("v_cvt_pk_bf16_f32 v%d, v%d, v%d" % (OQ + k, DQ + 2 * k, DQ + 2 * k + 1))
    e("v_cndmask_b32 v%d, v%d, 0, s[14:15]" % (OQ + 6, OQ + 6))
    e("v_cndmask_b32 v%d, v%d, 0, s[14:15]" % (OQ + 7, OQ + 7))
    e("ds_write_b128 v12, %s" % vr(OQ, 4))
    e("ds_write_b128 v12, %s offset:1024" % vr(OQ + 4, 4))
    for k in range(4):
        e("v_pk_mov_b32 %s, 0, 0" % vr(PP + 8 + 2 * k, 2))
    for k in range(4):
        e("v_pk_mov_b32 %s, 0, 0" % vr(KVR + 56 + 2 * k, 2))
    e("v_add_f32 v%d, 1.0, v%d" % (V_G, V_G))
    e("v_rcp_f32 v%d, v%d" % (V_G, V_G))
    if OPT["early"] == 2:
        e("s_waitcnt vmcnt(0)")
        e("v_cmp_ne_u32 vcc, s4, v4")
        e("s_cmp_eq_u64 vcc, 0")
        e("s_cselect_b32 s%d, 1, 0" % S_EARLY)
        e("s_cbranch_scc0 L_a_late1")
        kv_first()
        e("s_branch L_a_j1")
        e("L_a_late1:")
        e("buffer_load_dword v4, v3, s[%d:%d], 0 offen sc1" % (SWS, SWS + 3))
        e("L_a_j1:")
    e("s_waitcnt lgkmcnt(0)")
    e("s_barrier")
    for i in range(3):
        e("ds_read_b128 %s, v%d" % (vr(QF + 8 * i, 4), 5 + i))
        e("ds_read_b128 %s, v%d offset:1024" % (vr(QF + 8 * i + 4, 4), 5 + i))
    for i in range(4):
        mfma(OA + 16 * i, PP + 8, PP + 8, None)
    stamp(2)
    if OPT["early"] == 2:
        e("s_cmp_lg_u32 s%d, 0" % S_EARLY)
        e("s_cbranch_scc1 L_a_go")
    if OPT["early"]:
        e("s_waitcnt vmcnt(0)")
        e("v_cmp_ne_u32 vcc, s4, v4")
        e("s_cmp_eq_u64 vcc, 0")
        e("s_cbranch_scc1 L_pollok_kv")
    if OPT["agg"]:
        e("v_not_b32 v4, s4")
        e("s_mov_b32 s5, 0")
        e("L_a_ag:")
        e("s_and_b32 s6, s5, 7")
        e("s_cmp_eq_u32 s6, 7")
        e("s_cselect_b64 exec, 3, 1")
        e("buffer_load_dword v4, v3, s[%d:%d], 0 offen sc1" % (SWS, SWS + 3))
        e("s_mov_b64 exec, -1")
        e("s_add_u32 s5, s5, 1")
        e("s_waitcnt vmcnt(0)")
        e("v_cmp_eq_u32 vcc, s4, v4")
        e("s_cmp_lg_u64 vcc, 0")
        e("s_cbranch_scc1 L_a_agok")
        if OPT["agsleep"]:
            e("s_sleep %d" % OPT["agsleep"])
        e("s_cmp_lt_u32 s5, %d" % OPT["spin"])
        e("s_cbranch_scc1 L_a_ag")
        e("L_a_agok:")
        kv_first()
    elif OPT["split16"]:
        e("s_mov_b64 exec, 0xffff")
        poll("kv0", 3, 4, sleep=OPT["kvsleep"])
        kv_first()
        e("s_mov_b32 exec_lo, 0xffff0000")
        poll("kv", 3, 4, sleep=OPT["kvsleep"])
    else:
        poll("kv", 3, 4, sleep=OPT["kvsleep"])
        kv_first()
    e("L_a_go:")
    e("s_cmp_lg_u32 s3, 0")
    e("s_cbranch_scc1 L_a_noalive")
    e("s_lshl_b32 s5, s2, 7")
    e("s_add_u32 s5, s5, 0x%x" % ALIVE)
    flag_store(5, 13)
    e("L_a_noalive:")
    e("s_cmp_lg_u32 s%d, 0" % S_HEAD)
    e("s_cbranch_scc1 L_a_nog")
    e("s_lshl_b32 s5, s%d, 8" % S_TT)
    e("s_add_u32 s5, s5, 0x%x" % (G1 - 256))
    e("v_lshlrev_b32 v14, 3, v1")
    e("v_sub_f32 v12, 1.0, v%d" % V_G)
    e("v_mov_b32 v13, s4")
    e("s_mov_b32 exec_lo, 0")
    e("buffer_store_dwordx2 v[12:13], v14, s[%d:%d], s5 offen sc1" % (SWS, SWS + 3))
    e("s_mov_b32 exec_lo, -1")
    e("L_a_nog:")
    stamp(3)
    e("s_setprio %d" % OPT["aprio"])
    e("s_waitcnt vmcnt(12) lgkmcnt(0)")
    stamp(8)
    cstamp(22)
    mfma(SS, Kf(0, 0), QF, None)
    mfma(SS, Kf(0, 1), QF + 4, SS)

    def M1(n, bi):
        mfma(SS + 16 * (n & 1), Kf(bi[0], 0), QF + 8 * bi[1], None)

    def step(n, prev, nx1, nx2, X):
        S = SS + 16 * (n & 1)
        Sn = SS + 16 * ((n + 1) & 1)
        P = PP + 8 * (n & 1)
        Pp = PP + 8 * ((n - 1) & 1)

        def ex(a, b_):
            for r in range(a, b_):
                e("v_exp_f32 v%d, v%d" % (S + r, S + r))

        def cv(a, b_):
            for k in range(a, b_):
                e("v_cvt_pk_bf16_f32 v%d, v%d, v%d" % (P + k, S + 2 * k, S + 2 * k + 1))

        def xx(k):
            for f in X.get(k, ()):
                f() if callable(f) else e(f)

        xx(0)
        ex(0, 4)
        mfma(OA + 16 * prev[1], Vf(prev[0], 0), Pp, OA + 16 * prev[1])
        xx(1)
        ex(4, 8)
        cv(0, 2)
        if nx1:
            mfma(Sn, Kf(nx1[0], 1), QF + 8 * nx1[1] + 4, Sn)
        xx(2)
        ex(8, 12)
        cv(2, 4)
        mfma(OA + 16 * prev[1], Vf(prev[0], 1), Pp + 4, OA + 16 * prev[1])
        xx(3)
        ex(12, 16)
        cv(4, 8)
        xx(4)
        if nx2:
            M1(n, nx2)

    BI = lambda n: ((n >> 2) & 3, n & 3)
    e("s_nop 10")
    M1(1, BI(1))
    e("L_attn:")
    for n in range(16):
        X = {}
        so = "s%d" % S_OFF
        if n % 4 == 1:
            vb = ((n >> 2) + 3) & 3
            X = {0: ["s_waitcnt vmcnt(10)"], 1: [lambda: ld(Vf(vb, 0), so, 2048)], 2: [lambda: ld(Vf(vb, 1), so, 3072)],
                 3: ["s_add_u32 s%d, s%d, 4096" % (S_OFF, S_OFF)]}
        if n % 4 == 2:
            X = {3: ["s_waitcnt vmcnt(10)"]}
        if n % 4 == 3:
            kb = (n >> 2) & 3
            X = {0: [lambda: ld(Kf(kb, 0), so, 0)], 1: [lambda: ld(Kf(kb, 1), so, 1024)]}
            if n == 15:
                X[3] = ["s_cmp_lt_u32 s%d, %d" % (S_OFF, 4096 * 15)]
        step(n, BI(n - 1), BI(n + 1), BI(n + 2), X)
    e("s_cbranch_scc1 L_attn")
    SEQ = [(0, 0), (0, 1), (1, 0), (1, 1), (2, 0), (2, 1), (3, 0), (3, 1)] + [(b, 2) for b in range(4)] + [(b, 3) for b in range(4)]

    def wr(sl, q):
        return "ds_write_b128 v%d, %s offset:%d" % (8 + sl, vr(OA + 16 * sl + 4 * q, 4), q * 1024)

    def rd(k):
        return "ds_read_b128 %s, v11 offset:%d" % (vr(OA + 4 * k, 4), k * 1024)

    def pa(d, a_):
        return "v_pk_add_f32 %s, %s, %s" % (vr(d, 2), vr(d, 2), vr(a_, 2))

    def hint():
        flag_store(7, 7, "")

    so = "s%d" % S_OFF
    XP = {n: {} for n in range(16)}
    XP[0] = {4: ["s_waitcnt vmcnt(8)"]}
    XP[1] = {1: [lambda: ld(Vf(3, 0), so, 2048)], 2: [lambda: ld(Vf(3, 1), so, 3072)]}
    XP[2] = {4: ["s_waitcnt vmcnt(6)"]}
    XP[4] = {4: ["s_waitcnt vmcnt(2)"]}
    XP[7] = {0: ["s_waitcnt vmcnt(0)"]}
    XP[5] = {0: ["s_lshl_b32 s5, s%d, 4" % S_TT, "s_add_u32 s5, s5, s%d" % S_HEAD], 1: ["s_lshl_b32 s6, s5, 11", "s_add_u32 s6, s6, 0x%x" % OW],
             2: ["s_lshl_b32 s7, s5, 7", "s_add_u32 s7, s7, 0x%x" % FLAG_O], 3: ["s_and_b32 s5, s4, 0xbfff0000", "s_mov_b32 s10, 0x07060100", "s_mov_b32 s11, 0x07060302"]}
    XP[6] = {0: ["v_mov_b32 v40, s5", "v_mov_b32 v41, 0x03020100"], 1: ["v_mov_b32 v42, 0x07060100", "v_mov_b32 v43, 0x07060302"],
             2: ["v_cndmask_b32 v41, v41, v42, s[14:15]"], 3: ["v_cndmask_b32 v42, v42, v43, s[14:15]"]}
    XP[8] = {k + 1: [wr(0, k)] for k in range(4)}
    XP[9] = {k + 1: [wr(1, k)] for k in range(4)}
    XP[13] = {1: [wr(2, 0), wr(2, 1)], 2: [wr(2, 2), wr(2, 3)], 4: ["s_waitcnt lgkmcnt(0)", "s_barrier"] + ([hint] if OPT["hintpos"] == 1 else [])}
    XP[14] = {0: [rd(0), rd(4), rd(1), rd(5)], 1: [rd(2), rd(6), rd(3), rd(7)], 2: [rd(8), rd(9), rd(10), rd(11)],
              4: ["s_waitcnt lgkmcnt(4)"] + [pa(OA + 2 * k, OA + 16 + 2 * k) for k in range(4)]}
    XP[15] = {0: ([hint] if OPT["hintpos"] == 3 else []) + [pa(OA + 2 * k, OA + 16 + 2 * k) for k in range(4, 8)],
              1: ["s_waitcnt lgkmcnt(0)"] + [pa(OA + 2 * k, OA + 32 + 2 * k) for k in range(4)],
              2: [pa(OA + 2 * k, OA + 32 + 2 * k) for k in range(4, 8)],
              3: ["s_mov_b32 s12, 0x%x" % f32(2.0 ** -60), "s_mov_b32 s13, 0x%x" % f32(2.0 ** 60)]}
    for n in range(16):
        step(n, SEQ[n - 1] if n else (3, 3), SEQ[n + 1] if n < 15 else None, SEQ[n + 2] if n < 14 else None, XP[n])
    mfma(OO, Vf(3, 0), PP + 8, OO)
    mfma(OO, Vf(3, 1), PP + 12, OO)
    if OPT["hintpos"] == 4:
        hint()
    cstamp(23)
    stamp(4)
    for k in range(8):
        e(pa(OO + 2 * k, OA + 2 * k))
    e("v_pk_mul_f32 v[4:5], %s, 0" % vr(OO, 2))
    for k in range(1, 8):
        e("v_pk_fma_f32 v[4:5], %s, 0, v[4:5]" % vr(OO + 2 * k, 2))
    e("v_cmp_nle_f32 s[72:73], s12, v%d" % (OO + 12))
    e("v_cmp_nge_f32 s[74:75], s13, v%d" % (OO + 12))
    e("v_cmp_u_f32 vcc, v4, v5")
    e("s_or_b32 s73, s73, s75")
    e("s_or_b32 s73, s73, vcc_hi")
    e("s_or_b32 s73, s73, vcc_lo")
    if OPT["force_fb"]:
        e("s_mov_b32 s73, 1")
    e("s_cmp_lg_u32 s73, 0")
    e("s_cbranch_scc1 L_fb")
    e("L_fin:")
    e("v_rcp_f32 v4, v%d" % (OO + 12))
    e("v_mul_f32 v4, v4, v%d" % V_G)
    e("v_mov_b32 v5, v4")
    e("v_permlane32_swap_b32 v5, v4")
    for k in (3, 5, 7, 6, 0, 1, 2, 4):
        e("v_pk_mul_f32 %s, %s, v[4:5] op_sel_hi:[1,0]" % (vr(OO + 2 * k, 2), vr(OO + 2 * k, 2)))
    for k in (3, 7):
        e("v_cvt_pk_bf16_f32 v%d, v%d, v%d" % (32 + k, OO + 2 * k, OO + 2 * k + 1))
    e("v_perm_b32 v44, v39, v35, s11")
    e("v_cvt_pk_bf16_f32 v38, v%d, v%d" % (OO + 12, OO + 13))
    e("v_mov_b32 v45, v44")
    for k in (0, 1):
        e("v_cvt_pk_bf16_f32 v%d, v%d, v%d" % (32 + k, OO + 2 * k, OO + 2 * k + 1))
    e("v_permlane32_swap_b32 v45, v44")
    for k in (2, 4, 5):
        e("v_cvt_pk_bf16_f32 v%d, v%d, v%d" % (32 + k, OO + 2 * k, OO + 2 * k + 1))
    e("v_cndmask_b32 v38, v38, v45, s[14:15]")
    e("v_cndmask_b32 v39, v39, v45, s[14:15]")
    e("v_perm_b32 v38, v35, v38, v41")
    e("v_perm_b32 v35, v40, v35, s10")
    e("v_perm_b32 v39, v40, v39, v42")
    e("buffer_store_dwordx4 v[32:35], v2, s[%d:%d], s6 offen" % (SWS, SWS + 3))
    e("buffer_store_dwordx4 v[36:39], v2, s[%d:%d], s6 offen offset:1024" % (SWS, SWS + 3))
    if OPT["hintpos"] == 2 and not OPT["nonear"]:
        flag_store(7, 7, "")
    e("s_add_u32 s6, s6, 0x%x" % (OW2 - OW))
    e("s_add_u32 s7, s7, 0x%x" % (FLAG_O2 - FLAG_O))
    if OPT["nofar"] == 2:
        e("s_waitcnt vmcnt(0)")
    if OPT["nofar"] != 1:
        e("buffer_store_dwordx4 v[32:35], v2, s[%d:%d], s6 offen sc1" % (SWS, SWS + 3))
        e("buffer_store_dwordx4 v[36:39], v2, s[%d:%d], s6 offen offset:1024 sc1" % (SWS, SWS + 3))
        flag_store(7, 7)
    stamp(5)
    cstamp(30)
    dbg_stamp(256, 264, 0, True)
    stamp_flush()
    e("s_endpgm")

    SALL = 76
    e("L_fb:")
    srd(SALL, P_WS, 262144, "0x%x" % KV)
    e("v_mov_b32 v7, 0xff800000")
    e("s_mov_b32 s12, 0")
    e("L_fb1:")
    e("buffer_load_dwordx4 v[192:195], v2, s[%d:%d], s12 offen sc1" % (SALL, SALL + 3))
    e("buffer_load_dwordx4 v[196:199], v2, s[%d:%d], s12 offen offset:1024 sc1" % (SALL, SALL + 3))
    e("s_waitcnt vmcnt(0)")
    mfma(SS, 192, OQ, None)
    mfma(SS, 196, OQ + 4, SS)
    for k in range(8):
        e("v_max3_f32 v7, v7, v%d, v%d" % (SS + 2 * k, SS + 2 * k + 1))
    e("s_add_u32 s12, s12, 4096")
    e("s_cmp_lt_u32 s12, 262144")
    e("s_cbranch_scc1 L_fb1")
    e("v_mov_b32 v8, v7")
    e("v_permlane32_swap_b32 v8, v7")
    e("v_max_f32 v7, v7, v8")
    for k in range(16):
        e("v_mov_b32 v%d, 0" % (OO + k))
    e("s_mov_b32 s12, 0")
    e("L_fb2:")
    for k in range(4):
        e("buffer_load_dwordx4 %s, v2, s[%d:%d], s12 offen offset:%d sc1" % (vr(192 + 4 * k, 4), SALL, SALL + 3, 1024 * k))
    e("s_waitcnt vmcnt(0)")
    mfma(SS, 192, OQ, None)
    mfma(SS, 196, OQ + 4, SS)
    for k in range(16):
        e("v_sub_f32 v%d, v%d, v7" % (SS + k, SS + k))
    for k in range(16):
        e("v_exp_f32 v%d, v%d" % (SS + k, SS + k))
    for k in range(8):
        e("v_cvt_pk_bf16_f32 v%d, v%d, v%d" % (PP + k, SS + 2 * k, SS + 2 * k + 1))
    mfma(OO, 200, PP, OO)
    mfma(OO, 204, PP + 4, OO)
    e("s_add_u32 s12, s12, 4096")
    e("s_cmp_lt_u32 s12, 262144")
    e("s_cbranch_scc1 L_fb2")
    e("s_nop 8")
    e("s_branch L_fin")


S_STG = 16896
S_INB1 = 16896
S_WL = 49664
S_PX = 67584
KR0, KR1, XC0 = 0, 7680, 15360
XCS = 4160
L_CPX = 48640
S_OF, S_G1, S_OT = 0, 32768, 40960


def cmul(d, x, m, t):
    e("v_pk_mul_f32 %s, %s, %s op_sel_hi:[1,0]" % (vr(t, 2), vr(x, 2), vr(m, 2)))
    e("v_pk_fma_f32 %s, %s, %s, %s op_sel:[1,1,0] op_sel_hi:[0,1,1] neg_lo:[1,0,0]" % (vr(d, 2), vr(x, 2), vr(m, 2), vr(t, 2)))


def role_s():
    S_ID, S_J, S_CP = 8, 9, 15
    SW, SWO, SOUT = 60, 64, 68
    vE = 10
    PRM = 240
    XTR = 128

    def xt_flag(tag):
        e("s_cmp_ge_u32 s84, 0x%x" % (FLAG_XT + 7 * 64 * 128))
        e("s_cbranch_scc1 L_s_noxf%s" % tag)
        e("s_waitcnt vmcnt(0)")
        flag_store(84, 14)
        e("L_s_noxf%s:" % tag)

    def alive(tag):
        e("s_cmp_lg_u32 s3, 3")
        e("s_cbranch_scc1 L_s_al%s" % tag)
        e("s_lshl_b32 s5, s2, 7")
        e("s_add_u32 s5, s5, 0x%x" % ALIVE)
        flag_store(5, 13)
        e("L_s_al%s:" % tag)

    S_TT, S_CG, S_OB, S_H, S_V, S_P, S_TAG, S_F, S_U, S_CB = 11, 12, 80, 76, 77, 78, 75, 79, 84, 85
    SWT, S_WF = 88, 86
    WO = 128

    def job_decode():
        rest = [(a_, c_) for a_ in range(8) for c_ in range(3) if not (a_ >= 4 and c_ == a_ - 4)]
        job = rest[:16] + [(a_, 3) for a_ in range(7)] + rest[16:] + [(4 + g_, g_) for g_ in range(4)]
        assert sorted(job) == sorted((a_, c_) for a_ in range(8) for c_ in range(4))
        tab = [sum((job[4 * d + k][0] | job[4 * d + k][1] << 4) << (8 * k) for k in range(4)) for d in range(8)]
        e("s_lshr_b32 s5, s%d, 2" % S_J)
        e("s_mov_b32 s6, 0x%x" % tab[0])
        for d in range(1, 8):
            e("s_cmp_eq_u32 s5, %d" % d)
            e("s_cselect_b32 s6, 0x%x, s6" % tab[d])
        e("s_and_b32 s5, s%d, 3" % S_J)
        e("s_lshl_b32 s5, s5, 3")
        e("s_lshr_b32 s6, s6, s5")
        e("s_and_b32 s5, s6, 7")
        e("s_add_u32 s%d, s10, s5" % S_TT)
        e("s_bfe_u32 s%d, s6, 0x20004" % S_CG)
        e("s_cmp_eq_u32 s%d, 3" % S_CG)
        e("s_cselect_b32 s5, 1, 3")
        e("s_and_b32 s%d, s3, s5" % S_CB)
        e("s_lshl_b32 s5, s%d, 2" % S_CG)
        e("s_add_u32 s5, s5, s%d" % S_CB)
        e("s_lshl_b32 s%d, s5, 10" % S_WF)
        e("s_add_u32 s%d, s%d, 0x%x" % (S_WF, S_WF, FLAG_W))
        e("s_lshl_b32 s5, s5, 15")
        e("s_add_u32 s5, s5, 0x%x" % WT)
        srd(SWT, P_WS, 32768, "s5")

    def wld(k, st=False):
        so = 4096 * (k >> 2)
        if so > 64:
            e("s_movk_i32 s6, 0x%x" % so) if so < 32768 else None
        e("buffer_%s_dwordx4 %s, v%d, s[%d:%d], %s offen offset:%d sc1" % ("store" if st else "load", vr(WO + 4 * k, 4), 5, SWT, SWT + 3, "s6" if so else "0", 1024 * (k & 3)))

    e("L_roleS:")
    e("s_setprio 3")
    e("s_mov_b32 s%d, s2" % S_ID)
    e("s_lshr_b32 s%d, s%d, 3" % (S_J, S_ID))
    M = OPT["kvmask"]
    assert bin(M).count("1") == 16
    if M != 0xffff0000:
        e("s_bfm_b32 s5, s%d, 0" % S_J)
        e("s_bitcmp1_b32 0x%x, s%d" % (M, S_J))
        e("s_cselect_b32 s6, 0x%x, 0x%x" % (M, M) if False else "s_cselect_b32 s6, 0, -1")
        e("s_cselect_b32 s7, 16, 0")
        e("s_xor_b32 s6, s6, 0x%x" % M)
        e("s_and_b32 s5, s5, s6")
        e("s_bcnt1_i32_b32 s5, s5")
        e("s_add_u32 s%d, s5, s7" % S_J)
    e("s_and_b32 s10, s%d, 7" % S_ID)
    e("s_mul_i32 s%d, s10, 28" % S_CP)
    e("s_add_u32 s%d, s%d, s%d" % (S_CP, S_CP, S_J))
    vXg, vXr0, vXr1, vL16, vWr = 2, 3, 4, 5, 6
    S_TAU, S_KIND = 11, 12
    e("v_lshrrev_b32 v13, 2, v1")
    e("v_mul_u32_u24 v%d, 896, v13" % vXg)
    e("v_lshrrev_b32 v13, 4, v1")
    e("v_xor_b32 v13, v13, v1")
    e("v_and_b32 v13, 3, v13")
    e("v_lshl_add_u32 v%d, v13, 4, v%d" % (vXg, vXg))
    e("v_lshlrev_b32 v%d, 4, v1" % vL16)
    e("s_lshl_b32 s10, s10, 3")
    e("s_sub_u32 s5, s%d, 16" % S_J)
    e("s_lshr_b32 s5, s5, 1")
    e("s_add_u32 s%d, s10, s5" % S_TAU)
    e("s_and_b32 s%d, s%d, 1" % (S_KIND, S_J))
    e("s_lshl_b32 s5, s3, 13")
    e("s_add_u32 s5, s5, 16896")
    e("s_cmp_eq_u32 s3, 0")
    e("s_cselect_b32 s13, 8192, s5")
    e("s_mul_i32 s14, s3, 7232")
    e("s_add_u32 s14, s14, %d" % S_WL)
    e("s_mul_i32 s5, s%d, 28672" % S_TAU)
    e("s_lshl_b32 s6, s3, 8")
    e("s_add_u32 s5, s5, s6")
    e("s_add_u32 s6, s5, 14336")
    e("s_mov_b32 m0, s13")
    e("s_mov_b32 s%d, %d" % (SW + 2, 448 * 56))
    e("s_mov_b32 s%d, 0x20000" % (SW + 3))
    e("s_mov_b32 s%d, 0x%x" % (SX + 2, 2048 * 896))
    e("s_mov_b32 s%d, 0x20000" % (SX + 3))
    e("s_cmp_lt_u32 s%d, 28" % S_J)
    e("s_cselect_b32 s7, s%d, 0" % S_CP)
    e("s_lshl_b32 s74, s7, 2")
    e("s_cmp_lt_u32 s%d, 16" % S_J)
    e("s_waitcnt lgkmcnt(0)")
    if OPT["timing"]:
        e("v_writelane_b32 v0, s96, 0")
    stamp(20)
    e("s_load_dword s4, s[%d:%d], %d" % (P_WS, P_WS + 1, NONCE_OFF))
    e("s_load_dword s72, s[%d:%d], s74" % (P_LDT, P_LDT + 1))
    e("s_load_dword s73, s[%d:%d], s74" % (P_DSK, P_DSK + 1))
    e("s_cbranch_scc1 L_s_nokv1")
    e("s_mov_b32 s%d, s%d" % (SX, P_X))
    e("s_mov_b32 s%d, s%d" % (SX + 1, P_X + 1))
    e("s_cmp_eq_u32 s%d, 0" % S_KIND)
    e("s_cselect_b32 s%d, s%d, s%d" % (SW, P_WK, P_WV))
    e("s_cselect_b32 s%d, s%d, s%d" % (SW + 1, P_WK + 1, P_WV + 1))
    for pp in range(4):
        for rh in range(2):
            e("buffer_load_dwordx4 v%d, s[%d:%d], s%d offen lds" % (vXg, SX, SX + 3, 6 if rh else 5))
            e("s_add_u32 m0, m0, 1024")
            if pp < 3:
                e("s_add_u32 s%d, s%d, 64" % (6 if rh else 5, 6 if rh else 5))
    e("s_mul_i32 s5, s3, 7168")
    e("s_mov_b32 m0, s14")
    e("s_add_u32 s6, s5, 4096")
    for m in range(4):
        e("buffer_load_dwordx4 v%d, s[%d:%d], s5 offen offset:%d lds" % (vL16, SW, SW + 3, 1024 * m))
    e("s_add_u32 m0, m0, 4096")
    for m in range(3):
        e("buffer_load_dwordx4 v%d, s[%d:%d], s6 offen offset:%d lds" % (vL16, SW, SW + 3, 1024 * m))
    e("L_s_nokv1:")
    e("s_lshl_b32 s5, s7, 10")
    e("s_lshl_b32 s6, s3, 8")
    e("s_add_u32 s5, s5, s6")
    e("v_lshlrev_b32 v7, 2, v1")
    e("v_add_u32 v7, s5, v7")
    for k, p in enumerate((P_ARE, P_AIM, P_BRE, P_BIM, P_CRE, P_CIM)):
        e("global_load_dword v%d, v7, s[%d:%d]" % (PRM + k, p, p + 1))
    srd(SWS, P_WS, WS_BYTES)
    srd(SWO, P_WO, 448 * 896)
    NPF = 0
    if OPT["wopf"]:
        e("s_mul_i32 s5, s10, %d" % (7 * 896))
        e("s_lshl_b32 s6, s%d, 8" % S_J)
        e("s_add_u32 s5, s5, s6")
        e("s_lshl_b32 s6, s3, 6")
        e("s_add_u32 s5, s5, s6")
        e("s_sub_u32 s5, s5, %d" % (28 * 256))
        e("s_cmp_lt_u32 s%d, 28" % S_J)
        e("s_cselect_b32 s5, 0x%x, s5" % (448 * 896))
        e("v_min_u32 v8, 55, v1")
        e("v_mul_u32_u24 v8, 896, v8")
        e("buffer_load_dword v%d, v8, s[%d:%d], s5 offen" % (PRM + 6, SWO, SWO + 3))
        NPF += 1
    if OPT["touch"]:
        e("v_lshlrev_b32 v8, 16, v1")
        e("v_add_u32 v8, 0x8000, v8")
        e("buffer_load_dword v%d, v8, s[%d:%d], 0 offen sc1" % (PRM + 7, SWS, SWS + 3))
        e("v_add_u32 v8, 0x400000, v8")
        e("buffer_load_dword v%d, v8, s[%d:%d], 0 offen sc1" % (PRM + 8, SWS, SWS + 3))
        NPF += 2
    e("s_cmp_lt_u32 s%d, 16" % S_J)
    e("s_cbranch_scc1 L_s_nokv2")
    e("v_and_b32 v13, 31, v1")
    e("v_lshlrev_b32 v%d, 6, v13" % vXr0)
    e("v_lshrrev_b32 v13, 2, v1")
    e("v_lshrrev_b32 v14, 5, v1")
    e("v_xor_b32 v13, v13, v14")
    e("v_and_b32 v13, 3, v13")
    e("v_lshl_add_u32 v%d, v13, 4, v%d" % (vXr0, vXr0))
    e("v_xor_b32 v%d, 32, v%d" % (vXr1, vXr0))
    tr_addr(vWr, 8, 56, 13, 14)
    e("v_add_u32 v%d, s14, v%d" % (vWr, vWr))
    e("v_add_u32 v%d, s13, v%d" % (vXr0, vXr0))
    e("v_add_u32 v%d, s13, v%d" % (vXr1, vXr1))
    e("s_lshl_b32 s5, s3, 11")
    e("v_add_u32 v8, s5, v%d" % vL16)
    e("s_lshl_b32 s5, s%d, 12" % S_KIND)
    e("s_add_u32 s5, s5, s13")
    e("v_lshrrev_b32 v13, 5, v1")
    e("v_lshlrev_b32 v20, 11, v13")
    e("v_bfe_u32 v13, v1, 2, 2")
    e("v_lshl_add_u32 v20, v13, 6, v20")
    e("v_and_b32 v13, 1, v1")
    e("v_lshl_add_u32 v20, v13, 3, v20")
    e("v_add_u32 v20, s5, v20")
    e("v_bfe_u32 v13, v1, 4, 1")
    e("v_bfe_u32 v14, v1, 1, 1")
    e("v_lshl_add_u32 v13, v13, 1, v14")
    for m in range(4):
        e("v_xor_b32 v14, %d, v13" % m)
        e("v_lshl_add_u32 v%d, v14, 4, v20" % (16 + m))
    e("s_lshl_b32 s5, s3, 1")
    e("s_add_u32 s5, s5, s%d" % S_KIND)
    e("s_lshl_b32 s84, s5, 6")
    e("s_add_u32 s84, s84, s%d" % S_TAU)
    e("s_lshl_b32 s84, s84, 7")
    e("s_add_u32 s84, s84, 0x%x" % FLAG_XT)
    e("s_lshl_b32 s5, s5, 10")
    e("s_mul_i32 s85, s%d, %d" % (S_TAU, 4 * 7168))
    e("s_add_u32 s85, s85, s5")
    e("s_add_u32 s85, s85, 0x%x" % XT)
    XF, WF, DK = 64, 96, 48
    e("s_waitcnt vmcnt(%d) lgkmcnt(0)" % (6 + NPF))
    stamp(1)
    e("s_add_u32 s4, s4, 0x%x" % NONCE_ADD)
    for s in range(8):
        e("ds_read_b128 %s, v%d offset:%d" % (vr(XF + 4 * s, 4), vXr1 if s & 1 else vXr0, (s >> 1) * 2048))
        for q in range(2):
            e("ds_read_b64_tr_b16 %s, v%d offset:%d" % (vr(WF + 4 * s + 2 * q, 2), vWr, s * 896 + q * 224))
    e("s_cmp_eq_u32 s%d, 0" % S_KIND)
    e("s_cbranch_scc0 L_s_kind1")
    for s in range(8):
        e("s_waitcnt lgkmcnt(%d)" % min(15, 21 - 3 * s))
        mfma(DK, WF + 4 * s, XF + 4 * s, None if s == 0 else DK)
    e("s_branch L_s_kindj")
    e("L_s_kind1:")
    for s in range(8):
        e("s_waitcnt lgkmcnt(%d)" % min(15, 21 - 3 * s))
        mfma(DK, XF + 4 * s, WF + 4 * s, None if s == 0 else DK)
    e("L_s_kindj:")
    for m in range(8):
        e("ds_read_b64_tr_b16 %s, v%d offset:%d" % (vr(XTR + 2 * m, 2), 16 + (m & 3), 256 * (m & 3) + 1024 * (m >> 2)))
    e("s_cmp_eq_u32 s%d, 0" % S_KIND)
    e("s_cselect_b32 s74, 0, 0xe0000000")
    e("s_mov_b32 s75, s74")
    e("s_mov_b32 s76, s74")
    e("s_cselect_b32 s78, 0, 0x10000000")
    e("s_mov_b32 s79, s78")
    e("s_cselect_b32 s5, -1, 0")
    e("s_cmp_eq_u32 s3, 1")
    e("s_cselect_b32 s5, s5, 0")
    e("s_or_b32 s77, s74, s5")
    e("v_mov_b32 v9, 0x3f803f80")
    for q in range(4):
        e("ds_write_b128 v8, %s offset:%d" % (vr(DK + 4 * q, 4), (q >> 1) * S_INB1 + (q & 1) * 1024))
    e("s_waitcnt lgkmcnt(0)")
    e("s_barrier")
    e("s_cmp_ge_u32 s3, 2")
    e("s_cbranch_scc1 L_s_kvdone")
    e("s_mul_i32 s5, s3, %d" % S_INB1)
    e("v_add_u32 v8, s5, v%d" % vL16)
    for k in range(8):
        e("ds_read_b128 %s, v8 offset:%d" % (vr(64 + 4 * k, 4), k * 1024))
    e("s_lshl_b32 s5, s%d, 1" % S_TAU)
    e("s_add_u32 s5, s5, s%d" % S_KIND)
    e("s_lshl_b32 s5, s5, 1")
    e("s_add_u32 s5, s5, s3")
    e("s_lshl_b32 s6, s5, 10")
    e("s_add_u32 s6, s6, 0x%x" % KV)
    e("s_lshl_b32 s7, s5, 7")
    e("s_add_u32 s7, s7, 0x%x" % FLAG_KV)
    e("s_waitcnt lgkmcnt(4)")
    for k in range(4):
        e("v_pk_add_f32 %s, %s, %s" % (vr(64 + 2 * k, 2), vr(64 + 2 * k, 2), vr(72 + 2 * k, 2)))
    e("s_waitcnt lgkmcnt(0)")
    for k in range(4):
        e("v_pk_add_f32 %s, %s, %s" % (vr(80 + 2 * k, 2), vr(80 + 2 * k, 2), vr(88 + 2 * k, 2)))
    for k in range(4):
        e("v_pk_add_f32 %s, %s, %s" % (vr(64 + 2 * k, 2), vr(64 + 2 * k, 2), vr(80 + 2 * k, 2)))
    for k in range(4):
        e("v_cvt_pk_bf16_f32 v%d, v%d, v%d" % (72 + k, 64 + 2 * k, 65 + 2 * k))
    for k in range(4):
        e("v_cndmask_b32 v%d, v%d, 0, %s" % (72 + k, 72 + k, "s[74:75]" if k < 2 else "s[76:77]"))
    for k in range(4):
        e("v_cndmask_b32 v%d, v%d, v9, s[78:79]" % (72 + k, 72 + k))
    stamp(17)
    e("buffer_store_dwordx4 v[72:75], v%d, s[%d:%d], s6 offen sc1" % (vL16, SWS, SWS + 3))
    e("s_waitcnt vmcnt(0)")
    stamp(18)
    flag_store(7, 9)
    if OPT["timing"]:
        e("s_waitcnt vmcnt(0)")
    stamp(26)
    e("L_s_kvdone:")
    e("s_setprio %d" % OPT["kprio"])
    e("s_waitcnt vmcnt(%d)" % NPF)
    e("s_cmp_ge_u32 s84, 0x%x" % (FLAG_XT + 7 * 64 * 128))
    e("s_cbranch_scc1 L_s_noxt")
    for q in range(4):
        e("buffer_store_dwordx4 %s, v%d, s[%d:%d], s85 offen sc1" % (vr(XTR + 4 * q, 4), vL16, SWS, SWS + 3))
        if q < 3:
            e("s_add_u32 s85, s85, 7168")
    e("L_s_noxt:")
    stamp(2)
    e("s_cmp_lt_u32 s%d, 28" % S_J)
    e("s_cbranch_scc1 L_s_kgen")
    alive("i")
    job_decode()
    e("s_cmp_lg_u32 s3, s%d" % S_CB)
    e("s_cbranch_scc1 L_s_nodma")
    e("v_lshrrev_b32 v13, 2, v1")
    e("v_mul_u32_u24 v8, 896, v13")
    e("v_and_b32 v13, 3, v1")
    e("v_lshl_add_u32 v8, v13, 4, v8")
    e("s_mul_i32 s5, s10, %d" % (7 * 896))
    e("s_lshl_b32 s6, s%d, 8" % S_CG)
    e("s_add_u32 s5, s5, s6")
    e("s_lshl_b32 s6, s3, 6")
    e("s_add_u32 s5, s5, s6")
    e("s_mov_b32 m0, s13")
    for m in range(4):
        e("buffer_load_dwordx4 v8, s[%d:%d], s5 offen lds" % (SWO, SWO + 3))
        if m < 3:
            e("s_add_u32 m0, m0, 1024")
            e("s_add_u32 s5, s5, %d" % (896 * (12 if m & 1 else 16)))
    e("L_s_nodma:")
    e("v_bfe_u32 v13, v1, 4, 1")
    e("v_and_b32 v14, 3, v1")
    e("v_lshl_add_u32 v13, v13, 2, v14")
    e("v_lshlrev_b32 v13, 3, v13")
    e("v_add_u32 v13, s13, v13")
    e("v_bfe_u32 v14, v1, 2, 2")
    e("v_lshl_add_u32 v16, v14, 6, v13")
    e("v_lshrrev_b32 v15, 5, v1")
    e("v_lshl_add_u32 v9, v15, 8, v16")
    e("v_lshlrev_b32 v15, 3, v14")
    e("s_mov_b32 s5, 0x1b1b0f0b")
    e("v_lshrrev_b32 v15, v15, s5")
    e("v_and_b32 v15, 0xff, v15")
    e("v_lshl_add_u32 v13, v15, 6, v13")
    e("v_add_u32 v10, %d, v9" % (24 * 64))
    e("s_mov_b32 s72, 0")
    e("s_mov_b32 s73, -1")
    e("v_cndmask_b32 v10, v10, v13, s[72:73]")
    xt_flag("a")
    if OPT["agg"]:
        e("s_cmp_lg_u32 s3, 2")
        e("s_cbranch_scc1 L_s_noag")
        e("s_sub_u32 s13, s%d, 28" % S_J)
        e("s_lshl_b32 s5, s13, 13")
        e("s_add_u32 s5, s5, 0x%x" % FLAG_KV)
        e("v_lshlrev_b32 v13, 7, v1")
        e("v_add_u32 v13, s5, v13")
        e("s_lshr_b32 s14, s10, 1")
        e("s_add_u32 s14, s14, s13")
        e("s_lshl_b32 s14, s14, 7")
        e("s_add_u32 s14, s14, 0x%x" % FLAG_AG)
        poll("ag", 13, 14)
        flag_store(14, 13, "")
        e("s_add_u32 s14, s14, 0x%x" % (FLAG_AG2 - FLAG_AG))
        flag_store(14, 13)
        stamp(27)
        e("L_s_noag:")
    e("s_cmp_lg_u32 s3, s%d" % S_CB)
    e("s_cbranch_scc1 L_s_nostage")
    e("s_waitcnt vmcnt(0)")
    for hd in range(2):
        for q in range(3):
            e("ds_read_b64_tr_b16 %s, v9 offset:%d" % (vr(WO + 8 * hd + 2 * q, 2), 2048 * hd + 512 * q))
        e("ds_read_b64_tr_b16 %s, v10 offset:%d" % (vr(WO + 8 * hd + 6, 2), 2048 * hd))
    e("s_lshl_b32 s6, s10, 9")
    e("s_lshl_b32 s7, s10, 4")
    e("s_add_u32 s7, s7, s%d" % S_WF)
    e("s_waitcnt lgkmcnt(0)")
    for k in range(4):
        e("v_and_b32 v%d, 0xffff, v%d" % (WO + 4 * k + 3, WO + 4 * k + 3))
    for k in range(4):
        e("buffer_store_dwordx4 %s, v%d, s[%d:%d], s6 offen offset:%d sc1" % (vr(WO + 4 * k, 4), vL16, SWT, SWT + 3, 1024 * k))
    e("s_waitcnt vmcnt(0)")
    flag_store(7, 13)
    stamp(29)
    e("s_barrier")
    e("s_branch L_s_wfb")
    e("L_s_nostage:")
    e("s_barrier")
    e("s_add_u32 s5, s10, s3")
    e("s_cmp_lg_u32 s5, %d" % (56 + 3))
    e("s_cbranch_scc1 L_s_wo")
    e("v_lshlrev_b32 v21, 7, v1")
    e("v_add_u32 v21, 0x%x, v21" % ALIVE)
    poll("alive", 21, 40, sleep=8, n=8, step=8192)
    e("s_mov_b32 s5, %d" % NONCE_OFF)
    flag_store(5, 21)
    e("s_branch L_s_wo")
    e("L_s_nokv2:")
    e("s_setprio %d" % OPT["kprio"])
    e("s_mov_b32 s84, -1")
    e("s_waitcnt vmcnt(%d) lgkmcnt(0)" % NPF)
    e("s_add_u32 s4, s4, 0x%x" % NONCE_ADD)
    e("L_s_kgen:")
    alive("k")
    job_decode()
    stamp(11)
    e("s_lshr_b32 s5, s3, 1")
    e("s_lshl_b32 s5, s5, 4")
    e("s_lshr_b32 s72, s72, s5")
    e("s_lshl_b32 s72, s72, 16")
    e("s_lshr_b32 s73, s73, s5")
    e("s_lshl_b32 s73, s73, 16")
    c_hi = struct.unpack("<f", struct.pack("<I", f32(LOG2E) & 0xFFFFFF00))[0]
    c_lo = (LOG2E - c_hi) * math.log(2.0)
    e("v_mov_b32 v8, s72")
    e("v_mul_f32 v9, 0x%x, v8" % f32(c_hi))
    e("v_exp_f32 v9, v9")
    e("v_mul_f32 v8, 0x%x, v8" % f32(c_lo))
    e("v_fma_f32 v9, v9, v8, v9")
    e("v_cvt_pk_bf16_f32 v9, v9, v9")
    e("v_and_b32 v9, 0xffff0000, v9")
    ZR, ZI = (16, 17), (18, 19)
    E1, E8, EG, WW, TT, XX = (20, 22), (24, 26), (28, 30), (32, 34), (36, 38), (40, 42)
    R2, R4, R6 = (44, 46), (48, 50), (52, 54)
    OUT = 56

    def unp(d, src, m):
        if m == 0:
            e("v_lshlrev_b32 v%d, 16, v%d" % (d, src))
        else:
            e("v_and_b32 v%d, 0xffff0000, v%d" % (d, src))

    for m in range(2):
        unp(ZR[m], PRM + 0, m)
        unp(ZI[m], PRM + 1, m)
    for m in range(2):
        e("v_mul_f32 v%d, v9, v%d" % (ZR[m], ZR[m]))
        e("v_mul_f32 v%d, v9, v%d" % (ZI[m], ZI[m]))
    for m in range(2):
        e("v_mul_f32 v%d, 0x%x, v%d" % (ZR[m], f32(LOG2E), ZR[m]))
        e("v_mul_f32 v%d, 0x%x, v%d" % (ZI[m], f32(1.0 / (2 * math.pi)), ZI[m]))

    def cexp(dst, mult, conj):
        for m in range(2):
            if mult != 1:
                e("v_mul_f32 v%d, 0x%x, v%d" % (TT[m], f32(mult), ZR[m]))
                e("v_mul_f32 v%d, 0x%x, v%d" % (TT[m] + 1, f32(mult), ZI[m]))
                e("v_fract_f32 v%d, v%d" % (TT[m] + 1, TT[m] + 1))
            else:
                e("v_mov_b32 v%d, v%d" % (TT[m], ZR[m]))
                e("v_fract_f32 v%d, v%d" % (TT[m] + 1, ZI[m]))
        for m in range(2):
            e("v_exp_f32 v%d, v%d" % (TT[m], TT[m]))
            e("v_cos_f32 v%d, v%d" % (dst[m], TT[m] + 1))
            e("v_sin_f32 v%d, v%d" % (dst[m] + 1, TT[m] + 1))
        for m in range(2):
            e("v_pk_mul_f32 %s, %s, %s op_sel_hi:[1,0]%s" % (vr(dst[m], 2), vr(dst[m], 2), vr(TT[m], 2), " neg_hi:[1,0]" if conj else ""))

    cexp(E8, 8, True)
    e("s_mul_i32 s13, s3, %d" % S_STG)
    e("v_lshlrev_b32 v8, 3, v1")
    e("v_add_u32 v8, s13, v8")
    e("v_and_b32 v11, 31, v1")
    e("v_mul_u32_u24 v11, 528, v11")
    e("v_lshrrev_b32 v12, 5, v1")
    e("v_lshl_add_u32 v11, v12, 4, v11")
    e("v_add_u32 v11, s13, v11")
    ring = [0]

    def put(row, src):
        o = OUT + 2 * (ring[0] & 3)
        ring[0] += 1
        for m in range(2):
            e("v_cvt_pk_bf16_f32 v%d, v%d, v%d" % (o + m, src[m], src[m] + 1))
        e("ds_write_b64 v8, %s offset:%d" % (vr(o, 2), row * 528))

    e("v_mov_b32 v%d, 0x3f80" % OUT)
    e("v_mov_b32 v%d, 0x3f80" % (OUT + 1))
    e("ds_write_b64 v8, %s" % vr(OUT, 2))
    ring[0] = 1
    put(1, E8)
    for j in range(2, 32):
        src = E8 if j == 2 else XX
        for m in range(2):
            e("v_pk_mul_f32 %s, %s, %s op_sel_hi:[1,0]" % (vr(TT[m], 2), vr(src[m], 2), vr(E8[m], 2)))
        for m in range(2):
            e("v_pk_fma_f32 %s, %s, %s, %s op_sel:[1,1,0] op_sel_hi:[0,1,1] neg_lo:[1,0,0]" % (vr(XX[m], 2), vr(src[m], 2), vr(E8[m], 2), vr(TT[m], 2)))
        put(j, XX)
        if j == OPT["xtrow"]:
            xt_flag("b")
    BF, AF, DD = 64, 128, 192
    stamp(12)
    for s in range(16):
        e("ds_read_b128 %s, v11 offset:%d" % (vr(BF + 4 * s, 4), s * 32))
    stamp(13)
    cexp(E1, 1, False)
    cexp(EG, 256, False)

    def mul2(dst, src, mu):
        for m in range(2):
            e("v_pk_mul_f32 %s, %s, %s op_sel_hi:[1,0]" % (vr(TT[m], 2), vr(src[m], 2), vr(mu[m], 2)))
        for m in range(2):
            e("v_pk_fma_f32 %s, %s, %s, %s op_sel:[1,1,0] op_sel_hi:[0,1,1] neg_lo:[1,0,0]" % (vr(dst[m], 2), vr(src[m], 2), vr(mu[m], 2), vr(TT[m], 2)))

    for m in range(2):
        unp(XX[m], PRM + 2, m)
        unp(XX[m] + 1, PRM + 3, m)
        unp(R2[m], PRM + 4, m)
        unp(R2[m] + 1, PRM + 5, m)
    for m in range(2):
        e("v_mul_f32 v%d, v9, v%d" % (XX[m], XX[m]))
        e("v_mul_f32 v%d, v9, v%d" % (XX[m] + 1, XX[m] + 1))
    mul2(WW, R2, XX)
    put(0, WW)
    mul2(XX, WW, E1); put(1, XX)
    mul2(R2, XX, E1); put(2, R2)
    mul2(XX, R2, E1); put(3, XX)
    mul2(R4, XX, E1); put(4, R4)
    mul2(XX, R4, E1); put(5, XX)
    mul2(R6, XX, E1); put(6, R6)
    mul2(XX, R6, E1); put(7, XX)
    for row in (8, 12, 9, 13, 10, 14, 11, 15):
        mul2(WW, WW, EG); put(row, WW)
    mul2(R2, R2, EG); put(16, R2)
    mul2(R4, R4, EG); put(17, R4)
    mul2(R6, R6, EG); put(18, R6)
    mul2(R4, R4, EG); put(20, R4)
    mul2(R4, R4, EG); put(19, R4)
    stamp(14)
    for s in range(16):
        e("ds_read_b128 %s, v11 offset:%d" % (vr(AF + 4 * s, 4), s * 32))
    e("s_mul_i32 s5, s3, 3072")
    e("s_add_u32 s5, s5, %d" % S_PX)
    e("v_add_u32 v12, s5, v%d" % vL16)
    e("s_xor_b32 s6, s3, 1")
    e("s_mul_i32 s6, s6, 3072")
    e("s_add_u32 s6, s6, %d" % S_PX)
    e("v_add_u32 v13, s6, v%d" % vL16)
    for s in range(16):
        e("s_waitcnt lgkmcnt(%d)" % (15 - s))
        mfma(DD, AF + 4 * s, BF + 4 * s, None if s == 0 else DD)
    stamp(15)
    e("s_lshr_b32 s5, s3, 1")
    e("s_mul_i32 s14, s5, %d" % KR1)
    e("v_sub_u32 v14, 223, v1")
    e("v_lshrrev_b32 v15, 1, v14")
    e("v_mul_u32_u24 v15, 48, v15")
    e("v_and_b32 v14, 1, v14")
    e("v_lshl_add_u32 v14, v14, 4, v15")
    e("v_add_u32 v14, s14, v14")
    e("v_mov_b32 v16, 0")
    e("v_mov_b32 v17, 0")
    e("v_mov_b32 v18, 0")
    e("v_mov_b32 v19, 0")
    e("v_add_u32 v15, s14, v%d" % vL16)
    e("s_mov_b32 s74, 0")
    e("s_mov_b32 s75, -1")
    e("s_mov_b32 s76, 0xaaaaaaaa")
    e("s_mov_b32 s77, 0xaaaaaaaa")
    for q in range(3):
        e("ds_write_b128 v12, %s offset:%d" % (vr(DD + 4 * q, 4), q * 1024))
    e("s_waitcnt lgkmcnt(0)")
    e("s_barrier")
    stamp(3)
    e("s_setprio %d" % OPT["cprio"])
    for q in range(3):
        e("ds_read_b128 %s, v13 offset:%d" % (vr(64 + 4 * q, 4), q * 1024))
    e("s_waitcnt lgkmcnt(0)")
    for k in range(6):
        e("v_pk_add_f32 %s, %s, %s" % (vr(DD + 2 * k, 2), vr(DD + 2 * k, 2), vr(64 + 2 * k, 2)))
    D = lambda r: DD + r

    def nxt(dst, r):
        if r < 7:
            e("v_mov_b32_dpp v%d, v%d wave_rol:1 row_mask:0xf bank_mask:0xf" % (dst, D(r + 1)))
        e("v_mov_b32_dpp v%d, v%d wave_shl:1 row_mask:0xf bank_mask:0xf" % (dst, D(r)))

    def pk(d, lo, hi):
        e("v_cvt_pk_bf16_f32 v%d, v%d, v%d" % (d, lo, hi))

    e("s_bitcmp1_b32 s3, 0")
    e("s_cbranch_scc1 L_s_expB")
    e("ds_write_b128 v15, v[16:19] offset:6144")
    e("v_mov_b32 v32, s73")
    e("v_cmp_eq_u32 vcc, 0, v1")
    e("v_cndmask_b32 v32, 0, v32, vcc")
    e("v_add_f32 v%d, v%d, v32" % (D(0), D(0)))
    e("v_and_b32 v33, 31, v1")
    e("v_sub_u32 v33, 255, v33")
    e("v_lshrrev_b32 v34, 1, v33")
    e("v_mul_u32_u24 v34, 48, v34")
    e("v_and_b32 v33, 1, v33")
    e("v_lshl_add_u32 v33, v33, 4, v34")
    e("v_add_u32 v33, s14, v33")
    e("v_add_u32 v34, 8, v33")
    e("v_cndmask_b32 v33, v34, v33, s[74:75]")
    pk(36, D(3), D(2))
    pk(37, D(1), D(0))
    e("ds_write_b64 v33, v[36:37]")
    nxt(40, 4)
    e("v_cndmask_b32 v41, v%d, v40, s[74:75]" % D(10))
    e("v_cndmask_b32 v42, v%d, v%d, s[74:75]" % (D(9), D(8)))
    e("v_cndmask_b32 v43, v%d, v%d, s[74:75]" % (D(8), D(4)))
    pk(44, 40, 41)
    pk(45, 42, 42)
    pk(46, 42, 43)
    pk(47, D(4), D(4))
    e("ds_write_b128 v14, v[44:47]")
    e("s_branch L_s_expJ")
    e("L_s_expB:")
    e("v_subrev_u32 v14, 3072, v14")
    nxt(40, 5)
    e("v_cndmask_b32 v41, v%d, v40, s[76:77]" % D(5))
    e("v_cndmask_b32 v42, v%d, v40, s[74:75]" % D(11))
    e("v_cndmask_b32 v41, v%d, v41, s[74:75]" % D(11))
    e("v_cndmask_b32 v43, v%d, v%d, s[74:75]" % (D(11), D(5)))
    pk(44, 40, 40)
    pk(45, 42, 41)
    pk(46, 43, D(5))
    pk(47, D(5), D(5))
    e("ds_write_b128 v14, v[44:47] offset:1536")
    for r in (6, 7):
        o = 48 if r == 6 else 56
        nxt(o, r)
        e("v_cndmask_b32 v%d, v%d, v%d, s[76:77]" % (o + 1, D(r), o))
        pk(o + 4, o, o)
        pk(o + 5, o, o + 1)
        pk(o + 6, D(r), D(r))
        pk(o + 7, D(r), D(r))
        if r == 6:
            e("ds_write_b128 v14, %s" % vr(o + 4, 4))
        else:
            e("v_subrev_u32 v14, 1536, v14")
            e("s_mov_b32 exec_hi, 0")
            e("ds_write_b128 v14, %s" % vr(o + 4, 4))
            e("s_mov_b32 exec_hi, -1")
    e("L_s_expJ:")
    for k in range(OPT["dummy"]):
        e("v_add_u32 v%d, 1, v%d" % (200 + (k & 7), 200 + (k & 7)))
    stamp(21)
    e("s_lshr_b32 s5, s%d, 5" % S_CP)
    e("s_lshl_b32 s5, s5, 13")
    e("s_add_u32 s5, s5, 0x%x" % FLAG_XT)
    e("v_lshlrev_b32 v13, 7, v1")
    e("v_add_u32 v13, s5, v13")
    e("v_lshrrev_b32 v10, 1, v1")
    e("v_and_b32 v11, 1, v1")
    e("v_mul_u32_u24 v12, 7168, v10")
    e("v_lshl_add_u32 v12, v11, 4, v12")
    e("s_mul_i32 s74, s3, %d" % (64 * 7168))
    e("s_lshl_b32 s5, s%d, 5" % S_CP)
    e("s_add_u32 s74, s74, s5")
    e("s_add_u32 s74, s74, 0x%x" % XT)
    e("s_add_u32 s75, s74, %d" % (32 * 7168))
    e("v_mul_u32_u24 v15, %d, v11" % (4 * XCS))
    e("v_lshl_add_u32 v15, v10, 4, v15")
    e("s_lshl_b32 s5, s3, 10")
    e("s_add_u32 s5, s5, %d" % XC0)
    e("v_add_u32 v15, s5, v15")
    e("s_cmp_lg_u32 s3, 0")
    e("s_cbranch_scc1 L_s_nohead")
    for k in range(4):
        e("v_mov_b32 v%d, 0" % (16 + k))
    e("v_bfe_u32 v22, v1, 2, 3")
    e("v_mul_u32_u24 v22, %d, v22" % XCS)
    e("v_and_b32 v23, 3, v1")
    e("v_lshl_add_u32 v22, v23, 4, v22")
    e("ds_write_b128 v22, v[16:19] offset:%d" % XC0)
    e("L_s_nohead:")
    poll("xt", 13, 14, sleep=2)
    stamp(19)
    e("s_setprio %d" % OPT["cprio"])
    e("buffer_load_dwordx4 v[16:19], v12, s[%d:%d], s74 offen sc1" % (SWS, SWS + 3))
    e("buffer_load_dwordx4 v[20:23], v12, s[%d:%d], s75 offen sc1" % (SWS, SWS + 3))
    e("v_and_b32 v13, 7, v1")
    e("v_lshlrev_b32 v13, 7, v13")
    e("buffer_load_dword v14, v13, s[%d:%d], s%d offen sc1" % (SWS, SWS + 3, S_WF))
    e("v_add_u32 v24, %d, v15" % (XCS + 60))
    e("v_add_u32 v25, %d, v15" % (3 * XCS + 56))
    e("v_add_u32 v26, %d, v15" % (2 * XCS + 56))
    for i in range(0 if OPT["xxc"] else 2):
        r = 16 + 4 * i
        o = 512 * i
        e("s_waitcnt vmcnt(%d)" % (2 - i))
        for k in range(3):
            e("v_alignbit_b32 v%d, v%d, v%d, 16" % (28 + k, r + k + 1, r + k))
        for a in (24, 25):
            e("ds_write2_b32 v%d, v%d, v%d offset0:%d offset1:%d" % (a, r, r + 1, o // 4, o // 4 + 1))
            e("ds_write2_b32 v%d, v%d, v%d offset0:%d offset1:%d" % (a, r + 2, r + 3, o // 4 + 2, o // 4 + 3))
        for a, b0 in ((15, 62), (26, 2)):
            e("ds_write_b16 v%d, v%d offset:%d" % (a, r, o + b0))
            e("ds_write2_b32 v%d, v28, v29 offset0:%d offset1:%d" % (a, (o + b0 + 2) // 4, (o + b0 + 2) // 4 + 1))
            e("ds_write_b32 v%d, v30 offset:%d" % (a, o + b0 + 10))
            e("ds_write_b16_d16_hi v%d, v%d offset:%d" % (a, r + 3, o + b0 + 14))
    vX, vK = 8, 9
    e("v_and_b32 v10, 3, v1")
    e("v_mul_u32_u24 v%d, %d, v10" % (vX, XCS))
    e("v_bfe_u32 v10, v1, 2, 2")
    e("v_lshl_add_u32 v%d, v10, 3, v%d" % (vX, vX))
    e("v_lshrrev_b32 v10, 4, v1")
    e("v_lshl_add_u32 v%d, v10, 4, v%d" % (vX, vX))
    e("v_and_b32 v11, 15, v1")
    e("v_sub_u32 v11, 15, v11")
    e("v_lshrrev_b32 v12, 5, v1")
    e("v_add_u32 v11, v11, v12")
    e("v_mul_u32_u24 v%d, 48, v11" % vK)
    e("v_and_b32 v10, 1, v10")
    e("v_lshl_add_u32 v%d, v10, 4, v%d" % (vK, vK))
    e("s_lshr_b32 s5, s3, 1")
    e("s_mul_i32 s5, s5, %d" % (4 * XCS))
    e("s_add_u32 s5, s5, %d" % (XC0 + 32))
    e("s_and_b32 s6, s3, 1")
    e("s_lshl_b32 s7, s6, 8")
    e("s_add_u32 s5, s5, s7")
    e("v_add_u32 v%d, s5, v%d" % (vX, vX))
    e("s_mul_i32 s7, s6, 384")
    e("s_add_u32 s7, s7, s14")
    e("v_add_u32 v%d, s7, v%d" % (vK, vK))
    Y0 = 16
    FA = lambda st, d: 48 + 64 * st + 4 * d
    FB = lambda st, q: 80 + 64 * st + 4 * q
    e("s_waitcnt vmcnt(0)")
    e("v_cmp_ne_u32 vcc, s4, v14")
    e("s_cmp_eq_u64 vcc, 0")
    e("s_cselect_b32 s87, 1, 0")
    e("s_cselect_b32 s%d, 32768, 0" % (SWT + 2))
    e("s_cmp_lg_u32 s3, s%d" % S_CB)
    e("s_cselect_b32 s87, 1, s87")
    e("s_cselect_b32 s%d, 0, s%d" % (SWT + 2, SWT + 2))
    e("s_waitcnt lgkmcnt(0)")
    e("s_barrier")
    stamp(4)

    def frag_reads(g):
        st = g & 1
        R = []
        for k in range(8):
            R.append("ds_read_b128 %s, v%d offset:%d" % (vr(FA(st, k), 4), vK, 96 * g + 768 * (7 - k)))
            R.append("ds_read_b64 %s, v%d offset:%d" % (vr(FB(st, k), 2), vX, 512 * k + 64 * g))
            R.append("ds_read_b64 %s, v%d offset:%d" % (vr(FB(st, k) + 2, 2), vX, 512 * k + 64 * g + 8))
        return R

    if not OPT["xconv"]:
        for r in frag_reads(0):
            e(r)
        e("s_setprio %d" % OPT["mprio"])
        for g in range(4):
            st = g & 1
            nxt_reads = frag_reads(g + 1) if g < 3 else []
            e("s_waitcnt lgkmcnt(0)")
            n = 0
            for q in range(8):
                for j in range(q, 8):
                    c = "0" if (g == 0 and q == 0) else vr(Y0 + 4 * j, 4)
                    e("v_mfma_f32_16x16x32_bf16 %s, %s, %s, %s" % (vr(Y0 + 4 * j, 4), vr(FA(st, j - q), 4), vr(FB(st, q), 4), c))
                    n += 1
                    if n <= len(nxt_reads):
                        e(nxt_reads[n - 1])
                    if n % 7 == OPT["wpos"]:
                        wld(12 + 5 * g + n // 7)
    e("s_setprio %d" % OPT["cprio"])
    stamp(5)
    e("s_lshl_b32 s5, s3, 13")
    e("s_add_u32 s5, s5, %d" % L_CPX)
    e("v_add_u32 v10, s5, v%d" % vL16)
    e("s_lshl_b32 s7, s3, 11")
    e("s_add_u32 s7, s7, %d" % L_CPX)
    e("v_add_u32 v11, s7, v%d" % vL16)
    e("s_mul_i32 s5, s3, %d" % (16 * 224))
    e("s_add_u32 s5, s5, s%d" % S_CP)
    e("s_lshl_b32 s5, s5, 7")
    e("s_add_u32 s13, s5, 0x%x" % B2)
    e("v_lshrrev_b32 v12, 5, v1")
    e("v_mul_u32_u24 v12, %d, v12" % (4 * 224 * 128))
    e("v_and_b32 v13, 31, v1")
    e("v_lshl_add_u32 v12, v13, 2, v12")
    for k in range(8):
        e("ds_write_b128 v10, %s offset:%d" % (vr(Y0 + 4 * k, 4), k * 1024))
    for k in range(12):
        wld(k)
    e("s_waitcnt lgkmcnt(0)")
    e("s_barrier")
    for w in range(4):
        for q in range(2):
            e("ds_read_b128 %s, v11 offset:%d" % (vr(48 + 8 * w + 4 * q, 4), w * 8192 + q * 1024))
    e("s_lshl_b32 s7, s%d, 2" % S_CP)
    e("s_add_u32 s7, s7, s3")
    e("s_lshl_b32 s7, s7, 7")
    e("s_add_u32 s7, s7, 0x%x" % FLAG_B)
    e("s_waitcnt lgkmcnt(0)")
    for k in range(4):
        e("v_pk_add_f32 %s, %s, %s" % (vr(48 + 2 * k, 2), vr(48 + 2 * k, 2), vr(56 + 2 * k, 2)))
        e("v_pk_add_f32 %s, %s, %s" % (vr(64 + 2 * k, 2), vr(64 + 2 * k, 2), vr(72 + 2 * k, 2)))
    for k in range(8):
        e("v_cvt_pk_bf16_f32 v%d, v%d, v%d" % (80 + k, 48 + k, 64 + k))
    for k in range(4):
        e("v_permlane16_swap_b32 v%d, v%d" % (80 + 2 * k, 81 + 2 * k))
    order = sorted(range(8), key=lambda k: 8 * (k >> 2) + 2 * (k & 1) + ((k >> 1) & 1))
    prev = 0
    for k in order:
        tt = 8 * (k >> 2) + 2 * (k & 1) + ((k >> 1) & 1)
        if tt != prev:
            e("s_add_u32 s13, s13, %d" % ((tt - prev) * 28672))
            prev = tt
        e("buffer_store_dword v%d, v12, s[%d:%d], s13 offen sc1" % (80 + k, SWS, SWS + 3))
    e("s_waitcnt vmcnt(0)")
    flag_store(7, 13)
    stamp(6)
    e("s_cmp_lg_u32 s87, 0")
    e("s_cbranch_scc1 L_s_wo")
    e("L_s_wfb:")
    e("v_and_b32 v13, 7, v1")
    e("v_lshlrev_b32 v13, 7, v13")
    e("v_add_u32 v13, s%d, v13" % S_WF)
    poll("w", 13, 14, sleep=4)
    e("s_mov_b32 s%d, 32768" % (SWT + 2))
    for k in range(32):
        wld(k)
    e("L_s_wo:")
    srd(SOUT, P_OUT, 2048 * 896)
    vFA, vOA, vOW = 11, 12, 20
    e("s_lshl_b32 s5, s%d, 4" % S_TT)
    e("s_lshl_b32 s6, s3, 2")
    e("s_add_u32 s5, s5, s6")
    e("s_lshl_b32 s%d, s5, 11" % S_OB)
    e("s_add_u32 s%d, s%d, 0x%x" % (S_OB, S_OB, OW))
    e("s_add_u32 s%d, s%d, 4096" % (S_OB + 1, S_OB))
    e("s_lshl_b32 s5, s5, 7")
    e("s_add_u32 s5, s5, 0x%x" % FLAG_O)
    e("v_and_b32 v13, 3, v1")
    e("v_lshlrev_b32 v16, 7, v13")
    e("v_bfe_u32 v13, v1, 2, 1")
    e("v_mul_u32_u24 v13, 0x%x, v13" % (FLAG_O2 - FLAG_O))
    e("v_add3_u32 v%d, s5, v16, v13" % vFA)
    e("s_lshl_b32 s5, s3, 13")
    e("v_add_u32 v%d, s5, v%d" % (vOW, vL16))
    e("v_and_b32 v14, 31, v1")
    e("v_lshrrev_b32 v15, 5, v1")
    e("v_mul_u32_u24 v%d, 896, v14" % vOA)
    e("v_lshl_add_u32 v%d, v15, 4, v%d" % (vOA, vOA))
    e("s_mul_i32 s74, s%d, 28672" % S_TT)
    e("s_lshl_b32 s5, s%d, 8" % S_CG)
    e("s_add_u32 s74, s74, s5")
    e("s_lshl_b32 s5, s%d, 6" % S_CB)
    e("s_add_u32 s74, s74, s5")
    e("s_lshr_b32 s%d, s4, 16" % S_TAG)
    e("s_and_b32 s%d, s%d, 0xbfff" % (S_TAG, S_TAG))
    e("s_lshl_b32 s87, s%d, 6" % S_CG)
    e("s_lshl_b32 s5, s%d, 4" % S_CB)
    e("s_add_u32 s87, s87, s5")
    e("s_lshr_b32 s5, s%d, 4" % S_TT)
    e("s_lshl_b32 s6, s87, 2")
    e("s_add_u32 s5, s5, s6")
    e("s_lshl_b32 s5, s5, 7")
    e("s_add_u32 s5, s5, 0x%x" % FLAG_B)
    e("v_and_b32 v13, 15, v1")
    e("v_lshlrev_b32 v13, 9, v13")
    e("v_add_u32 v21, s5, v13")
    e("v_lshlrev_b32 v16, 8, v15")
    e("v_lshl_add_u32 v16, v14, 2, v16")
    e("v_lshlrev_b32 v17, 3, v14")
    e("s_mul_i32 s5, s%d, 224" % S_TT)
    e("s_add_u32 s87, s5, s87")
    e("s_lshl_b32 s87, s87, 7")
    e("s_add_u32 s87, s87, 0x%x" % B2)
    e("s_lshl_b32 s15, s%d, 8" % S_TT)
    e("s_add_u32 s15, s15, 0x%x" % G1)
    stamp(16)
    poll("b", 21, 14, sleep=OPT["bsleep"])
    BB, OL, DO, OF = 24, 32, 64, 80
    for q in range(4):
        for p in range(2):
            e("buffer_load_dword v%d, v16, s[%d:%d], s87 offen offset:%d sc1" % (BB + 2 * q + p, SWS, SWS + 3, (4 * q + p) * 128))
    e("buffer_load_dwordx2 v[18:19], v17, s[%d:%d], s15 offen sc1" % (SWS, SWS + 3))
    e("s_mov_b32 s5, 0")
    e("s_branch L_s_g1w")
    e("L_s_g1:")
    e("buffer_load_dwordx2 v[18:19], v17, s[%d:%d], s15 offen sc1" % (SWS, SWS + 3))
    e("L_s_g1w:")
    e("s_waitcnt vmcnt(0)")
    e("v_cmp_ne_u32 vcc, s4, v19")
    e("s_cmp_eq_u64 vcc, 0")
    e("s_cbranch_scc1 L_s_g1ok")
    e("s_add_u32 s5, s5, 1")
    e("s_cmp_lt_u32 s5, %d" % OPT["spin"])
    e("s_cbranch_scc1 L_s_g1")
    e("L_s_g1ok:")
    for k in range(8):
        e("v_lshlrev_b32 v%d, 16, v%d" % (DO + 2 * k, BB + k))
        e("v_and_b32 v%d, 0xffff0000, v%d" % (DO + 2 * k + 1, BB + k))
    for k in range(8):
        e("v_pk_mul_f32 %s, %s, v[18:19] op_sel_hi:[1,0]" % (vr(DO + 2 * k, 2), vr(DO + 2 * k, 2)))
    e("v_not_b32 v14, s4")
    stamp(8)
    e("s_setprio %d" % OPT["oprio"])
    e("s_mov_b32 s%d, 0" % S_H)
    e("s_mov_b32 s%d, 0" % S_V)
    e("s_mov_b32 s%d, 0" % S_F)
    e("s_mov_b32 s%d, 0" % S_U)
    e("s_mov_b32 s15, 0")
    if OPT["timing"] and OPT["pollcnt"]:
        e("s_mov_b32 s90, 0")
        e("s_mov_b32 s91, -1")
        e("s_mov_b32 s92, -1")
    e("L_or:")
    if OPT["dthr"] < 5:
        e("s_bcnt1_i32_b32 s5, s%d" % (S_H if OPT["dh"] else S_V))
        e("s_cmp_ge_u32 s5, %d" % OPT["dthr"])
        e("s_cselect_b32 s5, 15, s%d" % S_H)
        e("s_andn2_b32 s%d, s5, s%d" % (S_P, S_V))
    else:
        e("s_andn2_b32 s%d, s%d, s%d" % (S_P, S_H, S_V))
    e("s_cbranch_scc0 L_ol3")
    for t in range(4):
        e("s_bitcmp1_b32 s%d, %d" % (S_P, t))
        e("s_cbranch_scc0 L_ol%d" % t)
        e("s_bitcmp1_b32 s%d, %d" % (S_U, t))
        e("s_cselect_b32 s5, 0x%x, 0" % (OW2 - OW))
        e("s_add_u32 s5, s5, s%d" % (S_OB + (t >> 1)))
        for c in range(2):
            e("buffer_load_dwordx4 %s, v%d, s[%d:%d], s5 offen offset:%d%s" % (vr(OL + 8 * t + 4 * c, 4), vL16, SWS, SWS + 3, (t & 1) * 2048 + c * 1024, ["", " sc1", " sc0", " nt"][OPT["tscope"]]))
        e("L_ol%d:" % t)
    e("s_and_b32 s5, s15, 7")
    e("s_cmp_eq_u32 s5, 7")
    e("s_cselect_b32 exec_lo, 0xff, 15")
    e("s_mov_b32 exec_hi, 0")
    e("buffer_load_dword v14, v%d, s[%d:%d], 0 offen sc1" % (vFA, SWS, SWS + 3))
    e("s_mov_b64 exec, -1")
    e("s_cmp_eq_u32 s%d, 0" % S_P)
    e("s_waitcnt vmcnt(0)")
    e("v_cmp_eq_u32 vcc, s4, v14")
    e("s_mov_b32 s%d, vcc_lo" % S_H)
    e("s_cbranch_scc1 L_oc3")
    for t in range(4):
        e("s_bitcmp1_b32 s%d, %d" % (S_P, t))
        e("s_cbranch_scc0 L_oc%d" % t)
        e("v_cmp_ne_u32_sdwa vcc, v%d, s%d src0_sel:WORD_1 src1_sel:DWORD" % (OL + 8 * t + 3, S_TAG))
        e("v_cmp_ne_u32_sdwa s[6:7], v%d, s%d src0_sel:WORD_1 src1_sel:DWORD" % (OL + 8 * t + 7, S_TAG))
        e("s_or_b64 vcc, vcc, s[6:7]")
        e("s_cbranch_scc1 L_oc%d" % t)
        e("ds_write_b128 v%d, %s offset:%d" % (vOW, vr(OL + 8 * t, 4), 2048 * t))
        e("ds_write_b128 v%d, %s offset:%d" % (vOW, vr(OL + 8 * t + 4, 4), 2048 * t + 1024))
        e("s_bitset1_b32 s%d, %d" % (S_V, t))
        e("L_oc%d:" % t)
    e("s_andn2_b32 s5, s%d, s%d" % (S_P, S_V))
    e("s_or_b32 s%d, s%d, s5" % (S_F, S_F))
    e("s_lshr_b32 s6, s%d, 4" % S_H)
    e("s_orn2_b32 s5, s%d, s%d" % (S_F, S_H))
    e("s_and_b32 s%d, s6, s5" % S_U)
    e("s_or_b32 s%d, s%d, s6" % (S_H, S_H))
    e("s_and_b32 s%d, s%d, 15" % (S_H, S_H))
    if OPT["timing"] and OPT["pollcnt"]:
        e("s_andn2_b32 s5, s%d, s%d" % (S_P, S_V))
        e("s_bcnt1_i32_b32 s5, s5")
        e("s_add_u32 s90, s90, s5")
        e("s_memrealtime s[96:97]")
        e("s_waitcnt lgkmcnt(0)")
        e("s_cmp_eq_u32 s%d, 15" % S_H)
        e("s_cselect_b32 s5, s96, -1")
        e("s_min_u32 s91, s91, s5")
        e("s_cmp_lg_u32 s%d, 0" % S_H)
        e("s_cselect_b32 s5, s96, -1")
        e("s_min_u32 s92, s92, s5")
        e("v_writelane_b32 v0, s90, 27")
        e("v_writelane_b32 v0, s91, 25")
        e("v_writelane_b32 v0, s92, 28")
        e("v_writelane_b32 v0, s15, 24")
        e("s_min_u32 s5, s15, 15")
        e("s_lshl_b32 s5, s5, 1")
        e("s_add_u32 m0, s5, 32")
        e("s_lshl_b32 s5, s%d, 8" % S_V)
        e("s_or_b32 s5, s5, s%d" % S_P)
        e("s_lshl_b32 s6, s%d, 16" % S_H)
        e("s_or_b32 s5, s5, s6")
        e("v_writelane_b32 v0, s96, m0")
        e("s_add_u32 m0, m0, 1")
        e("s_nop 3")
        e("v_writelane_b32 v0, s5, m0")
    e("s_cmp_eq_u32 s%d, 15" % S_V)
    e("s_cbranch_scc1 L_od")
    e("s_andn2_b32 s5, s%d, s%d" % (S_H, S_V))
    e("s_cbranch_scc1 L_ob")
    if OPT["dthr"] < 5 and not OPT["dsleep"]:
        e("s_cmp_lg_u32 s%d, 0" % S_V)
        e("s_cbranch_scc1 L_ob")
    if OPT["osleep"]:
        e("s_sleep %d" % OPT["osleep"])
    e("L_ob:")
    e("s_add_u32 s15, s15, 1")
    e("s_cmp_lt_u32 s15, %d" % OPT["spin"])
    e("s_cbranch_scc1 L_or")
    e("L_od:")
    e("s_setprio 3")
    e("s_waitcnt lgkmcnt(0)")
    stamp(9)
    e("s_barrier")
    stamp(7)
    e("s_cmp_lg_u32 s3, s%d" % S_CB)
    e("s_cbranch_scc1 L_s_fin")
    for k in range(7):
        e("ds_read_b128 %s, v%d offset:%d" % (vr(OF + 4 * k, 4), vL16, k * 1024))
    for k in range(32):
        if k + 7 < 32:
            e("ds_read_b128 %s, v%d offset:%d" % (vr(OF + 4 * ((k + 7) & 7), 4), vL16, (k + 7) * 1024))
        e("s_waitcnt lgkmcnt(%d)" % min(7, 31 - k))
        mfma(DO, WO + 4 * k, OF + 4 * (k & 7), DO)
    for k in range(8):
        e("v_cvt_pk_bf16_f32 v%d, v%d, v%d" % (48 + k, DO + 2 * k, DO + 2 * k + 1))
    for (x_, y_) in ((48, 50), (49, 51), (52, 54), (53, 55)):
        e("v_permlane32_swap_b32 v%d, v%d" % (x_, y_))
    e("buffer_store_dwordx4 v[48:51], v%d, s[%d:%d], s74 offen" % (vOA, SOUT, SOUT + 3))
    e("buffer_store_dwordx4 v[52:55], v%d, s[%d:%d], s74 offen offset:32" % (vOA, SOUT, SOUT + 3))
    e("L_s_fin:")
    if OPT["timing"]:
        e("s_waitcnt vmcnt(0)")
    stamp(10)
    dbg_stamp(248, 256, 8, False)
    stamp_flush()
    e("L_end:")
    e("s_endpgm")


prologue()
role_a()
role_s()

lines, nops = asmcheck.fix_hazards(L, verbose=bool(OPT.get("v", 0)))
errs = asmcheck.check_waitcnt(lines)
for er in errs:
    print("WAITCNT?", er, file=sys.stderr)
print("instructions: %d, wait states inserted: %d" % (len(lines), nops), file=sys.stderr)

ref = open("cdna_kernels/%s.s.ref" % NAME).read()
head = ref[: ref.index("; Override launch")]
text = head + """; Override launch geometry by editing the next line (default: block=256,
; grid=ceil(out_elems/256), lds=0). Harness parses it; keep it on one line.
; @launch grid=(512,1,1) block=(256,1,1) lds=81920
.amdgcn_target "amdgcn-amd-amdhsa--gfx950"
.text
.globl %s_kernel
.p2align 8
.type %s_kernel,@function
%s_kernel:
""" % (NAME, NAME, NAME) + "\n".join(lines) + """
.section .rodata,"a"
.p2align 6
.amdhsa_kernel %s_kernel
  .amdhsa_next_free_vgpr 256
  .amdhsa_next_free_sgpr 102
  .amdhsa_accum_offset 256
  .amdhsa_group_segment_fixed_size 0
  .amdhsa_kernarg_size 144
  .amdhsa_user_sgpr_count 2
  .amdhsa_user_sgpr_kernarg_segment_ptr 1
  .amdhsa_system_sgpr_workgroup_id_x 1
.end_amdhsa_kernel
""" % NAME
open(sys.argv[1], "w").write(text)
```

```python
import sys, struct, math, os
sys.path.insert(0, os.path.dirname(os.path.abspath(__file__)))
import asmcheck

NAME = "gated_mix__grouped_kv_mqa__ssm_conv_s4__prompt"
OPT = dict(timing=0, force_fb=0, spin=400000, dbgts=0, nst=2, cprio=2, aprio=1, kvsleep=6, splitA=6, kprio=2, a1prio=3, xconv=0, xwo=0, xxc=0, xkgen=0, xpre=2, touch=0, a0prio=0, wopf=0, wothr=3, obar=1, mprio=0, pollcnt=0, xtrow=12, nslot=8, osleep=2, hintpos=4, oprio=0, otouch=0, nonear=0, early=0, eb=5, pmask=1, kvmask=0x552b552b, dummy=0, split16=0, agg=1, agsleep=1, xtouch=0, ptouch=0, tscope=1, nofar=2, wpos=4, withr=0, dthr=2, dh=1, bsleep=12, dsleep=1, grp=0, gperm=0x3210, prog=0, gsleep=0, gone=0, gp0=0, itst=0, kloop=1, xtit=2, knprio=2, t2=1, agprio=1, apad=1, spad=-1, cpad=-1, sal=6, sfirst=1, aal=0, cpf=0)
for a in sys.argv[2:]:
    k, v = a.split("=")
    OPT[k] = int(v, 0)

NONCE_OFF = 12
FLAG_KV = 0x1000 + 12
FLAG_O = 0x10000 + 12
FLAG_B = 0x30000 + 12
ALIVE = 0x50000 + 12
G1 = 0x60000
FLAG_XT = 0x70000 + 12
XT = 0x600000
KV = 0x100000
OW = 0x200000
B2 = 0x400000
FLAG_O2 = 0x80000 + 12
OW2 = 0x900000
FLAG_W = 0xB0000 + 12
WT = 0xC00000
FLAG_AG = 0xA0000 + 12
FLAG_AG2 = 0xA8000 + 12
TSB = 0x800000
WS_BYTES = 0x1000000
NONCE_ADD = 0x9E3779B9

L = []


def e(s):
    for x in s.split("\n"):
        x = x.strip()
        if x:
            L.append(x if x.endswith(":") else "    " + x)


def f32(x):
    return struct.unpack("<I", struct.pack("<f", x))[0]


def vr(a, n=1):
    return "v%d" % a if n == 1 else "v[%d:%d]" % (a, a + n - 1)


def sr(a, n=1):
    return "s%d" % a if n == 1 else "s[%d:%d]" % (a, a + n - 1)


def srd(d, base, nbytes, add=None):
    if add is None:
        e("s_mov_b32 s%d, s%d" % (d, base))
        e("s_mov_b32 s%d, s%d" % (d + 1, base + 1))
    else:
        e("s_add_u32 s%d, s%d, %s" % (d, base, add))
        e("s_addc_u32 s%d, s%d, 0" % (d + 1, base + 1))
    e("s_mov_b32 s%d, 0x%x" % (d + 2, nbytes))
    e("s_mov_b32 s%d, 0x20000" % (d + 3))


def mfma(d, a, b, c):
    e("v_mfma_f32_32x32x16_bf16 %s, %s, %s, %s" % (vr(d, 16), vr(a, 4), vr(b, 4), "0" if c is None else vr(c, 16)))


P_X, P_WQ, P_WK, P_WV, P_WO = 16, 18, 20, 22, 24
P_ARE, P_AIM, P_BRE, P_BIM, P_CRE, P_CIM, P_LDT, P_DSK, P_GW, P_OUT, P_WS = 28, 30, 32, 34, 36, 38, 40, 42, 44, 46, 48
SX, SWS = 52, 56
S_WAVE, S_NONCE = 3, 4
V_LANE = 1
LOG2E = 1.4426950408889634

stamp_n = [0]


def stamp(idx):
    if OPT["timing"]:
        e("s_memrealtime s[96:97]")
        e("s_waitcnt lgkmcnt(0)")
        e("v_writelane_b32 v0, s96, %d" % idx)


def stampd(reg):
    if OPT["timing"]:
        e("s_memrealtime s[%d:%d]" % (reg, reg + 1))


def stampw(idx, reg):
    if OPT["timing"]:
        e("v_writelane_b32 v0, s%d, %d" % (reg, idx))


def cstamp(idx):
    if OPT["timing"]:
        e("s_memtime s[96:97]")
        e("s_waitcnt lgkmcnt(0)")
        e("v_writelane_b32 v0, s96, %d" % idx)


def dbg_stamp(lo, hi, slot0, start):
    if not OPT["dbgts"]:
        return
    tag = "%d" % slot0
    e("s_sub_u32 s96, s2, %d" % lo)
    e("s_cmp_ge_u32 s96, %d" % (hi - lo))
    e("s_cbranch_scc1 L_dbg%s" % tag)
    e("s_cmp_lg_u32 s3, 0")
    e("s_cbranch_scc1 L_dbg%s" % tag)
    if not start:
        e("s_waitcnt vmcnt(0)")
        e("s_memrealtime s[94:95]")
        e("s_waitcnt lgkmcnt(0)")
    e("s_mov_b32 s72, s50")
    e("s_mov_b32 s73, s51")
    e("s_mov_b32 s74, 256")
    e("s_mov_b32 s75, 0x20000")
    e("s_add_u32 s96, s96, %d" % slot0)
    e("s_lshl_b32 s96, s96, 2")
    e("v_mov_b32 v2, s94")
    e("s_mov_b32 exec_lo, 1")
    e("s_mov_b32 exec_hi, 0")
    e("buffer_store_dword v2, off, s[72:75], s96")
    e("s_mov_b64 exec, -1")
    e("L_dbg%s:" % tag)


def stamp_flush():
    if OPT["timing"]:
        e("s_lshl_b32 s96, s2, 2")
        e("s_add_u32 s96, s96, s3")
        e("s_lshl_b32 s96, s96, 8")
        e("s_add_u32 s96, s96, 0x%x" % TSB)
        e("v_lshlrev_b32 v3, 2, v%d" % V_LANE)
        e("buffer_store_dword v0, v3, s[%d:%d], s96 offen" % (SWS, SWS + 3))


def poll(tag, vaddr, vtmp, sleep=0, n=1, step=0, cnt=None):
    if OPT["timing"] and cnt is not None:
        e("buffer_load_dword v%d, v%d, s[%d:%d], 0 offen sc1" % (vtmp, vaddr, SWS, SWS + 3))
        e("s_waitcnt vmcnt(0)")
        stamp(cnt + 1)
    e("s_mov_b32 s5, 0")
    e("L_poll_%s:" % tag)
    for k in range(n):
        if k == 0:
            e("buffer_load_dword v%d, v%d, s[%d:%d], 0 offen sc1" % (vtmp, vaddr, SWS, SWS + 3))
        else:
            e("s_mov_b32 s6, 0x%x" % (k * step))
            e("buffer_load_dword v%d, v%d, s[%d:%d], s6 offen sc1" % (vtmp + k, vaddr, SWS, SWS + 3))
    e("s_waitcnt vmcnt(0)")
    e("v_cmp_ne_u32 vcc, s%d, v%d" % (S_NONCE, vtmp))
    for k in range(1, n):
        e("v_cmp_ne_u32 s[6:7], s%d, v%d" % (S_NONCE, vtmp + k))
        e("s_or_b64 vcc, vcc, s[6:7]")
    e("s_cmp_eq_u64 vcc, 0")
    e("s_cbranch_scc1 L_pollok_%s" % tag)
    if OPT["pmask"] and n == 1:
        e("s_mov_b64 exec, vcc")
    if sleep:
        e("s_sleep %d" % sleep)
    e("s_add_u32 s5, s5, 1")
    e("s_cmp_lt_u32 s5, %d" % OPT["spin"])
    e("s_cbranch_scc1 L_poll_%s" % tag)
    e("L_pollok_%s:" % tag)
    if OPT["pmask"] and n == 1:
        e("s_mov_b64 exec, -1")
    if OPT["timing"] and cnt is not None:
        e("v_writelane_b32 v0, s5, %d" % cnt)


def flag_store(soff_reg, vtmp, scope=" sc1"):
    e("v_mov_b32 v%d, s%d" % (vtmp, S_NONCE))
    e("s_mov_b32 exec_lo, 1")
    e("s_mov_b32 exec_hi, 0")
    e("buffer_store_dword v%d, off, s[%d:%d], s%d%s" % (vtmp, SWS, SWS + 3, soff_reg, scope))
    e("s_mov_b64 exec, -1")


def x_swizzle_addrs(vg, vr0, vr1, t0, t1):
    e("v_lshrrev_b32 v%d, 2, v1" % t0)
    e("v_mul_u32_u24 v%d, 896, v%d" % (vg, t0))
    e("v_lshrrev_b32 v%d, 4, v1" % t0)
    e("v_xor_b32 v%d, v%d, v1" % (t0, t0))
    e("v_and_b32 v%d, 3, v%d" % (t0, t0))
    e("v_lshl_add_u32 v%d, v%d, 4, v%d" % (vg, t0, vg))
    e("v_and_b32 v%d, 31, v1" % t0)
    e("v_lshlrev_b32 v%d, 6, v%d" % (vr0, t0))
    e("v_lshrrev_b32 v%d, 2, v1" % t0)
    e("v_lshrrev_b32 v%d, 5, v1" % t1)
    e("v_xor_b32 v%d, v%d, v%d" % (t0, t0, t1))
    e("v_and_b32 v%d, 3, v%d" % (t0, t0))
    e("v_lshl_add_u32 v%d, v%d, 4, v%d" % (vr0, t0, vr0))
    e("v_xor_b32 v%d, 32, v%d" % (vr1, vr0))


def tr_addr(vd, hmul, stride, t0, t1):
    e("v_lshrrev_b32 v%d, 5, v1" % t0)
    e("v_mul_u32_u24 v%d, %d, v%d" % (t0, hmul, t0))
    e("v_bfe_u32 v%d, v1, 2, 2" % t1)
    e("v_add_u32 v%d, v%d, v%d" % (t0, t0, t1))
    e("v_mul_u32_u24 v%d, %d, v%d" % (vd, stride, t0))
    e("v_and_b32 v%d, 16, v1" % t0)
    e("v_lshl_add_u32 v%d, v%d, 1, v%d" % (vd, t0, vd))
    e("v_and_b32 v%d, 3, v1" % t0)
    e("v_lshl_add_u32 v%d, v%d, 3, v%d" % (vd, t0, vd))


def prologue():
    e("s_cmp_ge_u32 s2, 512")
    e("s_cbranch_scc1 L_end")
    if OPT["timing"]:
        e("s_memrealtime s[96:97]")
    if OPT["dbgts"]:
        e("s_memrealtime s[94:95]")
        e("s_load_dwordx2 s[50:51], s[0:1], 128")
    e("s_load_dwordx16 s[16:31], s[0:1], 0")
    e("s_load_dwordx16 s[32:47], s[0:1], 64")
    e("s_load_dwordx2 s[48:49], s[0:1], 136")
    e("v_and_b32 v1, 63, v0")
    e("v_lshrrev_b32 v2, 6, v0")
    e("v_readfirstlane_b32 s3, v2")
    if OPT["cpf"]:
        e("s_cmp_ge_u32 s2, %d" % OPT["cpf"])
        e("s_cbranch_scc1 L_nopf")
        e("s_getpc_b64 s[6:7]")
        e("L_pc:")
        e("v_lshlrev_b32 v250, 7, v0")
        e("v_min_u32 v250, L_last-L_pc, v250")
        e("v_mov_b32 v251, s7")
        e("v_add_co_u32 v250, vcc, s6, v250")
        e("v_addc_co_u32 v251, vcc, 0, v251, vcc")
        e("global_load_dword v255, v[250:251], off")
        e("L_nopf:")
    if OPT["sfirst"]:
        e("s_cmp_ge_u32 s2, 256")
        e("s_cbranch_scc1 L_roleA")
    else:
        e("s_cmp_lt_u32 s2, 256")
        e("s_cbranch_scc1 L_roleS")


A_IMG, A_XS, A_QX, A_INB = 0, 30720, 73728, 0
QF, OA, SS, PP, KVR = 64, 96, 160, 16, 192
V_G = 15


def role_a():
    S_HEAD, S_TT, S_X0, S_X1 = 8, 9, 10, 11
    SWQ, SG, SKV = 60, 64, 68
    XL = 128
    WF, DQ = 16, 96
    OQ, OO = QF + 24, OA + 48
    vXg, vXr0, vXr1, vXw, vWg, vWr, vGa, vGl = 2, 3, 4, 5, 6, 7, 8, 9
    vE, vG0, vG1 = 10, 11, 12
    e("s_and_b32 s5, s2, 7")
    e("s_bfe_u32 s6, s2, 0x50003")
    e("s_lshr_b32 s7, s6, 4")
    e("s_lshl_b32 s5, s5, 1")
    e("s_add_u32 s5, s5, s7")
    e("s_and_b32 s%d, s6, 15" % S_HEAD)
    e("s_lshl_b32 s%d, s5, 2" % S_TT)
    e("s_add_u32 s%d, s%d, s3" % (S_TT, S_TT))
    e("s_mul_i32 s%d, s%d, 28672" % (S_X0, S_TT))
    e("s_add_u32 s%d, s%d, 14336" % (S_X1, S_X0))
    e("s_setprio %d" % OPT["a0prio"])
    e("v_bfe_u32 v13, v1, 2, 3")
    e("v_mul_u32_u24 v%d, 3584, v13" % vXg)
    e("v_and_b32 v14, 3, v1")
    e("v_lshl_add_u32 v%d, v14, 4, v%d" % (vXg, vXg))
    e("v_lshrrev_b32 v13, 5, v1")
    e("v_lshl_add_u32 v%d, v13, 6, v%d" % (vXg, vXg))
    e("v_lshrrev_b32 v13, 2, v1")
    e("v_mul_u32_u24 v%d, 896, v13" % vWg)
    e("v_lshl_add_u32 v%d, v14, 4, v%d" % (vWg, vWg))
    e("v_lshlrev_b32 v%d, 1, v1" % vGa)
    e("s_mul_i32 s12, s3, %d" % (112 * 896))
    e("s_mul_i32 s13, s%d, 56" % S_HEAD)
    e("s_add_u32 s12, s12, s13")
    e("s_mul_i32 s13, s3, %d" % (112 * 64))
    e("s_mul_i32 s14, s3, 224")
    e("s_mov_b32 m0, s13")
    e("s_waitcnt lgkmcnt(0)")
    if OPT["timing"]:
        e("v_writelane_b32 v0, s96, 0")
    stamp(20)
    cstamp(29)
    e("s_load_dword s4, s[%d:%d], %d" % (P_WS, P_WS + 1, NONCE_OFF))
    srd(SX, P_X, 2048 * 896)
    if OPT["xtouch"]:
        e("v_lshlrev_b32 v13, 12, v1")
        e("s_mov_b64 exec, 0x%x" % ((1 << OPT["xtouch"]) - 1))
        e("buffer_load_dword v14, v13, s[%d:%d], s%d offen" % (SX, SX + 3, S_X0))
        e("s_mov_b64 exec, -1")
    srd(SWQ, P_WQ, 448 * 896)
    for m in range(7):
        e("buffer_load_dwordx4 v%d, s[%d:%d], s12 offen lds" % (vWg, SWQ, SWQ + 3))
        if m < 6:
            e("s_add_u32 m0, m0, 1024")
            e("s_add_u32 s12, s12, 14336")
    srd(SG, P_GW, 896)
    e("buffer_load_ushort v%d, v%d, s[%d:%d], s14 offen" % (vG0, vGa, SG, SG + 3))
    e("buffer_load_ushort v%d, v%d, s[%d:%d], s14 offen offset:128" % (vG1, vGa, SG, SG + 3))
    PRE = OPT["xpre"]
    assert PRE <= 2

    def xload(b):
        for g in range(4):
            e("buffer_load_dwordx4 %s, v%d, s[%d:%d], s%d offen offset:%d" % (vr(XL + 16 * (b & 3) + 4 * g, 4), vXg, SX, SX + 3, S_X0, 896 * g + 128 * b))

    NT_A = 1 if OPT["touch"] else 0

    def touch_a():
        if OPT["touch"]:
            e("buffer_load_dword v14, v4, s[%d:%d], 0 offen sc1" % (SWS, SWS + 3))

    if OPT["obar"]:
        e("s_barrier")
    for b in range(PRE):
        xload(b)
    stampd(90)
    e("s_setprio %d" % OPT["a1prio"])
    srd(SWS, P_WS, WS_BYTES)
    if OPT["touch"]:
        e("s_lshl_b32 s5, s3, 16")
        e("s_add_u32 s5, s5, 0x%x" % KV)
        e("v_lshlrev_b32 v4, 12, v1")
        e("v_and_b32 v4, 0xffff, v4")
        e("v_add_u32 v4, s5, v4")
        e("s_lshl_b32 s5, s%d, 4" % S_TT)
        e("s_add_u32 s5, s5, s%d" % S_HEAD)
        e("s_lshl_b32 s6, s5, 11")
        e("s_add_u32 s6, s6, 0x%x" % OW)
        e("v_writelane_b32 v4, s6, 16")
        e("s_lshl_b32 s6, s5, 7")
        e("s_add_u32 s6, s6, 0x%x" % FLAG_O)
        e("v_writelane_b32 v4, s6, 17")
        e("s_lshl_b32 s5, s3, 13")
        e("s_add_u32 s5, s5, 0x%x" % FLAG_KV)
        e("v_writelane_b32 v4, s5, 18")
        e("s_add_u32 s5, s5, 4096")
        e("v_writelane_b32 v4, s5, 19")
        if PRE == 7:
            touch_a()
    tr_addr(vWr, 32, 64, 13, 14)
    if OPT["agg"]:
        e("s_and_b32 s5, s2, 7")
        e("s_lshl_b32 s5, s5, 2")
        if not OPT["grp"]:
            e("s_add_u32 s5, s5, s3")
        e("s_lshl_b32 s5, s5, 7")
        e("s_add_u32 s5, s5, 0x%x" % FLAG_AG)
        e("v_lshlrev_b32 v3, 15, v1")
        e("v_add_u32 v3, s5, v3")
    else:
        e("s_lshl_b32 s5, s3, 13")
        e("s_add_u32 s5, s5, 0x%x" % FLAG_KV)
        e("v_lshlrev_b32 v3, 7, v1")
        e("v_add_u32 v3, s5, v3")
    e("v_lshlrev_b32 v13, 6, v1")
    e("v_add_u32 v%d, s13, v13" % vGl)
    e("s_add_u32 s12, s3, %d" % (KV >> 16))
    e("s_lshl_b32 s12, s12, 16")
    srd(SKV, P_WS, 65536, "s12")
    for k, msk in enumerate((0x55555555, 0xAAAAAAAA, 0x33333333, 0xCCCCCCCC)):
        e("s_mov_b32 s%d, 0x%x" % (72 + 2 * k, msk))
        e("s_mov_b32 s%d, 0x%x" % (73 + 2 * k, msk))
    e("s_waitcnt vmcnt(%d)" % (4 * PRE + (NT_A if PRE == 7 else 0)))
    e("ds_write_b16 v%d, v%d offset:56" % (vGl, vG0))
    e("ds_write_b16 v%d, v%d offset:%d" % (vGl, vG1, 56 + 4096))
    e("s_waitcnt lgkmcnt(0)")
    e("s_barrier")
    stampw(6, 90)
    stamp(1)
    cstamp(27)
    e("s_add_u32 s4, s4, 0x%x" % NONCE_ADD)

    def wread(b):
        for p in range(4):
            for q in range(2):
                e("ds_read_b64_tr_b16 %s, v%d offset:%d" % (vr(WF + 16 * (b & 3) + 4 * p + 2 * q, 2), vWr, (64 * b + 8 * p + 4 * q) * 64))

    X1, X2 = "quad_perm:[1,0,3,2] row_mask:0xf bank_mask:0xf", "quad_perm:[2,3,0,1] row_mask:0xf bank_mask:0xf"

    first = [True]
    TREG = {}

    def qm(b, p):
        mfma(DQ, WF + 16 * (b & 3) + 4 * p, TREG[(b, p)], None if first[0] else DQ)
        first[0] = False

    wread(0)
    for b in range(7):
        R = [XL + 16 * (b & 3) + 4 * g for g in range(4)]
        P_, Q_ = 8, (12 if b == 0 else XL + 16 * ((b - 1) & 3) + 4)
        TREG[(b, 0)], TREG[(b, 1)], TREG[(b, 2)], TREG[(b, 3)] = R[0], R[2], Q_, R[3]
        seq = [(R[0] + k, R[1] + k, P_ + k, X1) for k in range(4)] + [(R[2] + k, R[3] + k, Q_ + k, X1) for k in range(4)]
        seq += [(P_ + k, Q_ + k, R[0] + k, X2) for k in range(4)] + [(R[1] + k, R[3] + k, R[2] + k, X2) for k in range(4)]
        if b + PRE < 7:
            xload(b + PRE)
            if b + PRE == 6:
                touch_a()
        if b > 0:
            e("s_waitcnt lgkmcnt(0)")
        if b < 6:
            wread(b + 1)
        e("s_mov_b64 vcc, s[72:73]")
        e("s_waitcnt vmcnt(%d)" % (4 * (min(b + PRE, 6) - b) + (1 if OPT["early"] == 2 and b > OPT["eb"] else 0)))
        if b == OPT["eb"] and OPT["early"] == 2:
            e("buffer_load_dword v4, v3, s[%d:%d], 0 offen sc1" % (SWS, SWS + 3))
        if b == 6:
            e("v_lshlrev_b32 v2, 4, v1")
        if OPT["t2"]:
            ops = [(N_, B_, A_, pat) for (A_, B_, N_, pat) in seq[:8]] + [(B_, A_, B_, pat) for (A_, B_, N_, pat) in seq[:8]]
            ops += [(N_, B_, A_, pat) for (A_, B_, N_, pat) in seq[8:]] + [(B_, A_, B_, pat) for (A_, B_, N_, pat) in seq[8:]]
            for i, (d_, s0, s1, pat) in enumerate(ops):
                if i == 8:
                    e("s_not_b64 vcc, s[72:73]")
                if i == 16:
                    e("s_mov_b64 vcc, s[76:77]")
                if i == 24:
                    e("s_not_b64 vcc, s[76:77]")
                e("v_cndmask_b32_dpp v%d, v%d, v%d, vcc %s" % (d_, s0, s1, pat))
                if b > 0 and i == 3:
                    qm(b - 1, 1)
                if b > 0 and i == 12:
                    qm(b - 1, 3)
                if i == 21:
                    if b == 0:
                        e("s_waitcnt lgkmcnt(8)")
                    qm(b, 0)
                if i == 30:
                    qm(b, 2)
        for i in range(0 if OPT["t2"] else 18):
            if 1 <= i <= 16:
                A_, B_, N_, pat = seq[i - 1]
                e("v_xor_b32 v%d, v%d, v%d" % (A_, A_, N_))
            if i == 8:
                e("s_mov_b64 vcc, s[76:77]")
            if i < 16:
                A_, B_, N_, pat = seq[i]
                e("v_cndmask_b32_dpp v%d, v%d, v%d, vcc %s" % (N_, B_, A_, pat))
            if i == 17:
                qm(b, 2)
            if i >= 2:
                A_, B_, N_, pat = seq[i - 2]
                e("v_xor_b32_dpp v%d, v%d, v%d %s" % (B_, A_, B_, pat))
            if b > 0 and i == 2:
                qm(b - 1, 1)
            if b > 0 and i == 7:
                qm(b - 1, 3)
            if i == 12:
                if b == 0:
                    e("s_waitcnt lgkmcnt(8)")
                qm(b, 0)
    qm(6, 1)
    qm(6, 3)
    cstamp(28)
    stamp(7)

    def Kf(b, k):
        return KVR + 16 * b + 4 * k

    def Vf(b, k):
        return KVR + 16 * b + 8 + 4 * k

    def ld(reg, soff, off):
        e("buffer_load_dwordx4 %s, v2, s[%d:%d], %s offen offset:%d sc1" % (vr(reg, 4), SKV, SKV + 3, soff, off))

    S_OFF, S_EARLY = 13, 11

    def kv_first():
        for b in range(4):
            if b == 0:
                so = "0"
            else:
                e("s_mov_b32 s%d, %d" % (S_OFF, 4096 * b))
                so = "s%d" % S_OFF
            ld(Kf(b, 0), so, 0)
            ld(Kf(b, 1), so, 1024)
            if b < 3:
                ld(Vf(b, 0), so, 2048)
                ld(Vf(b, 1), so, 3072)

    if OPT["early"] == 1:
        e("buffer_load_dword v4, v3, s[%d:%d], 0 offen sc1" % (SWS, SWS + 3))
    e("s_mov_b32 s12, 0x%x" % f32(28 ** -0.5 * LOG2E))
    e("s_mov_b32 s14, 0")
    e("s_mov_b32 s15, -1")
    e("s_lshl_b32 s5, s3, 11")
    e("s_add_u32 s5, s5, %d" % A_QX)
    e("v_add_u32 v12, s5, v2")
    for i in range(1, 4):
        e("s_add_u32 s5, s3, %d" % i)
        e("s_and_b32 s5, s5, 3")
        e("s_lshl_b32 s6, s5, 11")
        e("s_add_u32 s6, s6, %d" % A_QX)
        e("v_add_u32 v%d, s6, v2" % (4 + i))
        e("s_mul_i32 s6, s5, 12288")
        e("s_add_u32 s6, s6, %d" % (A_INB + (i - 1) * 4096))
        e("v_add_u32 v%d, s6, v2" % (7 + i))
    e("s_mul_i32 s6, s3, 12288")
    e("v_add_u32 v11, s6, v2")
    e("v_mul_f32 v%d, 0x%x, v%d" % (V_G, f32(-LOG2E), DQ + 12))
    for k in range(8):
        e("v_pk_mul_f32 %s, %s, s[12:13] op_sel_hi:[1,0]" % (vr(DQ + 2 * k, 2), vr(DQ + 2 * k, 2)))
    e("v_exp_f32 v%d, v%d" % (V_G, V_G))
    for k in range(8):
        e("v_cvt_pk_bf16_f32 v%d, v%d, v%d" % (OQ + k, DQ + 2 * k, DQ + 2 * k + 1))
    e("v_cndmask_b32 v%d, v%d, 0, s[14:15]" % (OQ + 6, OQ + 6))
    e("v_cndmask_b32 v%d, v%d, 0, s[14:15]" % (OQ + 7, OQ + 7))
    e("ds_write_b128 v12, %s" % vr(OQ, 4))
    e("ds_write_b128 v12, %s offset:1024" % vr(OQ + 4, 4))
    for k in range(4):
        e("v_pk_mov_b32 %s, 0, 0" % vr(PP + 8 + 2 * k, 2))
    for k in range(4):
        e("v_pk_mov_b32 %s, 0, 0" % vr(KVR + 56 + 2 * k, 2))
    e("v_add_f32 v%d, 1.0, v%d" % (V_G, V_G))
    e("v_rcp_f32 v%d, v%d" % (V_G, V_G))
    if OPT["early"] == 2:
        e("s_waitcnt vmcnt(0)")
        e("v_cmp_ne_u32 vcc, s4, v4")
        e("s_cmp_eq_u64 vcc, 0")
        e("s_cselect_b32 s%d, 1, 0" % S_EARLY)
        e("s_cbranch_scc0 L_a_late1")
        kv_first()
        e("s_branch L_a_j1")
        e("L_a_late1:")
        e("buffer_load_dword v4, v3, s[%d:%d], 0 offen sc1" % (SWS, SWS + 3))
        e("L_a_j1:")
    e("s_waitcnt lgkmcnt(0)")
    e("s_barrier")
    for i in range(3):
        e("ds_read_b128 %s, v%d" % (vr(QF + 8 * i, 4), 5 + i))
        e("ds_read_b128 %s, v%d offset:1024" % (vr(QF + 8 * i + 4, 4), 5 + i))
    for i in range(4):
        mfma(OA + 16 * i, PP + 8, PP + 8, None)
    stamp(2)
    if OPT["early"] == 2:
        e("s_cmp_lg_u32 s%d, 0" % S_EARLY)
        e("s_cbranch_scc1 L_a_go")
    if OPT["early"]:
        e("s_waitcnt vmcnt(0)")
        e("v_cmp_ne_u32 vcc, s4, v4")
        e("s_cmp_eq_u64 vcc, 0")
        e("s_cbranch_scc1 L_pollok_kv")
    if OPT["agg"]:
        e("v_not_b32 v4, s4")
        e("s_mov_b32 s5, 0")
        if OPT["agprio"] != 3:
            e("s_setprio %d" % OPT["agprio"])
        e("L_a_ag:")
        e("s_and_b32 s6, s5, 7")
        e("s_cmp_eq_u32 s6, 7")
        e("s_cselect_b64 exec, 3, 1")
        e("buffer_load_dword v4, v3, s[%d:%d], 0 offen sc1" % (SWS, SWS + 3))
        e("s_mov_b64 exec, -1")
        e("s_add_u32 s5, s5, 1")
        e("s_waitcnt vmcnt(0)")
        e("v_cmp_eq_u32 vcc, s4, v4")
        e("s_cmp_lg_u64 vcc, 0")
        e("s_cbranch_scc1 L_a_agok")
        if OPT["agsleep"]:
            e("s_sleep %d" % OPT["agsleep"])
        e("s_cmp_lt_u32 s5, %d" % OPT["spin"])
        e("s_cbranch_scc1 L_a_ag")
        e("L_a_agok:")
        stamp(9)
        kv_first()
    elif OPT["split16"]:
        e("s_mov_b64 exec, 0xffff")
        poll("kv0", 3, 4, sleep=OPT["kvsleep"])
        kv_first()
        e("s_mov_b32 exec_lo, 0xffff0000")
        poll("kv", 3, 4, sleep=OPT["kvsleep"])
    else:
        poll("kv", 3, 4, sleep=OPT["kvsleep"])
        kv_first()
    e("L_a_go:")
    e("s_cmp_lg_u32 s3, 0")
    e("s_cbranch_scc1 L_a_noalive")
    e("s_lshl_b32 s5, s2, 7")
    e("s_add_u32 s5, s5, 0x%x" % ALIVE)
    flag_store(5, 13)
    e("L_a_noalive:")
    e("s_cmp_lg_u32 s%d, 0" % S_HEAD)
    e("s_cbranch_scc1 L_a_nog")
    e("s_lshl_b32 s5, s%d, 8" % S_TT)
    e("s_add_u32 s5, s5, 0x%x" % (G1 - 256))
    e("v_lshlrev_b32 v14, 3, v1")
    e("v_sub_f32 v12, 1.0, v%d" % V_G)
    e("v_mov_b32 v13, s4")
    e("s_mov_b32 exec_lo, 0")
    e("buffer_store_dwordx2 v[12:13], v14, s[%d:%d], s5 offen sc1" % (SWS, SWS + 3))
    e("s_mov_b32 exec_lo, -1")
    e("L_a_nog:")
    stamp(3)
    e("s_setprio %d" % OPT["aprio"])
    e("s_waitcnt vmcnt(12) lgkmcnt(0)")
    stamp(8)
    cstamp(22)
    mfma(SS, Kf(0, 0), QF, None)
    mfma(SS, Kf(0, 1), QF + 4, SS)

    def M1(n, bi):
        mfma(SS + 16 * (n & 1), Kf(bi[0], 0), QF + 8 * bi[1], None)

    def step(n, prev, nx1, nx2, X):
        S = SS + 16 * (n & 1)
        Sn = SS + 16 * ((n + 1) & 1)
        P = PP + 8 * (n & 1)
        Pp = PP + 8 * ((n - 1) & 1)

        def ex(a, b_):
            for r in range(a, b_):
                e("v_exp_f32 v%d, v%d" % (S + r, S + r))

        def cv(a, b_):
            for k in range(a, b_):
                e("v_cvt_pk_bf16_f32 v%d, v%d, v%d" % (P + k, S + 2 * k, S + 2 * k + 1))

        def xx(k):
            for f in X.get(k, ()):
                f() if callable(f) else e(f)

        xx(0)
        ex(0, 4)
        mfma(OA + 16 * prev[1], Vf(prev[0], 0), Pp, OA + 16 * prev[1])
        xx(1)
        ex(4, 8)
        cv(0, 2)
        if nx1:
            mfma(Sn, Kf(nx1[0], 1), QF + 8 * nx1[1] + 4, Sn)
        xx(2)
        ex(8, 12)
        cv(2, 4)
        mfma(OA + 16 * prev[1], Vf(prev[0], 1), Pp + 4, OA + 16 * prev[1])
        xx(3)
        ex(12, 16)
        cv(4, 8)
        xx(4)
        if nx2:
            M1(n, nx2)

    BI = lambda n: ((n >> 2) & 3, n & 3)
    e("s_mov_b32 s11, 0")
    e("s_nop 9")
    M1(1, BI(1))
    if OPT["apad"] >= 0:
        e(".p2align 6")
        for k in range(OPT["apad"]):
            e("s_nop 0")
    e("L_attn:")
    for n in range(16):
        X = {}
        so = "s%d" % S_OFF
        if n % 4 == 1:
            vb = ((n >> 2) + 3) & 3
            X = {0: ["s_waitcnt vmcnt(10)"], 1: [lambda: ld(Vf(vb, 0), so, 2048)], 2: [lambda: ld(Vf(vb, 1), so, 3072)],
                 3: ["s_add_u32 s%d, s%d, 4096" % (S_OFF, S_OFF)]}
        if n % 4 == 2:
            X = {3: ["s_waitcnt vmcnt(10)"]}
        if n % 4 == 3:
            kb = (n >> 2) & 3
            X = {0: [lambda: ld(Kf(kb, 0), so, 0)], 1: [lambda: ld(Kf(kb, 1), so, 1024)]}
            if n == 15:
                X[3] = ["s_cmp_lt_u32 s%d, %d" % (S_OFF, 4096 * 15)]
        if OPT["grp"]:
            if n == 0:
                X = {1: ["s_add_u32 s11, s11, 128", "s_mov_b64 exec, 3",
                         "buffer_load_dword v4, v3, s[%d:%d], s11 offen sc1" % (SWS, SWS + 3), "s_mov_b64 exec, -1"]}
            if n == 2:
                X = {3: ["s_waitcnt vmcnt(2)", "v_cmp_eq_u32 vcc, s4, v4"]}
            if n == 3:
                X[0] = ["s_cmp_eq_u64 vcc, 0", "s_cbranch_scc1 L_a_wait", "L_a_back:"] + X[0]
        if OPT["itst"] and n % 4 == 0:
            X = dict(X)
            X[0] = ["s_memtime s[96:97]", "s_lshr_b32 m0, s13, 12", "s_add_u32 m0, m0, 37", "s_waitcnt lgkmcnt(0)", "v_writelane_b32 v0, s96, m0"] + list(X.get(0, []))
        step(n, BI(n - 1), BI(n + 1), BI(n + 2), X)
    e("s_cbranch_scc1 L_attn")
    SEQ = [(0, 0), (0, 1), (1, 0), (1, 1), (2, 0), (2, 1), (3, 0), (3, 1)] + [(b, 2) for b in range(4)] + [(b, 3) for b in range(4)]

    def wr(sl, q):
        return "ds_write_b128 v%d, %s offset:%d" % (8 + sl, vr(OA + 16 * sl + 4 * q, 4), q * 1024)

    def rd(k):
        return "ds_read_b128 %s, v11 offset:%d" % (vr(OA + 4 * k, 4), k * 1024)

    def pa(d, a_):
        return "v_pk_add_f32 %s, %s, %s" % (vr(d, 2), vr(d, 2), vr(a_, 2))

    def hint():
        flag_store(7, 7, "")

    so = "s%d" % S_OFF
    XP = {n: {} for n in range(16)}
    XP[0] = {4: ["s_waitcnt vmcnt(8)"]}
    XP[1] = {1: [lambda: ld(Vf(3, 0), so, 2048)], 2: [lambda: ld(Vf(3, 1), so, 3072)]}
    XP[2] = {4: ["s_waitcnt vmcnt(6)"]}
    XP[4] = {4: ["s_waitcnt vmcnt(2)"]}
    XP[7] = {0: ["s_waitcnt vmcnt(0)"]}
    XP[5] = {0: ["s_lshl_b32 s5, s%d, 4" % S_TT, "s_add_u32 s5, s5, s%d" % S_HEAD], 1: ["s_lshl_b32 s6, s5, 11", "s_add_u32 s6, s6, 0x%x" % OW],
             2: ["s_lshl_b32 s7, s5, 7", "s_add_u32 s7, s7, 0x%x" % FLAG_O], 3: ["s_and_b32 s5, s4, 0xbfff0000", "s_mov_b32 s10, 0x07060100", "s_mov_b32 s11, 0x07060302"]}
    XP[6] = {0: ["v_mov_b32 v40, s5", "v_mov_b32 v41, 0x03020100"], 1: ["v_mov_b32 v42, 0x07060100", "v_mov_b32 v43, 0x07060302"],
             2: ["v_cndmask_b32 v41, v41, v42, s[14:15]"], 3: ["v_cndmask_b32 v42, v42, v43, s[14:15]"]}
    XP[8] = {k + 1: [wr(0, k)] for k in range(4)}
    XP[9] = {k + 1: [wr(1, k)] for k in range(4)}
    XP[13] = {1: [wr(2, 0), wr(2, 1)], 2: [wr(2, 2), wr(2, 3)], 4: ["s_waitcnt lgkmcnt(0)", "s_barrier"] + ([hint] if OPT["hintpos"] == 1 else [])}
    XP[14] = {0: [rd(0), rd(4), rd(1), rd(5)], 1: [rd(2), rd(6), rd(3), rd(7)], 2: [rd(8), rd(9), rd(10), rd(11)],
              4: ["s_waitcnt lgkmcnt(4)"] + [pa(OA + 2 * k, OA + 16 + 2 * k) for k in range(4)]}
    XP[15] = {0: ([hint] if OPT["hintpos"] == 3 else []) + [pa(OA + 2 * k, OA + 16 + 2 * k) for k in range(4, 8)],
              1: ["s_waitcnt lgkmcnt(0)"] + [pa(OA + 2 * k, OA + 32 + 2 * k) for k in range(4)],
              2: [pa(OA + 2 * k, OA + 32 + 2 * k) for k in range(4, 8)],
              3: ["s_mov_b32 s12, 0x%x" % f32(2.0 ** -60), "s_mov_b32 s13, 0x%x" % f32(2.0 ** 60)]}
    for n in range(16):
        if OPT["itst"] and n % 4 == 0:
            cstamp(52 + n // 4)
        if OPT["itst"] and n == 13:
            XP[13][4] = [lambda: cstamp(56)] + XP[13][4] + [lambda: cstamp(57)]
        step(n, SEQ[n - 1] if n else (3, 3), SEQ[n + 1] if n < 15 else None, SEQ[n + 2] if n < 14 else None, XP[n])
    mfma(OO, Vf(3, 0), PP + 8, OO)
    mfma(OO, Vf(3, 1), PP + 12, OO)
    if OPT["hintpos"] == 4:
        hint()
    cstamp(23)
    stamp(4)
    for k in range(8):
        e(pa(OO + 2 * k, OA + 2 * k))
    e("v_pk_mul_f32 v[4:5], %s, 0" % vr(OO, 2))
    for k in range(1, 8):
        e("v_pk_fma_f32 v[4:5], %s, 0, v[4:5]" % vr(OO + 2 * k, 2))
    e("v_cmp_nle_f32 s[72:73], s12, v%d" % (OO + 12))
    e("v_cmp_nge_f32 s[74:75], s13, v%d" % (OO + 12))
    e("v_cmp_u_f32 vcc, v4, v5")
    e("s_or_b32 s73, s73, s75")
    e("s_or_b32 s73, s73, vcc_hi")
    e("s_or_b32 s73, s73, vcc_lo")
    if OPT["force_fb"]:
        e("s_mov_b32 s73, 1")
    e("s_cmp_lg_u32 s73, 0")
    e("s_cbranch_scc1 L_fb")
    e("L_fin:")
    e("v_rcp_f32 v4, v%d" % (OO + 12))
    e("v_mul_f32 v4, v4, v%d" % V_G)
    e("v_mov_b32 v5, v4")
    e("v_permlane32_swap_b32 v5, v4")
    for k in (3, 5, 7, 6, 0, 1, 2, 4):
        e("v_pk_mul_f32 %s, %s, v[4:5] op_sel_hi:[1,0]" % (vr(OO + 2 * k, 2), vr(OO + 2 * k, 2)))
    for k in (3, 7):
        e("v_cvt_pk_bf16_f32 v%d, v%d, v%d" % (32 + k, OO + 2 * k, OO + 2 * k + 1))
    e("v_perm_b32 v44, v39, v35, s11")
    e("v_cvt_pk_bf16_f32 v38, v%d, v%d" % (OO + 12, OO + 13))
    e("v_mov_b32 v45, v44")
    for k in (0, 1):
        e("v_cvt_pk_bf16_f32 v%d, v%d, v%d" % (32 + k, OO + 2 * k, OO + 2 * k + 1))
    e("v_permlane32_swap_b32 v45, v44")
    for k in (2, 4, 5):
        e("v_cvt_pk_bf16_f32 v%d, v%d, v%d" % (32 + k, OO + 2 * k, OO + 2 * k + 1))
    e("v_cndmask_b32 v38, v38, v45, s[14:15]")
    e("v_cndmask_b32 v39, v39, v45, s[14:15]")
    e("v_perm_b32 v38, v35, v38, v41")
    e("v_perm_b32 v35, v40, v35, s10")
    e("v_perm_b32 v39, v40, v39, v42")
    e("buffer_store_dwordx4 v[32:35], v2, s[%d:%d], s6 offen" % (SWS, SWS + 3))
    e("buffer_store_dwordx4 v[36:39], v2, s[%d:%d], s6 offen offset:1024" % (SWS, SWS + 3))
    if OPT["hintpos"] == 2 and not OPT["nonear"]:
        flag_store(7, 7, "")
    e("s_add_u32 s6, s6, 0x%x" % (OW2 - OW))
    e("s_add_u32 s7, s7, 0x%x" % (FLAG_O2 - FLAG_O))
    if OPT["nofar"] == 2:
        e("s_waitcnt vmcnt(0)")
    if OPT["nofar"] != 1:
        e("buffer_store_dwordx4 v[32:35], v2, s[%d:%d], s6 offen sc1" % (SWS, SWS + 3))
        e("buffer_store_dwordx4 v[36:39], v2, s[%d:%d], s6 offen offset:1024 sc1" % (SWS, SWS + 3))
        flag_store(7, 7)
    stamp(5)
    cstamp(30)
    dbg_stamp(256, 264, 0, True)
    stamp_flush()
    e("s_endpgm")

    if OPT["grp"]:
        e("L_a_wait:")
        e("s_mov_b32 s5, 0")
        e("L_a_wait1:")
        e("s_mov_b64 exec, 3")
        e("buffer_load_dword v4, v3, s[%d:%d], s11 offen sc1" % (SWS, SWS + 3))
        e("s_mov_b64 exec, -1")
        e("s_add_u32 s5, s5, 1")
        e("s_waitcnt vmcnt(0)")
        e("v_cmp_eq_u32 vcc, s4, v4")
        e("s_cmp_lg_u64 vcc, 0")
        e("s_cbranch_scc1 L_a_back")
        e("s_cmp_lt_u32 s5, %d" % OPT["spin"])
        e("s_cbranch_scc1 L_a_wait1")
        e("s_branch L_a_back")

    SALL = 76
    e("L_fb:")
    srd(SALL, P_WS, 262144, "0x%x" % KV)
    e("v_mov_b32 v7, 0xff800000")
    e("s_mov_b32 s12, 0")
    e("L_fb1:")
    e("buffer_load_dwordx4 v[192:195], v2, s[%d:%d], s12 offen sc1" % (SALL, SALL + 3))
    e("buffer_load_dwordx4 v[196:199], v2, s[%d:%d], s12 offen offset:1024 sc1" % (SALL, SALL + 3))
    e("s_waitcnt vmcnt(0)")
    mfma(SS, 192, OQ, None)
    mfma(SS, 196, OQ + 4, SS)
    for k in range(8):
        e("v_max3_f32 v7, v7, v%d, v%d" % (SS + 2 * k, SS + 2 * k + 1))
    e("s_add_u32 s12, s12, 4096")
    e("s_cmp_lt_u32 s12, 262144")
    e("s_cbranch_scc1 L_fb1")
    e("v_mov_b32 v8, v7")
    e("v_permlane32_swap_b32 v8, v7")
    e("v_max_f32 v7, v7, v8")
    for k in range(16):
        e("v_mov_b32 v%d, 0" % (OO + k))
    e("s_mov_b32 s12, 0")
    e("L_fb2:")
    for k in range(4):
        e("buffer_load_dwordx4 %s, v2, s[%d:%d], s12 offen offset:%d sc1" % (vr(192 + 4 * k, 4), SALL, SALL + 3, 1024 * k))
    e("s_waitcnt vmcnt(0)")
    mfma(SS, 192, OQ, None)
    mfma(SS, 196, OQ + 4, SS)
    for k in range(16):
        e("v_sub_f32 v%d, v%d, v7" % (SS + k, SS + k))
    for k in range(16):
        e("v_exp_f32 v%d, v%d" % (SS + k, SS + k))
    for k in range(8):
        e("v_cvt_pk_bf16_f32 v%d, v%d, v%d" % (PP + k, SS + 2 * k, SS + 2 * k + 1))
    mfma(OO, 200, PP, OO)
    mfma(OO, 204, PP + 4, OO)
    e("s_add_u32 s12, s12, 4096")
    e("s_cmp_lt_u32 s12, 262144")
    e("s_cbranch_scc1 L_fb2")
    e("s_nop 8")
    e("s_branch L_fin")


S_STG = 16896
S_INB1 = 16896
S_WL = 49664
S_PX = 67584
KR0, KR1, XC0 = 0, 7680, 15360
XCS = 4160
L_CPX = 48640
S_OF, S_G1, S_OT = 0, 32768, 40960


def cmul(d, x, m, t):
    e("v_pk_mul_f32 %s, %s, %s op_sel_hi:[1,0]" % (vr(t, 2), vr(x, 2), vr(m, 2)))
    e("v_pk_fma_f32 %s, %s, %s, %s op_sel:[1,1,0] op_sel_hi:[0,1,1] neg_lo:[1,0,0]" % (vr(d, 2), vr(x, 2), vr(m, 2), vr(t, 2)))


def role_s():
    S_ID, S_J, S_CP = 8, 9, 15
    SW, SWO, SOUT = 60, 64, 68
    vE = 10
    PRM = 240
    XTR = 128

    def xt_flag(tag):
        e("s_cmp_ge_u32 s84, 0x%x" % (FLAG_XT + 7 * 64 * 128))
        e("s_cbranch_scc1 L_s_noxf%s" % tag)
        e("s_waitcnt vmcnt(0)")
        flag_store(84, 14)
        e("L_s_noxf%s:" % tag)

    def alive(tag):
        e("s_cmp_lg_u32 s3, 3")
        e("s_cbranch_scc1 L_s_al%s" % tag)
        e("s_lshl_b32 s5, s2, 7")
        e("s_add_u32 s5, s5, 0x%x" % ALIVE)
        flag_store(5, 13)
        e("L_s_al%s:" % tag)

    S_TT, S_CG, S_OB, S_H, S_V, S_P, S_TAG, S_F, S_U, S_CB = 11, 12, 80, 76, 77, 78, 75, 79, 84, 85
    SWT, S_WF = 88, 86
    WO = 128

    def job_decode():
        rest = [(a_, c_) for a_ in range(8) for c_ in range(3) if not (a_ >= 4 and c_ == a_ - 4)]
        job = rest[:16] + [(a_, 3) for a_ in range(7)] + rest[16:] + [(4 + g_, g_) for g_ in range(4)]
        assert sorted(job) == sorted((a_, c_) for a_ in range(8) for c_ in range(4))
        tab = [sum((job[4 * d + k][0] | job[4 * d + k][1] << 4) << (8 * k) for k in range(4)) for d in range(8)]
        e("s_lshr_b32 s5, s%d, 2" % S_J)
        e("s_mov_b32 s6, 0x%x" % tab[0])
        for d in range(1, 8):
            e("s_cmp_eq_u32 s5, %d" % d)
            e("s_cselect_b32 s6, 0x%x, s6" % tab[d])
        e("s_and_b32 s5, s%d, 3" % S_J)
        e("s_lshl_b32 s5, s5, 3")
        e("s_lshr_b32 s6, s6, s5")
        e("s_and_b32 s5, s6, 7")
        e("s_add_u32 s%d, s10, s5" % S_TT)
        e("s_bfe_u32 s%d, s6, 0x20004" % S_CG)
        e("s_cmp_eq_u32 s%d, 3" % S_CG)
        e("s_cselect_b32 s5, 1, 3")
        e("s_and_b32 s%d, s3, s5" % S_CB)
        e("s_lshl_b32 s5, s%d, 2" % S_CG)
        e("s_add_u32 s5, s5, s%d" % S_CB)
        e("s_lshl_b32 s%d, s5, 10" % S_WF)
        e("s_add_u32 s%d, s%d, 0x%x" % (S_WF, S_WF, FLAG_W))
        e("s_lshl_b32 s5, s5, 15")
        e("s_add_u32 s5, s5, 0x%x" % WT)
        srd(SWT, P_WS, 32768, "s5")

    LFL = 81408

    def lds_flags_clear():
        if OPT["prog"]:
            e("v_and_b32 v6, 3, v1")
            e("v_lshlrev_b32 v6, 2, v6")
            e("v_add_u32 v6, %d, v6" % LFL)
            e("v_mov_b32 v7, 0")
            e("ds_write_b32 v6, v7")

    def wld(k, st=False):
        so = 4096 * (k >> 2)
        if so > 64:
            e("s_movk_i32 s6, 0x%x" % so) if so < 32768 else None
        e("buffer_%s_dwordx4 %s, v%d, s[%d:%d], %s offen offset:%d sc1" % ("store" if st else "load", vr(WO + 4 * k, 4), 5, SWT, SWT + 3, "s6" if so else "0", 1024 * (k & 3)))

    if OPT["spad"] >= 0:
        e(".p2align %d" % OPT["sal"])
        for k in range(OPT["spad"]):
            e("s_nop 0")
    e("L_roleS:")
    e("s_setprio 3")
    e("s_mov_b32 s%d, s2" % S_ID)
    e("s_lshr_b32 s%d, s%d, 3" % (S_J, S_ID))
    M = OPT["kvmask"]
    assert bin(M).count("1") == 16
    if M != 0xffff0000:
        e("s_bfm_b32 s5, s%d, 0" % S_J)
        e("s_bitcmp1_b32 0x%x, s%d" % (M, S_J))
        e("s_cselect_b32 s6, 0x%x, 0x%x" % (M, M) if False else "s_cselect_b32 s6, 0, -1")
        e("s_cselect_b32 s7, 16, 0")
        e("s_xor_b32 s6, s6, 0x%x" % M)
        e("s_and_b32 s5, s5, s6")
        e("s_bcnt1_i32_b32 s5, s5")
        e("s_add_u32 s%d, s5, s7" % S_J)
    e("s_and_b32 s10, s%d, 7" % S_ID)
    e("s_mul_i32 s%d, s10, 28" % S_CP)
    e("s_add_u32 s%d, s%d, s%d" % (S_CP, S_CP, S_J))
    vXg, vXr0, vXr1, vL16, vWr = 2, 3, 4, 5, 6
    S_TAU, S_KIND = 11, 12
    e("v_lshrrev_b32 v13, 2, v1")
    e("v_mul_u32_u24 v%d, 896, v13" % vXg)
    e("v_lshrrev_b32 v13, 4, v1")
    e("v_xor_b32 v13, v13, v1")
    e("v_and_b32 v13, 3, v13")
    e("v_lshl_add_u32 v%d, v13, 4, v%d" % (vXg, vXg))
    e("v_lshlrev_b32 v%d, 4, v1" % vL16)
    e("s_lshl_b32 s10, s10, 3")
    e("s_sub_u32 s5, s%d, 16" % S_J)
    e("s_lshr_b32 s5, s5, 1")
    e("s_add_u32 s%d, s10, s5" % S_TAU)
    e("s_and_b32 s%d, s%d, 1" % (S_KIND, S_J))
    e("s_lshl_b32 s5, s3, 13")
    e("s_add_u32 s5, s5, 16896")
    e("s_cmp_eq_u32 s3, 0")
    e("s_cselect_b32 s13, 8192, s5")
    e("s_mul_i32 s14, s3, 7232")
    e("s_add_u32 s14, s14, %d" % S_WL)
    e("s_mul_i32 s5, s%d, 28672" % S_TAU)
    e("s_lshl_b32 s6, s3, 8")
    e("s_add_u32 s5, s5, s6")
    e("s_add_u32 s6, s5, 14336")
    e("s_mov_b32 m0, s13")
    e("s_mov_b32 s%d, %d" % (SW + 2, 448 * 56))
    e("s_mov_b32 s%d, 0x20000" % (SW + 3))
    e("s_mov_b32 s%d, 0x%x" % (SX + 2, 2048 * 896))
    e("s_mov_b32 s%d, 0x20000" % (SX + 3))
    e("s_cmp_lt_u32 s%d, 28" % S_J)
    e("s_cselect_b32 s7, s%d, 0" % S_CP)
    e("s_lshl_b32 s74, s7, 2")
    e("s_cmp_lt_u32 s%d, 16" % S_J)
    e("s_waitcnt lgkmcnt(0)")
    if OPT["timing"]:
        e("v_writelane_b32 v0, s96, 0")
    stamp(20)
    e("s_load_dword s4, s[%d:%d], %d" % (P_WS, P_WS + 1, NONCE_OFF))
    e("s_load_dword s72, s[%d:%d], s74" % (P_LDT, P_LDT + 1))
    e("s_load_dword s73, s[%d:%d], s74" % (P_DSK, P_DSK + 1))
    e("s_cbranch_scc1 L_s_nokv1")
    e("s_mov_b32 s%d, s%d" % (SX, P_X))
    e("s_mov_b32 s%d, s%d" % (SX + 1, P_X + 1))
    e("s_cmp_eq_u32 s%d, 0" % S_KIND)
    e("s_cselect_b32 s%d, s%d, s%d" % (SW, P_WK, P_WV))
    e("s_cselect_b32 s%d, s%d, s%d" % (SW + 1, P_WK + 1, P_WV + 1))
    for pp in range(4):
        for rh in range(2):
            e("buffer_load_dwordx4 v%d, s[%d:%d], s%d offen lds" % (vXg, SX, SX + 3, 6 if rh else 5))
            e("s_add_u32 m0, m0, 1024")
            if pp < 3:
                e("s_add_u32 s%d, s%d, 64" % (6 if rh else 5, 6 if rh else 5))
    e("s_mul_i32 s5, s3, 7168")
    e("s_mov_b32 m0, s14")
    e("s_add_u32 s6, s5, 4096")
    for m in range(4):
        e("buffer_load_dwordx4 v%d, s[%d:%d], s5 offen offset:%d lds" % (vL16, SW, SW + 3, 1024 * m))
    e("s_add_u32 m0, m0, 4096")
    for m in range(3):
        e("buffer_load_dwordx4 v%d, s[%d:%d], s6 offen offset:%d lds" % (vL16, SW, SW + 3, 1024 * m))
    e("L_s_nokv1:")
    e("s_lshl_b32 s5, s7, 10")
    e("s_lshl_b32 s6, s3, 8")
    e("s_add_u32 s5, s5, s6")
    e("v_lshlrev_b32 v7, 2, v1")
    e("v_add_u32 v7, s5, v7")
    for k, p in enumerate((P_ARE, P_AIM, P_BRE, P_BIM, P_CRE, P_CIM)):
        e("global_load_dword v%d, v7, s[%d:%d]" % (PRM + k, p, p + 1))
    srd(SWS, P_WS, WS_BYTES)
    srd(SWO, P_WO, 448 * 896)
    NPF = 0
    if OPT["wopf"]:
        e("s_mul_i32 s5, s10, %d" % (7 * 896))
        e("s_lshl_b32 s6, s%d, 8" % S_J)
        e("s_add_u32 s5, s5, s6")
        e("s_lshl_b32 s6, s3, 6")
        e("s_add_u32 s5, s5, s6")
        e("s_sub_u32 s5, s5, %d" % (28 * 256))
        e("s_cmp_lt_u32 s%d, 28" % S_J)
        e("s_cselect_b32 s5, 0x%x, s5" % (448 * 896))
        e("v_min_u32 v8, 55, v1")
        e("v_mul_u32_u24 v8, 896, v8")
        e("buffer_load_dword v%d, v8, s[%d:%d], s5 offen" % (PRM + 6, SWO, SWO + 3))
        NPF += 1
    if OPT["touch"]:
        e("v_lshlrev_b32 v8, 16, v1")
        e("v_add_u32 v8, 0x8000, v8")
        e("buffer_load_dword v%d, v8, s[%d:%d], 0 offen sc1" % (PRM + 7, SWS, SWS + 3))
        e("v_add_u32 v8, 0x400000, v8")
        e("buffer_load_dword v%d, v8, s[%d:%d], 0 offen sc1" % (PRM + 8, SWS, SWS + 3))
        NPF += 2
    e("s_cmp_lt_u32 s%d, 16" % S_J)
    e("s_cbranch_scc1 L_s_nokv2")
    e("v_and_b32 v13, 31, v1")
    e("v_lshlrev_b32 v%d, 6, v13" % vXr0)
    e("v_lshrrev_b32 v13, 2, v1")
    e("v_lshrrev_b32 v14, 5, v1")
    e("v_xor_b32 v13, v13, v14")
    e("v_and_b32 v13, 3, v13")
    e("v_lshl_add_u32 v%d, v13, 4, v%d" % (vXr0, vXr0))
    e("v_xor_b32 v%d, 32, v%d" % (vXr1, vXr0))
    tr_addr(vWr, 8, 56, 13, 14)
    e("v_add_u32 v%d, s14, v%d" % (vWr, vWr))
    e("v_add_u32 v%d, s13, v%d" % (vXr0, vXr0))
    e("v_add_u32 v%d, s13, v%d" % (vXr1, vXr1))
    e("s_lshl_b32 s5, s3, 11")
    e("v_add_u32 v8, s5, v%d" % vL16)
    e("s_lshl_b32 s5, s%d, 12" % S_KIND)
    e("s_add_u32 s5, s5, s13")
    e("v_lshrrev_b32 v13, 5, v1")
    e("v_lshlrev_b32 v20, 11, v13")
    e("v_bfe_u32 v13, v1, 2, 2")
    e("v_lshl_add_u32 v20, v13, 6, v20")
    e("v_and_b32 v13, 1, v1")
    e("v_lshl_add_u32 v20, v13, 3, v20")
    e("v_add_u32 v20, s5, v20")
    e("v_bfe_u32 v13, v1, 4, 1")
    e("v_bfe_u32 v14, v1, 1, 1")
    e("v_lshl_add_u32 v13, v13, 1, v14")
    for m in range(4):
        e("v_xor_b32 v14, %d, v13" % m)
        e("v_lshl_add_u32 v%d, v14, 4, v20" % (16 + m))
    e("s_lshl_b32 s5, s3, 1")
    e("s_add_u32 s5, s5, s%d" % S_KIND)
    e("s_lshl_b32 s84, s5, 6")
    e("s_add_u32 s84, s84, s%d" % S_TAU)
    e("s_lshl_b32 s84, s84, 7")
    e("s_add_u32 s84, s84, 0x%x" % FLAG_XT)
    e("s_lshl_b32 s5, s5, 10")
    e("s_mul_i32 s85, s%d, %d" % (S_TAU, 4 * 7168))
    e("s_add_u32 s85, s85, s5")
    e("s_add_u32 s85, s85, 0x%x" % XT)
    XF, WF, DK = 64, 96, 48
    e("s_waitcnt vmcnt(%d) lgkmcnt(0)" % (6 + NPF))
    stamp(1)
    e("s_add_u32 s4, s4, 0x%x" % NONCE_ADD)
    for s in range(8):
        e("ds_read_b128 %s, v%d offset:%d" % (vr(XF + 4 * s, 4), vXr1 if s & 1 else vXr0, (s >> 1) * 2048))
        for q in range(2):
            e("ds_read_b64_tr_b16 %s, v%d offset:%d" % (vr(WF + 4 * s + 2 * q, 2), vWr, s * 896 + q * 224))
    e("s_cmp_eq_u32 s%d, 0" % S_KIND)
    e("s_cbranch_scc0 L_s_kind1")
    for s in range(8):
        e("s_waitcnt lgkmcnt(%d)" % min(15, 21 - 3 * s))
        mfma(DK, WF + 4 * s, XF + 4 * s, None if s == 0 else DK)
    e("s_branch L_s_kindj")
    e("L_s_kind1:")
    for s in range(8):
        e("s_waitcnt lgkmcnt(%d)" % min(15, 21 - 3 * s))
        mfma(DK, XF + 4 * s, WF + 4 * s, None if s == 0 else DK)
    e("L_s_kindj:")
    for m in range(8):
        e("ds_read_b64_tr_b16 %s, v%d offset:%d" % (vr(XTR + 2 * m, 2), 16 + (m & 3), 256 * (m & 3) + 1024 * (m >> 2)))
    e("s_cmp_eq_u32 s%d, 0" % S_KIND)
    e("s_cselect_b32 s74, 0, 0xe0000000")
    e("s_mov_b32 s75, s74")
    e("s_mov_b32 s76, s74")
    e("s_cselect_b32 s78, 0, 0x10000000")
    e("s_mov_b32 s79, s78")
    e("s_cselect_b32 s5, -1, 0")
    e("s_cmp_eq_u32 s3, 1")
    e("s_cselect_b32 s5, s5, 0")
    e("s_or_b32 s77, s74, s5")
    e("v_mov_b32 v9, 0x3f803f80")
    for q in range(4):
        e("ds_write_b128 v8, %s offset:%d" % (vr(DK + 4 * q, 4), (q >> 1) * S_INB1 + (q & 1) * 1024))
    e("s_waitcnt lgkmcnt(0)")
    e("s_barrier")
    e("s_cmp_ge_u32 s3, 2")
    e("s_cbranch_scc1 L_s_kvdone")
    e("s_mul_i32 s5, s3, %d" % S_INB1)
    e("v_add_u32 v8, s5, v%d" % vL16)
    for k in range(8):
        e("ds_read_b128 %s, v8 offset:%d" % (vr(64 + 4 * k, 4), k * 1024))
    if OPT["grp"]:
        e("s_bfe_u32 s6, s%d, 0x20001" % S_TAU)
        e("s_lshl_b32 s6, s6, 2")
        e("s_lshr_b32 s6, 0x%x, s6" % OPT["gperm"])
        e("s_and_b32 s6, s6, 3")
        e("s_lshl_b32 s6, s6, 2")
        e("s_and_b32 s5, s%d, 0x31" % S_TAU)
        e("s_add_u32 s5, s5, s6")
        e("s_bfe_u32 s6, s%d, 0x10003" % S_TAU)
        e("s_lshl_b32 s6, s6, 1")
        e("s_add_u32 s5, s5, s6")
        e("s_lshl_b32 s5, s5, 1")
    else:
        e("s_lshl_b32 s5, s%d, 1" % S_TAU)
    e("s_add_u32 s5, s5, s%d" % S_KIND)
    e("s_lshl_b32 s5, s5, 1")
    e("s_add_u32 s5, s5, s3")
    e("s_lshl_b32 s6, s5, 10")
    e("s_add_u32 s6, s6, 0x%x" % KV)
    e("s_lshl_b32 s7, s5, 7")
    e("s_add_u32 s7, s7, 0x%x" % FLAG_KV)
    e("s_waitcnt lgkmcnt(4)")
    for k in range(4):
        e("v_pk_add_f32 %s, %s, %s" % (vr(64 + 2 * k, 2), vr(64 + 2 * k, 2), vr(72 + 2 * k, 2)))
    e("s_waitcnt lgkmcnt(0)")
    for k in range(4):
        e("v_pk_add_f32 %s, %s, %s" % (vr(80 + 2 * k, 2), vr(80 + 2 * k, 2), vr(88 + 2 * k, 2)))
    for k in range(4):
        e("v_pk_add_f32 %s, %s, %s" % (vr(64 + 2 * k, 2), vr(64 + 2 * k, 2), vr(80 + 2 * k, 2)))
    for k in range(4):
        e("v_cvt_pk_bf16_f32 v%d, v%d, v%d" % (72 + k, 64 + 2 * k, 65 + 2 * k))
    for k in range(4):
        e("v_cndmask_b32 v%d, v%d, 0, %s" % (72 + k, 72 + k, "s[74:75]" if k < 2 else "s[76:77]"))
    for k in range(4):
        e("v_cndmask_b32 v%d, v%d, v9, s[78:79]" % (72 + k, 72 + k))
    stamp(17)
    e("buffer_store_dwordx4 v[72:75], v%d, s[%d:%d], s6 offen sc1" % (vL16, SWS, SWS + 3))
    e("s_waitcnt vmcnt(0)")
    stamp(18)
    flag_store(7, 9)
    if OPT["timing"]:
        e("s_waitcnt vmcnt(0)")
    stamp(26)
    e("L_s_kvdone:")
    e("s_setprio %d" % OPT["kprio"])
    e("s_waitcnt vmcnt(%d)" % NPF)
    e("s_cmp_ge_u32 s84, 0x%x" % (FLAG_XT + 7 * 64 * 128))
    e("s_cbranch_scc1 L_s_noxt")
    for q in range(4):
        e("buffer_store_dwordx4 %s, v%d, s[%d:%d], s85 offen sc1" % (vr(XTR + 4 * q, 4), vL16, SWS, SWS + 3))
        if q < 3:
            e("s_add_u32 s85, s85, 7168")
    e("L_s_noxt:")
    stamp(2)
    e("s_cmp_lt_u32 s%d, 28" % S_J)
    e("s_cbranch_scc1 L_s_kgen")
    alive("i")
    job_decode()
    e("s_cmp_lg_u32 s3, s%d" % S_CB)
    e("s_cbranch_scc1 L_s_nodma")
    e("v_lshrrev_b32 v13, 2, v1")
    e("v_mul_u32_u24 v8, 896, v13")
    e("v_and_b32 v13, 3, v1")
    e("v_lshl_add_u32 v8, v13, 4, v8")
    e("s_mul_i32 s5, s10, %d" % (7 * 896))
    e("s_lshl_b32 s6, s%d, 8" % S_CG)
    e("s_add_u32 s5, s5, s6")
    e("s_lshl_b32 s6, s3, 6")
    e("s_add_u32 s5, s5, s6")
    e("s_mov_b32 m0, s13")
    for m in range(4):
        e("buffer_load_dwordx4 v8, s[%d:%d], s5 offen lds" % (SWO, SWO + 3))
        if m < 3:
            e("s_add_u32 m0, m0, 1024")
            e("s_add_u32 s5, s5, %d" % (896 * (12 if m & 1 else 16)))
    e("L_s_nodma:")
    e("v_bfe_u32 v13, v1, 4, 1")
    e("v_and_b32 v14, 3, v1")
    e("v_lshl_add_u32 v13, v13, 2, v14")
    e("v_lshlrev_b32 v13, 3, v13")
    e("v_add_u32 v13, s13, v13")
    e("v_bfe_u32 v14, v1, 2, 2")
    e("v_lshl_add_u32 v16, v14, 6, v13")
    e("v_lshrrev_b32 v15, 5, v1")
    e("v_lshl_add_u32 v9, v15, 8, v16")
    e("v_lshlrev_b32 v15, 3, v14")
    e("s_mov_b32 s5, 0x1b1b0f0b")
    e("v_lshrrev_b32 v15, v15, s5")
    e("v_and_b32 v15, 0xff, v15")
    e("v_lshl_add_u32 v13, v15, 6, v13")
    e("v_add_u32 v10, %d, v9" % (24 * 64))
    e("s_mov_b32 s72, 0")
    e("s_mov_b32 s73, -1")
    e("v_cndmask_b32 v10, v10, v13, s[72:73]")
    lds_flags_clear()
    xt_flag("a")
    if OPT["agg"]:
        e("s_cmp_lg_u32 s3, 2")
        e("s_cbranch_scc1 L_s_noag")
        e("s_sub_u32 s13, s%d, 28" % S_J)
        if OPT["grp"]:
            e("s_lshl_b32 s5, s13, 11")
            e("s_add_u32 s5, s5, 0x%x" % FLAG_KV)
            e("v_lshrrev_b32 v13, 4, v1")
            e("v_and_b32 v14, 15, v1")
            e("v_lshl_add_u32 v13, v13, 6, v14")
            e("v_lshlrev_b32 v13, 7, v13")
        else:
            e("s_lshl_b32 s5, s13, 13")
            e("s_add_u32 s5, s5, 0x%x" % FLAG_KV)
            e("v_lshlrev_b32 v13, 7, v1")
        e("v_add_u32 v13, s5, v13")
        e("s_lshr_b32 s14, s10, 1")
        e("s_add_u32 s14, s14, s13")
        e("s_lshl_b32 s14, s14, 7")
        e("s_add_u32 s14, s14, 0x%x" % FLAG_AG)
        poll("ag", 13, 14)
        flag_store(14, 13, "")
        e("s_add_u32 s14, s14, 0x%x" % (FLAG_AG2 - FLAG_AG))
        flag_store(14, 13)
        stamp(27)
        e("L_s_noag:")
    e("s_cmp_lg_u32 s3, s%d" % S_CB)
    e("s_cbranch_scc1 L_s_nostage")
    e("s_waitcnt vmcnt(0)")
    for hd in range(2):
        for q in range(3):
            e("ds_read_b64_tr_b16 %s, v9 offset:%d" % (vr(WO + 8 * hd + 2 * q, 2), 2048 * hd + 512 * q))
        e("ds_read_b64_tr_b16 %s, v10 offset:%d" % (vr(WO + 8 * hd + 6, 2), 2048 * hd))
    e("s_lshl_b32 s6, s10, 9")
    e("s_lshl_b32 s7, s10, 4")
    e("s_add_u32 s7, s7, s%d" % S_WF)
    e("s_waitcnt lgkmcnt(0)")
    for k in range(4):
        e("v_and_b32 v%d, 0xffff, v%d" % (WO + 4 * k + 3, WO + 4 * k + 3))
    for k in range(4):
        e("buffer_store_dwordx4 %s, v%d, s[%d:%d], s6 offen offset:%d sc1" % (vr(WO + 4 * k, 4), vL16, SWT, SWT + 3, 1024 * k))
    e("s_waitcnt vmcnt(0)")
    flag_store(7, 13)
    stamp(29)
    e("s_barrier")
    e("s_branch L_s_wfb")
    e("L_s_nostage:")
    e("s_waitcnt lgkmcnt(0)")
    e("s_barrier")
    e("s_add_u32 s5, s10, s3")
    e("s_cmp_lg_u32 s5, %d" % (56 + 3))
    e("s_cbranch_scc1 L_s_wo")
    e("v_lshlrev_b32 v21, 7, v1")
    e("v_add_u32 v21, 0x%x, v21" % ALIVE)
    poll("alive", 21, 40, sleep=8, n=8, step=8192)
    e("s_mov_b32 s5, %d" % NONCE_OFF)
    flag_store(5, 21)
    e("s_branch L_s_wo")
    e("L_s_nokv2:")
    e("s_setprio %d" % OPT["knprio"])
    e("s_mov_b32 s84, -1")
    e("s_waitcnt vmcnt(%d) lgkmcnt(0)" % NPF)
    e("s_add_u32 s4, s4, 0x%x" % NONCE_ADD)
    e("L_s_kgen:")
    alive("k")
    job_decode()
    stamp(11)
    e("s_lshr_b32 s5, s3, 1")
    e("s_lshl_b32 s5, s5, 4")
    e("s_lshr_b32 s72, s72, s5")
    e("s_lshl_b32 s72, s72, 16")
    e("s_lshr_b32 s73, s73, s5")
    e("s_lshl_b32 s73, s73, 16")
    c_hi = struct.unpack("<f", struct.pack("<I", f32(LOG2E) & 0xFFFFFF00))[0]
    c_lo = (LOG2E - c_hi) * math.log(2.0)
    e("v_mov_b32 v8, s72")
    e("v_mul_f32 v9, 0x%x, v8" % f32(c_hi))
    e("v_exp_f32 v9, v9")
    e("v_mul_f32 v8, 0x%x, v8" % f32(c_lo))
    e("v_fma_f32 v9, v9, v8, v9")
    e("v_cvt_pk_bf16_f32 v9, v9, v9")
    e("v_and_b32 v9, 0xffff0000, v9")
    ZR, ZI = (16, 17), (18, 19)
    E1, E8, EG, WW, TT, XX = (20, 22), (24, 26), (28, 30), (32, 34), (36, 38), (40, 42)
    R2, R4, R6 = (44, 46), (48, 50), (52, 54)
    OUT = 56

    def unp(d, src, m):
        if m == 0:
            e("v_lshlrev_b32 v%d, 16, v%d" % (d, src))
        else:
            e("v_and_b32 v%d, 0xffff0000, v%d" % (d, src))

    for m in range(2):
        unp(ZR[m], PRM + 0, m)
        unp(ZI[m], PRM + 1, m)
    for m in range(2):
        e("v_mul_f32 v%d, v9, v%d" % (ZR[m], ZR[m]))
        e("v_mul_f32 v%d, v9, v%d" % (ZI[m], ZI[m]))
    for m in range(2):
        e("v_mul_f32 v%d, 0x%x, v%d" % (ZR[m], f32(LOG2E), ZR[m]))
        e("v_mul_f32 v%d, 0x%x, v%d" % (ZI[m], f32(1.0 / (2 * math.pi)), ZI[m]))

    def cexp(dst, mult, conj):
        for m in range(2):
            if mult != 1:
                e("v_mul_f32 v%d, 0x%x, v%d" % (TT[m], f32(mult), ZR[m]))
                e("v_mul_f32 v%d, 0x%x, v%d" % (TT[m] + 1, f32(mult), ZI[m]))
                e("v_fract_f32 v%d, v%d" % (TT[m] + 1, TT[m] + 1))
            else:
                e("v_mov_b32 v%d, v%d" % (TT[m], ZR[m]))
                e("v_fract_f32 v%d, v%d" % (TT[m] + 1, ZI[m]))
        for m in range(2):
            e("v_exp_f32 v%d, v%d" % (TT[m], TT[m]))
            e("v_cos_f32 v%d, v%d" % (dst[m], TT[m] + 1))
            e("v_sin_f32 v%d, v%d" % (dst[m] + 1, TT[m] + 1))
        for m in range(2):
            e("v_pk_mul_f32 %s, %s, %s op_sel_hi:[1,0]%s" % (vr(dst[m], 2), vr(dst[m], 2), vr(TT[m], 2), " neg_hi:[1,0]" if conj else ""))

    cexp(E8, 8, True)
    e("s_mul_i32 s13, s3, %d" % S_STG)
    e("v_lshlrev_b32 v8, 3, v1")
    e("v_add_u32 v8, s13, v8")
    e("v_and_b32 v11, 31, v1")
    e("v_mul_u32_u24 v11, 528, v11")
    e("v_lshrrev_b32 v12, 5, v1")
    e("v_lshl_add_u32 v11, v12, 4, v11")
    e("v_add_u32 v11, s13, v11")
    ring = [0]

    def put(row, src):
        o = OUT + 2 * (ring[0] & 3)
        ring[0] += 1
        for m in range(2):
            e("v_cvt_pk_bf16_f32 v%d, v%d, v%d" % (o + m, src[m], src[m] + 1))
        e("ds_write_b64 v8, %s offset:%d" % (vr(o, 2), row * 528))

    e("v_mov_b32 v%d, 0x3f80" % OUT)
    e("v_mov_b32 v%d, 0x3f80" % (OUT + 1))
    e("ds_write_b64 v8, %s" % vr(OUT, 2))
    ring[0] = 1
    put(1, E8)
    for j in range(2, 8 if OPT["kloop"] else 32):
        src = E8 if j == 2 else XX
        if OPT["kloop"] and j == 4:
            e("s_mov_b32 s7, 0")
            e("L_s_kl:")
        for m in range(2):
            e("v_pk_mul_f32 %s, %s, %s op_sel_hi:[1,0]" % (vr(TT[m], 2), vr(src[m], 2), vr(E8[m], 2)))
        for m in range(2):
            e("v_pk_fma_f32 %s, %s, %s, %s op_sel:[1,1,0] op_sel_hi:[0,1,1] neg_lo:[1,0,0]" % (vr(XX[m], 2), vr(src[m], 2), vr(E8[m], 2), vr(TT[m], 2)))
        put(j, XX)
        if j == OPT["xtrow"] and not OPT["kloop"]:
            xt_flag("b")
    if OPT["kloop"]:
        e("v_add_u32 v8, %d, v8" % (4 * 528))
        e("s_cmp_lg_u32 s7, %d" % OPT["xtit"])
        e("s_cbranch_scc1 L_s_kl1")
        xt_flag("b")
        e("L_s_kl1:")
        e("s_add_u32 s7, s7, 1")
        e("s_cmp_lt_u32 s7, 7")
        e("s_cbranch_scc1 L_s_kl")
        e("v_subrev_u32 v8, %d, v8" % (28 * 528))
    BF, AF, DD = 64, 128, 192
    stamp(12)
    for s in range(16):
        e("ds_read_b128 %s, v11 offset:%d" % (vr(BF + 4 * s, 4), s * 32))
    stamp(13)
    cexp(E1, 1, False)
    cexp(EG, 256, False)

    def mul2(dst, src, mu):
        for m in range(2):
            e("v_pk_mul_f32 %s, %s, %s op_sel_hi:[1,0]" % (vr(TT[m], 2), vr(src[m], 2), vr(mu[m], 2)))
        for m in range(2):
            e("v_pk_fma_f32 %s, %s, %s, %s op_sel:[1,1,0] op_sel_hi:[0,1,1] neg_lo:[1,0,0]" % (vr(dst[m], 2), vr(src[m], 2), vr(mu[m], 2), vr(TT[m], 2)))

    for m in range(2):
        unp(XX[m], PRM + 2, m)
        unp(XX[m] + 1, PRM + 3, m)
        unp(R2[m], PRM + 4, m)
        unp(R2[m] + 1, PRM + 5, m)
    for m in range(2):
        e("v_mul_f32 v%d, v9, v%d" % (XX[m], XX[m]))
        e("v_mul_f32 v%d, v9, v%d" % (XX[m] + 1, XX[m] + 1))
    mul2(WW, R2, XX)
    put(0, WW)
    mul2(XX, WW, E1); put(1, XX)
    mul2(R2, XX, E1); put(2, R2)
    mul2(XX, R2, E1); put(3, XX)
    mul2(R4, XX, E1); put(4, R4)
    mul2(XX, R4, E1); put(5, XX)
    mul2(R6, XX, E1); put(6, R6)
    mul2(XX, R6, E1); put(7, XX)
    for row in (8, 12, 9, 13, 10, 14, 11, 15):
        mul2(WW, WW, EG); put(row, WW)
    mul2(R2, R2, EG); put(16, R2)
    mul2(R4, R4, EG); put(17, R4)
    mul2(R6, R6, EG); put(18, R6)
    mul2(R4, R4, EG); put(20, R4)
    mul2(R4, R4, EG); put(19, R4)
    stamp(14)
    for s in range(16):
        e("ds_read_b128 %s, v11 offset:%d" % (vr(AF + 4 * s, 4), s * 32))
    e("s_mul_i32 s5, s3, 3072")
    e("s_add_u32 s5, s5, %d" % S_PX)
    e("v_add_u32 v12, s5, v%d" % vL16)
    e("s_xor_b32 s6, s3, 1")
    e("s_mul_i32 s6, s6, 3072")
    e("s_add_u32 s6, s6, %d" % S_PX)
    e("v_add_u32 v13, s6, v%d" % vL16)
    for s in range(16):
        e("s_waitcnt lgkmcnt(%d)" % (15 - s))
        mfma(DD, AF + 4 * s, BF + 4 * s, None if s == 0 else DD)
    stamp(15)
    e("s_lshr_b32 s5, s3, 1")
    e("s_mul_i32 s14, s5, %d" % KR1)
    e("v_sub_u32 v14, 223, v1")
    e("v_lshrrev_b32 v15, 1, v14")
    e("v_mul_u32_u24 v15, 48, v15")
    e("v_and_b32 v14, 1, v14")
    e("v_lshl_add_u32 v14, v14, 4, v15")
    e("v_add_u32 v14, s14, v14")
    e("v_mov_b32 v16, 0")
    e("v_mov_b32 v17, 0")
    e("v_mov_b32 v18, 0")
    e("v_mov_b32 v19, 0")
    e("v_add_u32 v15, s14, v%d" % vL16)
    e("s_mov_b32 s74, 0")
    e("s_mov_b32 s75, -1")
    e("s_mov_b32 s76, 0xaaaaaaaa")
    e("s_mov_b32 s77, 0xaaaaaaaa")
    for q in range(3):
        e("ds_write_b128 v12, %s offset:%d" % (vr(DD + 4 * q, 4), q * 1024))
    e("s_waitcnt lgkmcnt(0)")
    e("s_barrier")
    stamp(3)
    e("s_setprio %d" % OPT["cprio"])
    for q in range(3):
        e("ds_read_b128 %s, v13 offset:%d" % (vr(64 + 4 * q, 4), q * 1024))
    e("s_waitcnt lgkmcnt(0)")
    for k in range(6):
        e("v_pk_add_f32 %s, %s, %s" % (vr(DD + 2 * k, 2), vr(DD + 2 * k, 2), vr(64 + 2 * k, 2)))
    D = lambda r: DD + r

    def nxt(dst, r):
        if r < 7:
            e("v_mov_b32_dpp v%d, v%d wave_rol:1 row_mask:0xf bank_mask:0xf" % (dst, D(r + 1)))
        e("v_mov_b32_dpp v%d, v%d wave_shl:1 row_mask:0xf bank_mask:0xf" % (dst, D(r)))

    def pk(d, lo, hi):
        e("v_cvt_pk_bf16_f32 v%d, v%d, v%d" % (d, lo, hi))

    e("s_bitcmp1_b32 s3, 0")
    e("s_cbranch_scc1 L_s_expB")
    e("ds_write_b128 v15, v[16:19] offset:6144")
    e("v_mov_b32 v32, s73")
    e("v_cmp_eq_u32 vcc, 0, v1")
    e("v_cndmask_b32 v32, 0, v32, vcc")
    e("v_add_f32 v%d, v%d, v32" % (D(0), D(0)))
    e("v_and_b32 v33, 31, v1")
    e("v_sub_u32 v33, 255, v33")
    e("v_lshrrev_b32 v34, 1, v33")
    e("v_mul_u32_u24 v34, 48, v34")
    e("v_and_b32 v33, 1, v33")
    e("v_lshl_add_u32 v33, v33, 4, v34")
    e("v_add_u32 v33, s14, v33")
    e("v_add_u32 v34, 8, v33")
    e("v_cndmask_b32 v33, v34, v33, s[74:75]")
    pk(36, D(3), D(2))
    pk(37, D(1), D(0))
    e("ds_write_b64 v33, v[36:37]")
    nxt(40, 4)
    e("v_cndmask_b32 v41, v%d, v40, s[74:75]" % D(10))
    e("v_cndmask_b32 v42, v%d, v%d, s[74:75]" % (D(9), D(8)))
    e("v_cndmask_b32 v43, v%d, v%d, s[74:75]" % (D(8), D(4)))
    pk(44, 40, 41)
    pk(45, 42, 42)
    pk(46, 42, 43)
    pk(47, D(4), D(4))
    e("ds_write_b128 v14, v[44:47]")
    e("s_branch L_s_expJ")
    e("L_s_expB:")
    e("v_subrev_u32 v14, 3072, v14")
    nxt(40, 5)
    e("v_cndmask_b32 v41, v%d, v40, s[76:77]" % D(5))
    e("v_cndmask_b32 v42, v%d, v40, s[74:75]" % D(11))
    e("v_cndmask_b32 v41, v%d, v41, s[74:75]" % D(11))
    e("v_cndmask_b32 v43, v%d, v%d, s[74:75]" % (D(11), D(5)))
    pk(44, 40, 40)
    pk(45, 42, 41)
    pk(46, 43, D(5))
    pk(47, D(5), D(5))
    e("ds_write_b128 v14, v[44:47] offset:1536")
    for r in (6, 7):
        o = 48 if r == 6 else 56
        nxt(o, r)
        e("v_cndmask_b32 v%d, v%d, v%d, s[76:77]" % (o + 1, D(r), o))
        pk(o + 4, o, o)
        pk(o + 5, o, o + 1)
        pk(o + 6, D(r), D(r))
        pk(o + 7, D(r), D(r))
        if r == 6:
            e("ds_write_b128 v14, %s" % vr(o + 4, 4))
        else:
            e("v_subrev_u32 v14, 1536, v14")
            e("s_mov_b32 exec_hi, 0")
            e("ds_write_b128 v14, %s" % vr(o + 4, 4))
            e("s_mov_b32 exec_hi, -1")
    e("L_s_expJ:")
    for k in range(OPT["dummy"]):
        e("v_add_u32 v%d, 1, v%d" % (200 + (k & 7), 200 + (k & 7)))
    stamp(21)
    e("s_lshr_b32 s5, s%d, 5" % S_CP)
    e("s_lshl_b32 s5, s5, 13")
    e("s_add_u32 s5, s5, 0x%x" % FLAG_XT)
    e("v_lshlrev_b32 v13, 7, v1")
    e("v_add_u32 v13, s5, v13")
    e("v_lshrrev_b32 v10, 1, v1")
    e("v_and_b32 v11, 1, v1")
    e("v_mul_u32_u24 v12, 7168, v10")
    e("v_lshl_add_u32 v12, v11, 4, v12")
    e("s_mul_i32 s74, s3, %d" % (64 * 7168))
    e("s_lshl_b32 s5, s%d, 5" % S_CP)
    e("s_add_u32 s74, s74, s5")
    e("s_add_u32 s74, s74, 0x%x" % XT)
    e("s_add_u32 s75, s74, %d" % (32 * 7168))
    e("v_mul_u32_u24 v15, %d, v11" % (4 * XCS))
    e("v_lshl_add_u32 v15, v10, 4, v15")
    e("s_lshl_b32 s5, s3, 10")
    e("s_add_u32 s5, s5, %d" % XC0)
    e("v_add_u32 v15, s5, v15")
    e("s_cmp_lg_u32 s3, 0")
    e("s_cbranch_scc1 L_s_nohead")
    for k in range(4):
        e("v_mov_b32 v%d, 0" % (16 + k))
    e("v_bfe_u32 v22, v1, 2, 3")
    e("v_mul_u32_u24 v22, %d, v22" % XCS)
    e("v_and_b32 v23, 3, v1")
    e("v_lshl_add_u32 v22, v23, 4, v22")
    e("ds_write_b128 v22, v[16:19] offset:%d" % XC0)
    e("L_s_nohead:")
    poll("xt", 13, 14, sleep=2)
    stamp(19)
    e("s_setprio %d" % OPT["cprio"])
    e("buffer_load_dwordx4 v[16:19], v12, s[%d:%d], s74 offen sc1" % (SWS, SWS + 3))
    e("buffer_load_dwordx4 v[20:23], v12, s[%d:%d], s75 offen sc1" % (SWS, SWS + 3))
    e("v_and_b32 v13, 7, v1")
    e("v_lshlrev_b32 v13, 7, v13")
    e("buffer_load_dword v14, v13, s[%d:%d], s%d offen sc1" % (SWS, SWS + 3, S_WF))
    e("v_add_u32 v24, %d, v15" % (XCS + 60))
    e("v_add_u32 v25, %d, v15" % (3 * XCS + 56))
    e("v_add_u32 v26, %d, v15" % (2 * XCS + 56))
    for i in range(0 if OPT["xxc"] else 2):
        r = 16 + 4 * i
        o = 512 * i
        e("s_waitcnt vmcnt(%d)" % (2 - i))
        for k in range(3):
            e("v_alignbit_b32 v%d, v%d, v%d, 16" % (28 + k, r + k + 1, r + k))
        for a in (24, 25):
            e("ds_write2_b32 v%d, v%d, v%d offset0:%d offset1:%d" % (a, r, r + 1, o // 4, o // 4 + 1))
            e("ds_write2_b32 v%d, v%d, v%d offset0:%d offset1:%d" % (a, r + 2, r + 3, o // 4 + 2, o // 4 + 3))
        for a, b0 in ((15, 62), (26, 2)):
            e("ds_write_b16 v%d, v%d offset:%d" % (a, r, o + b0))
            e("ds_write2_b32 v%d, v28, v29 offset0:%d offset1:%d" % (a, (o + b0 + 2) // 4, (o + b0 + 2) // 4 + 1))
            e("ds_write_b32 v%d, v30 offset:%d" % (a, o + b0 + 10))
            e("ds_write_b16_d16_hi v%d, v%d offset:%d" % (a, r + 3, o + b0 + 14))
    vX, vK = 8, 9
    e("v_and_b32 v10, 3, v1")
    e("v_mul_u32_u24 v%d, %d, v10" % (vX, XCS))
    e("v_bfe_u32 v10, v1, 2, 2")
    e("v_lshl_add_u32 v%d, v10, 3, v%d" % (vX, vX))
    e("v_lshrrev_b32 v10, 4, v1")
    e("v_lshl_add_u32 v%d, v10, 4, v%d" % (vX, vX))
    e("v_and_b32 v11, 15, v1")
    e("v_sub_u32 v11, 15, v11")
    e("v_lshrrev_b32 v12, 5, v1")
    e("v_add_u32 v11, v11, v12")
    e("v_mul_u32_u24 v%d, 48, v11" % vK)
    e("v_and_b32 v10, 1, v10")
    e("v_lshl_add_u32 v%d, v10, 4, v%d" % (vK, vK))
    e("s_lshr_b32 s5, s3, 1")
    e("s_mul_i32 s5, s5, %d" % (4 * XCS))
    e("s_add_u32 s5, s5, %d" % (XC0 + 32))
    e("s_and_b32 s6, s3, 1")
    e("s_lshl_b32 s7, s6, 8")
    e("s_add_u32 s5, s5, s7")
    e("v_add_u32 v%d, s5, v%d" % (vX, vX))
    e("s_mul_i32 s7, s6, 384")
    e("s_add_u32 s7, s7, s14")
    e("v_add_u32 v%d, s7, v%d" % (vK, vK))
    Y0 = 16
    FA = lambda st, d: 48 + 64 * st + 4 * d
    FB = lambda st, q: 80 + 64 * st + 4 * q
    e("s_waitcnt vmcnt(0)")
    e("v_cmp_ne_u32 vcc, s4, v14")
    e("s_cmp_eq_u64 vcc, 0")
    e("s_cselect_b32 s87, 1, 0")
    e("s_cselect_b32 s%d, 32768, 0" % (SWT + 2))
    e("s_cmp_lg_u32 s3, s%d" % S_CB)
    e("s_cselect_b32 s87, 1, s87")
    e("s_cselect_b32 s%d, 0, s%d" % (SWT + 2, SWT + 2))
    e("s_waitcnt lgkmcnt(0)")
    e("s_barrier")
    stamp(4)

    def frag_reads(g):
        st = g & 1
        R = []
        for k in range(8):
            R.append("ds_read_b128 %s, v%d offset:%d" % (vr(FA(st, k), 4), vK, 96 * g + 768 * (7 - k)))
            R.append("ds_read_b64 %s, v%d offset:%d" % (vr(FB(st, k), 2), vX, 512 * k + 64 * g))
            R.append("ds_read_b64 %s, v%d offset:%d" % (vr(FB(st, k) + 2, 2), vX, 512 * k + 64 * g + 8))
        return R

    if not OPT["xconv"]:
        for r in frag_reads(0):
            e(r)
        e("s_setprio %d" % OPT["mprio"])
        if OPT["cpad"] >= 0:
            e(".p2align 6")
            for k in range(OPT["cpad"]):
                e("s_nop 0")
        for g in range(4):
            st = g & 1
            nxt_reads = frag_reads(g + 1) if g < 3 else []
            e("s_waitcnt lgkmcnt(0)")
            n = 0
            for q in range(8):
                for j in range(q, 8):
                    c = "0" if (g == 0 and q == 0) else vr(Y0 + 4 * j, 4)
                    e("v_mfma_f32_16x16x32_bf16 %s, %s, %s, %s" % (vr(Y0 + 4 * j, 4), vr(FA(st, j - q), 4), vr(FB(st, q), 4), c))
                    n += 1
                    if n <= len(nxt_reads):
                        e(nxt_reads[n - 1])
                    if n % 7 == OPT["wpos"]:
                        wld(12 + 5 * g + n // 7)
    e("s_setprio %d" % OPT["cprio"])
    stamp(5)
    e("s_lshl_b32 s5, s3, 13")
    e("s_add_u32 s5, s5, %d" % L_CPX)
    e("v_add_u32 v10, s5, v%d" % vL16)
    e("s_lshl_b32 s7, s3, 11")
    e("s_add_u32 s7, s7, %d" % L_CPX)
    e("v_add_u32 v11, s7, v%d" % vL16)
    e("s_mul_i32 s5, s3, %d" % (16 * 224))
    e("s_add_u32 s5, s5, s%d" % S_CP)
    e("s_lshl_b32 s5, s5, 7")
    e("s_add_u32 s13, s5, 0x%x" % B2)
    e("v_lshrrev_b32 v12, 5, v1")
    e("v_mul_u32_u24 v12, %d, v12" % (4 * 224 * 128))
    e("v_and_b32 v13, 31, v1")
    e("v_lshl_add_u32 v12, v13, 2, v12")
    for k in range(8):
        e("ds_write_b128 v10, %s offset:%d" % (vr(Y0 + 4 * k, 4), k * 1024))
    for k in range(12):
        wld(k)
    lds_flags_clear()
    e("s_waitcnt lgkmcnt(0)")
    e("s_barrier")
    for w in range(4):
        for q in range(2):
            e("ds_read_b128 %s, v11 offset:%d" % (vr(48 + 8 * w + 4 * q, 4), w * 8192 + q * 1024))
    e("s_lshl_b32 s7, s%d, 2" % S_CP)
    e("s_add_u32 s7, s7, s3")
    e("s_lshl_b32 s7, s7, 7")
    e("s_add_u32 s7, s7, 0x%x" % FLAG_B)
    e("s_waitcnt lgkmcnt(0)")
    for k in range(4):
        e("v_pk_add_f32 %s, %s, %s" % (vr(48 + 2 * k, 2), vr(48 + 2 * k, 2), vr(56 + 2 * k, 2)))
        e("v_pk_add_f32 %s, %s, %s" % (vr(64 + 2 * k, 2), vr(64 + 2 * k, 2), vr(72 + 2 * k, 2)))
    for k in range(8):
        e("v_cvt_pk_bf16_f32 v%d, v%d, v%d" % (80 + k, 48 + k, 64 + k))
    for k in range(4):
        e("v_permlane16_swap_b32 v%d, v%d" % (80 + 2 * k, 81 + 2 * k))
    order = sorted(range(8), key=lambda k: 8 * (k >> 2) + 2 * (k & 1) + ((k >> 1) & 1))
    prev = 0
    for k in order:
        tt = 8 * (k >> 2) + 2 * (k & 1) + ((k >> 1) & 1)
        if tt != prev:
            e("s_add_u32 s13, s13, %d" % ((tt - prev) * 28672))
            prev = tt
        e("buffer_store_dword v%d, v12, s[%d:%d], s13 offen sc1" % (80 + k, SWS, SWS + 3))
    e("s_waitcnt vmcnt(0)")
    flag_store(7, 13)
    stamp(6)
    e("s_cmp_lg_u32 s87, 0")
    e("s_cbranch_scc1 L_s_wo")
    e("L_s_wfb:")
    e("v_and_b32 v13, 7, v1")
    e("v_lshlrev_b32 v13, 7, v13")
    e("v_add_u32 v13, s%d, v13" % S_WF)
    poll("w", 13, 14, sleep=4)
    e("s_mov_b32 s%d, 32768" % (SWT + 2))
    for k in range(32):
        wld(k)
    e("L_s_wo:")
    srd(SOUT, P_OUT, 2048 * 896)
    vFA, vOA, vOW = 11, 12, 20
    e("s_lshl_b32 s5, s%d, 4" % S_TT)
    e("s_lshl_b32 s6, s3, 2")
    e("s_add_u32 s5, s5, s6")
    e("s_lshl_b32 s%d, s5, 11" % S_OB)
    e("s_add_u32 s%d, s%d, 0x%x" % (S_OB, S_OB, OW))
    e("s_add_u32 s%d, s%d, 4096" % (S_OB + 1, S_OB))
    e("s_lshl_b32 s5, s5, 7")
    e("s_add_u32 s5, s5, 0x%x" % FLAG_O)
    e("v_and_b32 v13, 3, v1")
    e("v_lshlrev_b32 v16, 7, v13")
    e("v_bfe_u32 v13, v1, 2, 1")
    e("v_mul_u32_u24 v13, 0x%x, v13" % (FLAG_O2 - FLAG_O))
    e("v_add3_u32 v%d, s5, v16, v13" % vFA)
    e("s_lshl_b32 s5, s3, 13")
    e("v_add_u32 v%d, s5, v%d" % (vOW, vL16))
    e("v_and_b32 v14, 31, v1")
    e("v_lshrrev_b32 v15, 5, v1")
    e("v_mul_u32_u24 v%d, 896, v14" % vOA)
    e("v_lshl_add_u32 v%d, v15, 4, v%d" % (vOA, vOA))
    e("s_mul_i32 s74, s%d, 28672" % S_TT)
    e("s_lshl_b32 s5, s%d, 8" % S_CG)
    e("s_add_u32 s74, s74, s5")
    e("s_lshl_b32 s5, s%d, 6" % S_CB)
    e("s_add_u32 s74, s74, s5")
    e("s_lshr_b32 s%d, s4, 16" % S_TAG)
    e("s_and_b32 s%d, s%d, 0xbfff" % (S_TAG, S_TAG))
    e("s_lshl_b32 s87, s%d, 6" % S_CG)
    e("s_lshl_b32 s5, s%d, 4" % S_CB)
    e("s_add_u32 s87, s87, s5")
    e("s_lshr_b32 s5, s%d, 4" % S_TT)
    e("s_lshl_b32 s6, s87, 2")
    e("s_add_u32 s5, s5, s6")
    e("s_lshl_b32 s5, s5, 7")
    e("s_add_u32 s5, s5, 0x%x" % FLAG_B)
    e("v_and_b32 v13, 15, v1")
    e("v_lshlrev_b32 v13, 9, v13")
    e("v_add_u32 v21, s5, v13")
    e("v_lshlrev_b32 v16, 8, v15")
    e("v_lshl_add_u32 v16, v14, 2, v16")
    e("v_lshlrev_b32 v17, 3, v14")
    e("s_mul_i32 s5, s%d, 224" % S_TT)
    e("s_add_u32 s87, s5, s87")
    e("s_lshl_b32 s87, s87, 7")
    e("s_add_u32 s87, s87, 0x%x" % B2)
    e("s_lshl_b32 s15, s%d, 8" % S_TT)
    e("s_add_u32 s15, s15, 0x%x" % G1)
    stamp(16)
    poll("b", 21, 14, sleep=OPT["bsleep"])
    BB, OL, DO, OF = 24, 32, 64, 80
    for q in range(4):
        for p in range(2):
            e("buffer_load_dword v%d, v16, s[%d:%d], s87 offen offset:%d sc1" % (BB + 2 * q + p, SWS, SWS + 3, (4 * q + p) * 128))
    e("buffer_load_dwordx2 v[18:19], v17, s[%d:%d], s15 offen sc1" % (SWS, SWS + 3))
    e("s_mov_b32 s5, 0")
    e("s_branch L_s_g1w")
    e("L_s_g1:")
    e("buffer_load_dwordx2 v[18:19], v17, s[%d:%d], s15 offen sc1" % (SWS, SWS + 3))
    e("L_s_g1w:")
    e("s_waitcnt vmcnt(0)")
    e("v_cmp_ne_u32 vcc, s4, v19")
    e("s_cmp_eq_u64 vcc, 0")
    e("s_cbranch_scc1 L_s_g1ok")
    e("s_add_u32 s5, s5, 1")
    e("s_cmp_lt_u32 s5, %d" % OPT["spin"])
    e("s_cbranch_scc1 L_s_g1")
    e("L_s_g1ok:")
    for k in range(8):
        e("v_lshlrev_b32 v%d, 16, v%d" % (DO + 2 * k, BB + k))
        e("v_and_b32 v%d, 0xffff0000, v%d" % (DO + 2 * k + 1, BB + k))
    for k in range(8):
        e("v_pk_mul_f32 %s, %s, v[18:19] op_sel_hi:[1,0]" % (vr(DO + 2 * k, 2), vr(DO + 2 * k, 2)))
    e("v_not_b32 v14, s4")
    S_D, S_R = 82, 83
    RING = (16, 24, 28, 20)
    if OPT["prog"]:
        e("v_mov_b32 v15, v%d" % vOW)
        vOW = 15
        e("s_lshl_b32 s5, s3, 2")
        e("s_add_u32 s5, s5, %d" % LFL)
        e("v_mov_b32 v8, s5")
        e("v_mov_b32 v9, 1")
        e("s_cmp_lg_u32 s3, s%d" % S_CB)
        e("s_cselect_b32 s%d, 15, 0" % S_D)
    stamp(8)
    e("s_setprio %d" % OPT["oprio"])
    e("s_mov_b32 s%d, 0" % S_H)
    e("s_mov_b32 s%d, 0" % S_V)
    e("s_mov_b32 s%d, 0" % S_F)
    e("s_mov_b32 s%d, 0" % S_U)
    e("s_mov_b32 s15, 0")
    if OPT["timing"] and OPT["pollcnt"]:
        e("s_mov_b32 s90, 0")
        e("s_mov_b32 s91, -1")
        e("s_mov_b32 s92, -1")
    e("L_or:")
    if OPT["dthr"] < 5:
        e("s_bcnt1_i32_b32 s5, s%d" % (S_H if OPT["dh"] else S_V))
        e("s_cmp_ge_u32 s5, %d" % OPT["dthr"])
        e("s_cselect_b32 s5, 15, s%d" % S_H)
        e("s_andn2_b32 s%d, s5, s%d" % (S_P, S_V))
    else:
        e("s_andn2_b32 s%d, s%d, s%d" % (S_P, S_H, S_V))
    e("s_cbranch_scc0 L_ol3")
    for t in range(4):
        e("s_bitcmp1_b32 s%d, %d" % (S_P, t))
        e("s_cbranch_scc0 L_ol%d" % t)
        e("s_bitcmp1_b32 s%d, %d" % (S_U, t))
        e("s_cselect_b32 s5, 0x%x, 0" % (OW2 - OW))
        e("s_add_u32 s5, s5, s%d" % (S_OB + (t >> 1)))
        for c in range(2):
            e("buffer_load_dwordx4 %s, v%d, s[%d:%d], s5 offen offset:%d%s" % (vr(OL + 8 * t + 4 * c, 4), vL16, SWS, SWS + 3, (t & 1) * 2048 + c * 1024, ["", " sc1", " sc0", " nt"][OPT["tscope"]]))
        e("L_ol%d:" % t)
    e("s_and_b32 s5, s15, 7")
    e("s_cmp_eq_u32 s5, 7")
    e("s_cselect_b32 exec_lo, 0xff, 15")
    e("s_mov_b32 exec_hi, 0")
    e("buffer_load_dword v14, v%d, s[%d:%d], 0 offen sc1" % (vFA, SWS, SWS + 3))
    e("s_mov_b64 exec, -1")
    if OPT["prog"]:
        if OPT["gp0"]:
            e("s_cmp_lg_u32 s%d, 0" % S_P)
            e("s_cbranch_scc1 L_gv")
        e("L_grp:")
        e("ds_read_b32 v10, v6")
        e("s_waitcnt lgkmcnt(0)")
        e("v_cmp_eq_u32 vcc, 1, v10")
        e("s_andn2_b32 s%d, vcc_lo, s%d" % (S_R, S_D))
        e("s_and_b32 s%d, s%d, 15" % (S_R, S_R))
        e("s_cbranch_scc0 L_g3")
        for g in range(4):
            e("s_bitcmp1_b32 s%d, %d" % (S_R, g))
            e("s_cbranch_scc0 L_g%d%s" % (g, "" if g == 3 or not OPT["gone"] else "n"))
            for k in range(3):
                e("ds_read_b128 %s, v%d offset:%d" % (vr(RING[k], 4), vL16, (8 * g + k) * 1024))
            e("s_bitset1_b32 s%d, %d" % (S_D, g))
            for k in range(8):
                if k + 3 < 8:
                    e("ds_read_b128 %s, v%d offset:%d" % (vr(RING[(k + 3) & 3], 4), vL16, (8 * g + k + 3) * 1024))
                e("s_waitcnt lgkmcnt(%d)" % min(3, 7 - k))
                mfma(DO + 16 * g, WO + 4 * (8 * g + k), RING[k & 3], DO + 16 * g if (g == 0 or k) else None)
            if OPT["gone"] and g < 3:
                e("s_branch L_g3")
                e("L_g%dn:" % g)
            else:
                e("L_g%d:" % g)
        e("s_cmp_lg_u32 s%d, 15" % S_V)
        e("s_cbranch_scc1 L_gv")
        e("s_cmp_eq_u32 s%d, 15" % S_D)
        e("s_cbranch_scc1 L_od")
        if OPT["gsleep"]:
            e("s_sleep %d" % OPT["gsleep"])
        e("s_add_u32 s15, s15, 1")
        e("s_cmp_lt_u32 s15, %d" % (8 * OPT["spin"]))
        e("s_cbranch_scc1 L_grp")
        e("s_branch L_od")
        e("L_gv:")
    e("s_cmp_eq_u32 s%d, 0" % S_P)
    e("s_waitcnt vmcnt(0)")
    e("v_cmp_eq_u32 vcc, s4, v14")
    e("s_mov_b32 s%d, vcc_lo" % S_H)
    e("s_cbranch_scc1 L_oc3")
    for t in range(4):
        e("s_bitcmp1_b32 s%d, %d" % (S_P, t))
        e("s_cbranch_scc0 L_oc%d" % t)
        e("v_cmp_ne_u32_sdwa vcc, v%d, s%d src0_sel:WORD_1 src1_sel:DWORD" % (OL + 8 * t + 3, S_TAG))
        e("v_cmp_ne_u32_sdwa s[6:7], v%d, s%d src0_sel:WORD_1 src1_sel:DWORD" % (OL + 8 * t + 7, S_TAG))
        e("s_or_b64 vcc, vcc, s[6:7]")
        e("s_cbranch_scc1 L_oc%d" % t)
        e("ds_write_b128 v%d, %s offset:%d" % (vOW, vr(OL + 8 * t, 4), 2048 * t))
        e("ds_write_b128 v%d, %s offset:%d" % (vOW, vr(OL + 8 * t + 4, 4), 2048 * t + 1024))
        e("s_bitset1_b32 s%d, %d" % (S_V, t))
        e("L_oc%d:" % t)
    e("s_andn2_b32 s5, s%d, s%d" % (S_P, S_V))
    e("s_or_b32 s%d, s%d, s5" % (S_F, S_F))
    e("s_lshr_b32 s6, s%d, 4" % S_H)
    e("s_orn2_b32 s5, s%d, s%d" % (S_F, S_H))
    e("s_and_b32 s%d, s6, s5" % S_U)
    e("s_or_b32 s%d, s%d, s6" % (S_H, S_H))
    e("s_and_b32 s%d, s%d, 15" % (S_H, S_H))
    if OPT["timing"] and OPT["pollcnt"]:
        e("s_andn2_b32 s5, s%d, s%d" % (S_P, S_V))
        e("s_bcnt1_i32_b32 s5, s5")
        e("s_add_u32 s90, s90, s5")
        e("s_memrealtime s[96:97]")
        e("s_waitcnt lgkmcnt(0)")
        e("s_cmp_eq_u32 s%d, 15" % S_H)
        e("s_cselect_b32 s5, s96, -1")
        e("s_min_u32 s91, s91, s5")
        e("s_cmp_lg_u32 s%d, 0" % S_H)
        e("s_cselect_b32 s5, s96, -1")
        e("s_min_u32 s92, s92, s5")
        e("v_writelane_b32 v0, s90, 27")
        e("v_writelane_b32 v0, s91, 25")
        e("v_writelane_b32 v0, s92, 28")
        e("v_writelane_b32 v0, s15, 24")
        e("s_min_u32 s5, s15, 15")
        e("s_lshl_b32 s5, s5, 1")
        e("s_add_u32 m0, s5, 32")
        e("s_lshl_b32 s5, s%d, 8" % S_V)
        e("s_or_b32 s5, s5, s%d" % S_P)
        e("s_lshl_b32 s6, s%d, 16" % S_H)
        e("s_or_b32 s5, s5, s6")
        e("v_writelane_b32 v0, s96, m0")
        e("s_add_u32 m0, m0, 1")
        e("s_nop 3")
        e("v_writelane_b32 v0, s5, m0")
    e("s_cmp_eq_u32 s%d, 15" % S_V)
    e("s_cbranch_scc1 %s" % ("L_ov" if OPT["prog"] else "L_od"))
    e("s_andn2_b32 s5, s%d, s%d" % (S_H, S_V))
    e("s_cbranch_scc1 L_ob")
    if OPT["dthr"] < 5 and not OPT["dsleep"]:
        e("s_cmp_lg_u32 s%d, 0" % S_V)
        e("s_cbranch_scc1 L_ob")
    if OPT["osleep"]:
        e("s_sleep %d" % OPT["osleep"])
    e("L_ob:")
    e("s_add_u32 s15, s15, 1")
    e("s_cmp_lt_u32 s15, %d" % OPT["spin"])
    e("s_cbranch_scc1 L_or")
    if OPT["prog"]:
        e("s_mov_b32 s%d, 15" % S_V)
        e("L_ov:")
        e("s_setprio 3")
        e("s_waitcnt lgkmcnt(0)")
        e("s_mov_b64 exec, 1")
        e("ds_write_b32 v8, v9")
        e("s_mov_b64 exec, -1")
        stamp(9)
        e("s_cmp_lg_u32 s3, s%d" % S_CB)
        e("s_cbranch_scc1 L_s_fin")
        e("s_branch L_grp")
        e("L_od:")
        stamp(7)
        e("s_waitcnt vmcnt(0)")
        e("s_nop 7")
        e("s_nop 3")
        for (d, a_) in ((0, 1), (2, 3), (0, 2)):
            for k in range(8):
                e("v_pk_add_f32 %s, %s, %s" % (vr(DO + 16 * d + 2 * k, 2), vr(DO + 16 * d + 2 * k, 2), vr(DO + 16 * a_ + 2 * k, 2)))
    else:
        e("L_od:")
        e("s_setprio 3")
        e("s_waitcnt lgkmcnt(0)")
        stamp(9)
        e("s_barrier")
        stamp(7)
        e("s_cmp_lg_u32 s3, s%d" % S_CB)
        e("s_cbranch_scc1 L_s_fin")
        for k in range(7):
            e("ds_read_b128 %s, v%d offset:%d" % (vr(OF + 4 * k, 4), vL16, k * 1024))
        for k in range(32):
            if k + 7 < 32:
                e("ds_read_b128 %s, v%d offset:%d" % (vr(OF + 4 * ((k + 7) & 7), 4), vL16, (k + 7) * 1024))
            e("s_waitcnt lgkmcnt(%d)" % min(7, 31 - k))
            mfma(DO, WO + 4 * k, OF + 4 * (k & 7), DO)
    for k in range(8):
        e("v_cvt_pk_bf16_f32 v%d, v%d, v%d" % (48 + k, DO + 2 * k, DO + 2 * k + 1))
    for (x_, y_) in ((48, 50), (49, 51), (52, 54), (53, 55)):
        e("v_permlane32_swap_b32 v%d, v%d" % (x_, y_))
    e("buffer_store_dwordx4 v[48:51], v%d, s[%d:%d], s74 offen" % (vOA, SOUT, SOUT + 3))
    e("buffer_store_dwordx4 v[52:55], v%d, s[%d:%d], s74 offen offset:32" % (vOA, SOUT, SOUT + 3))
    e("L_s_fin:")
    if OPT["timing"]:
        e("s_waitcnt vmcnt(0)")
    stamp(10)
    dbg_stamp(248, 256, 8, False)
    stamp_flush()
    e("L_end:")
    e("s_endpgm")


prologue()
if OPT["sfirst"]:
    role_s()
    if OPT["aal"]:
        e(".p2align %d" % OPT["aal"])
    e("L_roleA:")
    role_a()
else:
    role_a()
    role_s()
if OPT["cpf"]:
    e("L_last:")
    e("s_endpgm")

lines, nops = asmcheck.fix_hazards(L, verbose=bool(OPT.get("v", 0)))
errs = asmcheck.check_waitcnt(lines)
for er in errs:
    print("WAITCNT?", er, file=sys.stderr)
print("instructions: %d, wait states inserted: %d" % (len(lines), nops), file=sys.stderr)

ref = open("cdna_kernels/%s.s.ref" % NAME).read()
head = ref[: ref.index("; Override launch")]
text = head + """; Override launch geometry by editing the next line (default: block=256,
; grid=ceil(out_elems/256), lds=0). Harness parses it; keep it on one line.
; @launch grid=(512,1,1) block=(256,1,1) lds=81920
.amdgcn_target "amdgcn-amd-amdhsa--gfx950"
.text
.globl %s_kernel
.p2align 8
.type %s_kernel,@function
%s_kernel:
""" % (NAME, NAME, NAME) + "\n".join(lines) + """
.section .rodata,"a"
.p2align 6
.amdhsa_kernel %s_kernel
  .amdhsa_next_free_vgpr 256
  .amdhsa_next_free_sgpr 102
  .amdhsa_accum_offset 256
  .amdhsa_group_segment_fixed_size 0
  .amdhsa_kernarg_size 144
  .amdhsa_user_sgpr_count 2
  .amdhsa_user_sgpr_kernarg_segment_ptr 1
  .amdhsa_system_sgpr_workgroup_id_x 1
.end_amdhsa_kernel
""" % NAME
open(sys.argv[1], "w").write(text)
```

```python
import sys, struct, math, os
sys.path.insert(0, os.path.dirname(os.path.abspath(__file__)))
import asmcheck

NAME = "gated_mix__grouped_kv_mqa__ssm_conv_s4__prompt"
OPT = dict(timing=0, force_fb=0, spin=400000, dbgts=0, nst=2, cprio=2, aprio=1, kvsleep=6, splitA=6, kprio=2, a1prio=3, xconv=0, xwo=0, xxc=0, xkgen=0, xpre=2, touch=0, a0prio=0, wopf=0, wothr=3, obar=1, mprio=0, pollcnt=0, xtrow=12, nslot=8, osleep=2, hintpos=4, oprio=0, otouch=0, nonear=0, early=0, eb=5, pmask=1, kvmask=0x552b552b, dummy=0, split16=0, agg=1, agsleep=1, xtouch=0, ptouch=0, tscope=1, nofar=2, wpos=4, withr=0, dthr=2, dh=1, bsleep=12, dsleep=1, grp=0, gperm=0x3210, prog=0, gsleep=0, gone=0, gp0=0, itst=0, kloop=1, xtit=2, knprio=2, t2=1, agprio=1, apad=1, spad=-1, cpad=-1, sal=6, sfirst=1, aal=0, cpf=0, pal=0, kasync=0, kvst=0, kvf=1, c32=0)
for a in sys.argv[2:]:
    k, v = a.split("=")
    OPT[k] = int(v, 0)

NONCE_OFF = 12
FLAG_KV = 0x1000 + 12
FLAG_O = 0x10000 + 12
FLAG_B = 0x30000 + 12
ALIVE = 0x50000 + 12
G1 = 0x60000
FLAG_XT = 0x70000 + 12
XT = 0x600000
KV = 0x100000
OW = 0x200000
B2 = 0x400000
FLAG_O2 = 0x80000 + 12
OW2 = 0x900000
FLAG_W = 0xB0000 + 12
WT = 0xC00000
FLAG_AG = 0xA0000 + 12
FLAG_AG2 = 0xA8000 + 12
TSB = 0x800000
WS_BYTES = 0x1000000
NONCE_ADD = 0x9E3779B9

L = []


def e(s):
    for x in s.split("\n"):
        x = x.strip()
        if x:
            L.append(x if x.endswith(":") else "    " + x)


def f32(x):
    return struct.unpack("<I", struct.pack("<f", x))[0]


def vr(a, n=1):
    return "v%d" % a if n == 1 else "v[%d:%d]" % (a, a + n - 1)


def sr(a, n=1):
    return "s%d" % a if n == 1 else "s[%d:%d]" % (a, a + n - 1)


def srd(d, base, nbytes, add=None):
    if add is None:
        e("s_mov_b32 s%d, s%d" % (d, base))
        e("s_mov_b32 s%d, s%d" % (d + 1, base + 1))
    else:
        e("s_add_u32 s%d, s%d, %s" % (d, base, add))
        e("s_addc_u32 s%d, s%d, 0" % (d + 1, base + 1))
    e("s_mov_b32 s%d, 0x%x" % (d + 2, nbytes))
    e("s_mov_b32 s%d, 0x20000" % (d + 3))


def mfma(d, a, b, c):
    e("v_mfma_f32_32x32x16_bf16 %s, %s, %s, %s" % (vr(d, 16), vr(a, 4), vr(b, 4), "0" if c is None else vr(c, 16)))


P_X, P_WQ, P_WK, P_WV, P_WO = 16, 18, 20, 22, 24
P_ARE, P_AIM, P_BRE, P_BIM, P_CRE, P_CIM, P_LDT, P_DSK, P_GW, P_OUT, P_WS = 28, 30, 32, 34, 36, 38, 40, 42, 44, 46, 48
SX, SWS = 52, 56
S_WAVE, S_NONCE = 3, 4
V_LANE = 1
LOG2E = 1.4426950408889634

stamp_n = [0]


def stamp(idx):
    if OPT["timing"]:
        e("s_memrealtime s[96:97]")
        e("s_waitcnt lgkmcnt(0)")
        e("v_writelane_b32 v0, s96, %d" % idx)


def stampd(reg):
    if OPT["timing"]:
        e("s_memrealtime s[%d:%d]" % (reg, reg + 1))


def stampw(idx, reg):
    if OPT["timing"]:
        e("v_writelane_b32 v0, s%d, %d" % (reg, idx))


def cstamp(idx):
    if OPT["timing"]:
        e("s_memtime s[96:97]")
        e("s_waitcnt lgkmcnt(0)")
        e("v_writelane_b32 v0, s96, %d" % idx)


def dbg_stamp(lo, hi, slot0, start):
    if not OPT["dbgts"]:
        return
    tag = "%d" % slot0
    e("s_sub_u32 s96, s2, %d" % lo)
    e("s_cmp_ge_u32 s96, %d" % (hi - lo))
    e("s_cbranch_scc1 L_dbg%s" % tag)
    e("s_cmp_lg_u32 s3, 0")
    e("s_cbranch_scc1 L_dbg%s" % tag)
    if not start:
        e("s_waitcnt vmcnt(0)")
        e("s_memrealtime s[94:95]")
        e("s_waitcnt lgkmcnt(0)")
    e("s_mov_b32 s72, s50")
    e("s_mov_b32 s73, s51")
    e("s_mov_b32 s74, 256")
    e("s_mov_b32 s75, 0x20000")
    e("s_add_u32 s96, s96, %d" % slot0)
    e("s_lshl_b32 s96, s96, 2")
    e("v_mov_b32 v2, s94")
    e("s_mov_b32 exec_lo, 1")
    e("s_mov_b32 exec_hi, 0")
    e("buffer_store_dword v2, off, s[72:75], s96")
    e("s_mov_b64 exec, -1")
    e("L_dbg%s:" % tag)


def stamp_flush():
    if OPT["timing"]:
        e("s_lshl_b32 s96, s2, 2")
        e("s_add_u32 s96, s96, s3")
        e("s_lshl_b32 s96, s96, 8")
        e("s_add_u32 s96, s96, 0x%x" % TSB)
        e("v_lshlrev_b32 v3, 2, v%d" % V_LANE)
        e("buffer_store_dword v0, v3, s[%d:%d], s96 offen" % (SWS, SWS + 3))


def poll(tag, vaddr, vtmp, sleep=0, n=1, step=0, cnt=None):
    if OPT["timing"] and cnt is not None:
        e("buffer_load_dword v%d, v%d, s[%d:%d], 0 offen sc1" % (vtmp, vaddr, SWS, SWS + 3))
        e("s_waitcnt vmcnt(0)")
        stamp(cnt + 1)
    e("s_mov_b32 s5, 0")
    e("L_poll_%s:" % tag)
    for k in range(n):
        if k == 0:
            e("buffer_load_dword v%d, v%d, s[%d:%d], 0 offen sc1" % (vtmp, vaddr, SWS, SWS + 3))
        else:
            e("s_mov_b32 s6, 0x%x" % (k * step))
            e("buffer_load_dword v%d, v%d, s[%d:%d], s6 offen sc1" % (vtmp + k, vaddr, SWS, SWS + 3))
    e("s_waitcnt vmcnt(0)")
    e("v_cmp_ne_u32 vcc, s%d, v%d" % (S_NONCE, vtmp))
    for k in range(1, n):
        e("v_cmp_ne_u32 s[6:7], s%d, v%d" % (S_NONCE, vtmp + k))
        e("s_or_b64 vcc, vcc, s[6:7]")
    e("s_cmp_eq_u64 vcc, 0")
    e("s_cbranch_scc1 L_pollok_%s" % tag)
    if OPT["pmask"] and n == 1:
        e("s_mov_b64 exec, vcc")
    if sleep:
        e("s_sleep %d" % sleep)
    e("s_add_u32 s5, s5, 1")
    e("s_cmp_lt_u32 s5, %d" % OPT["spin"])
    e("s_cbranch_scc1 L_poll_%s" % tag)
    e("L_pollok_%s:" % tag)
    if OPT["pmask"] and n == 1:
        e("s_mov_b64 exec, -1")
    if OPT["timing"] and cnt is not None:
        e("v_writelane_b32 v0, s5, %d" % cnt)


def flag_store(soff_reg, vtmp, scope=" sc1"):
    e("v_mov_b32 v%d, s%d" % (vtmp, S_NONCE))
    e("s_mov_b32 exec_lo, 1")
    e("s_mov_b32 exec_hi, 0")
    e("buffer_store_dword v%d, off, s[%d:%d], s%d%s" % (vtmp, SWS, SWS + 3, soff_reg, scope))
    e("s_mov_b64 exec, -1")


def x_swizzle_addrs(vg, vr0, vr1, t0, t1):
    e("v_lshrrev_b32 v%d, 2, v1" % t0)
    e("v_mul_u32_u24 v%d, 896, v%d" % (vg, t0))
    e("v_lshrrev_b32 v%d, 4, v1" % t0)
    e("v_xor_b32 v%d, v%d, v1" % (t0, t0))
    e("v_and_b32 v%d, 3, v%d" % (t0, t0))
    e("v_lshl_add_u32 v%d, v%d, 4, v%d" % (vg, t0, vg))
    e("v_and_b32 v%d, 31, v1" % t0)
    e("v_lshlrev_b32 v%d, 6, v%d" % (vr0, t0))
    e("v_lshrrev_b32 v%d, 2, v1" % t0)
    e("v_lshrrev_b32 v%d, 5, v1" % t1)
    e("v_xor_b32 v%d, v%d, v%d" % (t0, t0, t1))
    e("v_and_b32 v%d, 3, v%d" % (t0, t0))
    e("v_lshl_add_u32 v%d, v%d, 4, v%d" % (vr0, t0, vr0))
    e("v_xor_b32 v%d, 32, v%d" % (vr1, vr0))


def tr_addr(vd, hmul, stride, t0, t1):
    e("v_lshrrev_b32 v%d, 5, v1" % t0)
    e("v_mul_u32_u24 v%d, %d, v%d" % (t0, hmul, t0))
    e("v_bfe_u32 v%d, v1, 2, 2" % t1)
    e("v_add_u32 v%d, v%d, v%d" % (t0, t0, t1))
    e("v_mul_u32_u24 v%d, %d, v%d" % (vd, stride, t0))
    e("v_and_b32 v%d, 16, v1" % t0)
    e("v_lshl_add_u32 v%d, v%d, 1, v%d" % (vd, t0, vd))
    e("v_and_b32 v%d, 3, v1" % t0)
    e("v_lshl_add_u32 v%d, v%d, 3, v%d" % (vd, t0, vd))


def prologue():
    e("s_cmp_ge_u32 s2, 512")
    e("s_cbranch_scc1 L_end")
    if OPT["timing"]:
        e("s_memrealtime s[96:97]")
    if OPT["dbgts"]:
        e("s_memrealtime s[94:95]")
        e("s_load_dwordx2 s[50:51], s[0:1], 128")
    e("s_load_dwordx16 s[16:31], s[0:1], 0")
    e("s_load_dwordx16 s[32:47], s[0:1], 64")
    e("s_load_dwordx2 s[48:49], s[0:1], 136")
    e("v_and_b32 v1, 63, v0")
    e("v_lshrrev_b32 v2, 6, v0")
    e("v_readfirstlane_b32 s3, v2")
    if OPT["cpf"]:
        e("s_cmp_ge_u32 s2, %d" % OPT["cpf"])
        e("s_cbranch_scc1 L_nopf")
        e("s_getpc_b64 s[6:7]")
        e("L_pc:")
        e("v_lshlrev_b32 v250, 7, v0")
        e("v_min_u32 v250, L_last-L_pc, v250")
        e("v_mov_b32 v251, s7")
        e("v_add_co_u32 v250, vcc, s6, v250")
        e("v_addc_co_u32 v251, vcc, 0, v251, vcc")
        e("global_load_dword v255, v[250:251], off")
        e("L_nopf:")
    if OPT["sfirst"]:
        e("s_cmp_ge_u32 s2, 256")
        e("s_cbranch_scc1 L_roleA")
    else:
        e("s_cmp_lt_u32 s2, 256")
        e("s_cbranch_scc1 L_roleS")


A_IMG, A_XS, A_QX, A_INB = 0, 30720, 73728, 0
QF, OA, SS, PP, KVR = 64, 96, 160, 16, 192
V_G = 15


def role_a():
    S_HEAD, S_TT, S_X0, S_X1 = 8, 9, 10, 11
    SWQ, SG, SKV = 60, 64, 68
    XL = 128
    WF, DQ = 16, 96
    OQ, OO = QF + 24, OA + 48
    vXg, vXr0, vXr1, vXw, vWg, vWr, vGa, vGl = 2, 3, 4, 5, 6, 7, 8, 9
    vE, vG0, vG1 = 10, 11, 12
    e("s_and_b32 s5, s2, 7")
    e("s_bfe_u32 s6, s2, 0x50003")
    e("s_lshr_b32 s7, s6, 4")
    e("s_lshl_b32 s5, s5, 1")
    e("s_add_u32 s5, s5, s7")
    e("s_and_b32 s%d, s6, 15" % S_HEAD)
    e("s_lshl_b32 s%d, s5, 2" % S_TT)
    e("s_add_u32 s%d, s%d, s3" % (S_TT, S_TT))
    e("s_mul_i32 s%d, s%d, 28672" % (S_X0, S_TT))
    e("s_add_u32 s%d, s%d, 14336" % (S_X1, S_X0))
    e("s_setprio %d" % OPT["a0prio"])
    e("v_bfe_u32 v13, v1, 2, 3")
    e("v_mul_u32_u24 v%d, 3584, v13" % vXg)
    e("v_and_b32 v14, 3, v1")
    e("v_lshl_add_u32 v%d, v14, 4, v%d" % (vXg, vXg))
    e("v_lshrrev_b32 v13, 5, v1")
    e("v_lshl_add_u32 v%d, v13, 6, v%d" % (vXg, vXg))
    e("v_lshrrev_b32 v13, 2, v1")
    e("v_mul_u32_u24 v%d, 896, v13" % vWg)
    e("v_lshl_add_u32 v%d, v14, 4, v%d" % (vWg, vWg))
    e("v_lshlrev_b32 v%d, 1, v1" % vGa)
    e("s_mul_i32 s12, s3, %d" % (112 * 896))
    e("s_mul_i32 s13, s%d, 56" % S_HEAD)
    e("s_add_u32 s12, s12, s13")
    e("s_mul_i32 s13, s3, %d" % (112 * 64))
    e("s_mul_i32 s14, s3, 224")
    e("s_mov_b32 m0, s13")
    e("s_waitcnt lgkmcnt(0)")
    if OPT["timing"]:
        e("v_writelane_b32 v0, s96, 0")
    stamp(20)
    cstamp(29)
    e("s_load_dword s4, s[%d:%d], %d" % (P_WS, P_WS + 1, NONCE_OFF))
    srd(SX, P_X, 2048 * 896)
    if OPT["xtouch"]:
        e("v_lshlrev_b32 v13, 12, v1")
        e("s_mov_b64 exec, 0x%x" % ((1 << OPT["xtouch"]) - 1))
        e("buffer_load_dword v14, v13, s[%d:%d], s%d offen" % (SX, SX + 3, S_X0))
        e("s_mov_b64 exec, -1")
    srd(SWQ, P_WQ, 448 * 896)
    for m in range(7):
        e("buffer_load_dwordx4 v%d, s[%d:%d], s12 offen lds" % (vWg, SWQ, SWQ + 3))
        if m < 6:
            e("s_add_u32 m0, m0, 1024")
            e("s_add_u32 s12, s12, 14336")
    srd(SG, P_GW, 896)
    e("buffer_load_ushort v%d, v%d, s[%d:%d], s14 offen" % (vG0, vGa, SG, SG + 3))
    e("buffer_load_ushort v%d, v%d, s[%d:%d], s14 offen offset:128" % (vG1, vGa, SG, SG + 3))
    PRE = OPT["xpre"]
    assert PRE <= 2

    def xload(b):
        for g in range(4):
            e("buffer_load_dwordx4 %s, v%d, s[%d:%d], s%d offen offset:%d" % (vr(XL + 16 * (b & 3) + 4 * g, 4), vXg, SX, SX + 3, S_X0, 896 * g + 128 * b))

    NT_A = 1 if OPT["touch"] else 0

    def touch_a():
        if OPT["touch"]:
            e("buffer_load_dword v14, v4, s[%d:%d], 0 offen sc1" % (SWS, SWS + 3))

    if OPT["obar"]:
        e("s_barrier")
    for b in range(PRE):
        xload(b)
    stampd(90)
    e("s_setprio %d" % OPT["a1prio"])
    srd(SWS, P_WS, WS_BYTES)
    if OPT["touch"]:
        e("s_lshl_b32 s5, s3, 16")
        e("s_add_u32 s5, s5, 0x%x" % KV)
        e("v_lshlrev_b32 v4, 12, v1")
        e("v_and_b32 v4, 0xffff, v4")
        e("v_add_u32 v4, s5, v4")
        e("s_lshl_b32 s5, s%d, 4" % S_TT)
        e("s_add_u32 s5, s5, s%d" % S_HEAD)
        e("s_lshl_b32 s6, s5, 11")
        e("s_add_u32 s6, s6, 0x%x" % OW)
        e("v_writelane_b32 v4, s6, 16")
        e("s_lshl_b32 s6, s5, 7")
        e("s_add_u32 s6, s6, 0x%x" % FLAG_O)
        e("v_writelane_b32 v4, s6, 17")
        e("s_lshl_b32 s5, s3, 13")
        e("s_add_u32 s5, s5, 0x%x" % FLAG_KV)
        e("v_writelane_b32 v4, s5, 18")
        e("s_add_u32 s5, s5, 4096")
        e("v_writelane_b32 v4, s5, 19")
        if PRE == 7:
            touch_a()
    tr_addr(vWr, 32, 64, 13, 14)
    if OPT["agg"]:
        e("s_and_b32 s5, s2, 7")
        e("s_lshl_b32 s5, s5, 2")
        if not OPT["grp"]:
            e("s_add_u32 s5, s5, s3")
        e("s_lshl_b32 s5, s5, 7")
        e("s_add_u32 s5, s5, 0x%x" % FLAG_AG)
        e("v_lshlrev_b32 v3, 15, v1")
        e("v_add_u32 v3, s5, v3")
    else:
        e("s_lshl_b32 s5, s3, 13")
        e("s_add_u32 s5, s5, 0x%x" % FLAG_KV)
        e("v_lshlrev_b32 v3, 7, v1")
        e("v_add_u32 v3, s5, v3")
    e("v_lshlrev_b32 v13, 6, v1")
    e("v_add_u32 v%d, s13, v13" % vGl)
    e("s_add_u32 s12, s3, %d" % (KV >> 16))
    e("s_lshl_b32 s12, s12, 16")
    srd(SKV, P_WS, 65536, "s12")
    for k, msk in enumerate((0x55555555, 0xAAAAAAAA, 0x33333333, 0xCCCCCCCC)):
        e("s_mov_b32 s%d, 0x%x" % (72 + 2 * k, msk))
        e("s_mov_b32 s%d, 0x%x" % (73 + 2 * k, msk))
    e("s_waitcnt vmcnt(%d)" % (4 * PRE + (NT_A if PRE == 7 else 0)))
    e("ds_write_b16 v%d, v%d offset:56" % (vGl, vG0))
    e("ds_write_b16 v%d, v%d offset:%d" % (vGl, vG1, 56 + 4096))
    e("s_waitcnt lgkmcnt(0)")
    e("s_barrier")
    stampw(6, 90)
    stamp(1)
    cstamp(27)
    e("s_add_u32 s4, s4, 0x%x" % NONCE_ADD)

    def wread(b):
        for p in range(4):
            for q in range(2):
                e("ds_read_b64_tr_b16 %s, v%d offset:%d" % (vr(WF + 16 * (b & 3) + 4 * p + 2 * q, 2), vWr, (64 * b + 8 * p + 4 * q) * 64))

    X1, X2 = "quad_perm:[1,0,3,2] row_mask:0xf bank_mask:0xf", "quad_perm:[2,3,0,1] row_mask:0xf bank_mask:0xf"

    first = [True]
    TREG = {}

    def qm(b, p):
        mfma(DQ, WF + 16 * (b & 3) + 4 * p, TREG[(b, p)], None if first[0] else DQ)
        first[0] = False

    wread(0)
    for b in range(7):
        R = [XL + 16 * (b & 3) + 4 * g for g in range(4)]
        P_, Q_ = 8, (12 if b == 0 else XL + 16 * ((b - 1) & 3) + 4)
        TREG[(b, 0)], TREG[(b, 1)], TREG[(b, 2)], TREG[(b, 3)] = R[0], R[2], Q_, R[3]
        seq = [(R[0] + k, R[1] + k, P_ + k, X1) for k in range(4)] + [(R[2] + k, R[3] + k, Q_ + k, X1) for k in range(4)]
        seq += [(P_ + k, Q_ + k, R[0] + k, X2) for k in range(4)] + [(R[1] + k, R[3] + k, R[2] + k, X2) for k in range(4)]
        if b + PRE < 7:
            xload(b + PRE)
            if b + PRE == 6:
                touch_a()
        if b > 0:
            e("s_waitcnt lgkmcnt(0)")
        if b < 6:
            wread(b + 1)
        e("s_mov_b64 vcc, s[72:73]")
        e("s_waitcnt vmcnt(%d)" % (4 * (min(b + PRE, 6) - b) + (1 if OPT["early"] == 2 and b > OPT["eb"] else 0)))
        if b == OPT["eb"] and OPT["early"] == 2:
            e("buffer_load_dword v4, v3, s[%d:%d], 0 offen sc1" % (SWS, SWS + 3))
        if b == 6:
            e("v_lshlrev_b32 v2, 4, v1")
        if OPT["t2"]:
            ops = [(N_, B_, A_, pat) for (A_, B_, N_, pat) in seq[:8]] + [(B_, A_, B_, pat) for (A_, B_, N_, pat) in seq[:8]]
            ops += [(N_, B_, A_, pat) for (A_, B_, N_, pat) in seq[8:]] + [(B_, A_, B_, pat) for (A_, B_, N_, pat) in seq[8:]]
            for i, (d_, s0, s1, pat) in enumerate(ops):
                if i == 8:
                    e("s_not_b64 vcc, s[72:73]")
                if i == 16:
                    e("s_mov_b64 vcc, s[76:77]")
                if i == 24:
                    e("s_not_b64 vcc, s[76:77]")
                e("v_cndmask_b32_dpp v%d, v%d, v%d, vcc %s" % (d_, s0, s1, pat))
                if b > 0 and i == 3:
                    qm(b - 1, 1)
                if b > 0 and i == 12:
                    qm(b - 1, 3)
                if i == 21:
                    if b == 0:
                        e("s_waitcnt lgkmcnt(8)")
                    qm(b, 0)
                if i == 30:
                    qm(b, 2)
        for i in range(0 if OPT["t2"] else 18):
            if 1 <= i <= 16:
                A_, B_, N_, pat = seq[i - 1]
                e("v_xor_b32 v%d, v%d, v%d" % (A_, A_, N_))
            if i == 8:
                e("s_mov_b64 vcc, s[76:77]")
            if i < 16:
                A_, B_, N_, pat = seq[i]
                e("v_cndmask_b32_dpp v%d, v%d, v%d, vcc %s" % (N_, B_, A_, pat))
            if i == 17:
                qm(b, 2)
            if i >= 2:
                A_, B_, N_, pat = seq[i - 2]
                e("v_xor_b32_dpp v%d, v%d, v%d %s" % (B_, A_, B_, pat))
            if b > 0 and i == 2:
                qm(b - 1, 1)
            if b > 0 and i == 7:
                qm(b - 1, 3)
            if i == 12:
                if b == 0:
                    e("s_waitcnt lgkmcnt(8)")
                qm(b, 0)
    qm(6, 1)
    qm(6, 3)
    cstamp(28)
    stamp(7)

    def Kf(b, k):
        return KVR + 16 * b + 4 * k

    def Vf(b, k):
        return KVR + 16 * b + 8 + 4 * k

    def ld(reg, soff, off):
        e("buffer_load_dwordx4 %s, v2, s[%d:%d], %s offen offset:%d sc1" % (vr(reg, 4), SKV, SKV + 3, soff, off))

    S_OFF, S_EARLY = 13, 11

    def kv_first():
        for b in range(4):
            if b == 0:
                so = "0"
            else:
                e("s_mov_b32 s%d, %d" % (S_OFF, 4096 * b))
                so = "s%d" % S_OFF
            ld(Kf(b, 0), so, 0)
            ld(Kf(b, 1), so, 1024)
            if b < 3:
                ld(Vf(b, 0), so, 2048)
                ld(Vf(b, 1), so, 3072)

    if OPT["early"] == 1:
        e("buffer_load_dword v4, v3, s[%d:%d], 0 offen sc1" % (SWS, SWS + 3))
    e("s_mov_b32 s12, 0x%x" % f32(28 ** -0.5 * LOG2E))
    e("s_mov_b32 s14, 0")
    e("s_mov_b32 s15, -1")
    e("s_lshl_b32 s5, s3, 11")
    e("s_add_u32 s5, s5, %d" % A_QX)
    e("v_add_u32 v12, s5, v2")
    for i in range(1, 4):
        e("s_add_u32 s5, s3, %d" % i)
        e("s_and_b32 s5, s5, 3")
        e("s_lshl_b32 s6, s5, 11")
        e("s_add_u32 s6, s6, %d" % A_QX)
        e("v_add_u32 v%d, s6, v2" % (4 + i))
        e("s_mul_i32 s6, s5, 12288")
        e("s_add_u32 s6, s6, %d" % (A_INB + (i - 1) * 4096))
        e("v_add_u32 v%d, s6, v2" % (7 + i))
    e("s_mul_i32 s6, s3, 12288")
    e("v_add_u32 v11, s6, v2")
    e("v_mul_f32 v%d, 0x%x, v%d" % (V_G, f32(-LOG2E), DQ + 12))
    for k in range(8):
        e("v_pk_mul_f32 %s, %s, s[12:13] op_sel_hi:[1,0]" % (vr(DQ + 2 * k, 2), vr(DQ + 2 * k, 2)))
    e("v_exp_f32 v%d, v%d" % (V_G, V_G))
    for k in range(8):
        e("v_cvt_pk_bf16_f32 v%d, v%d, v%d" % (OQ + k, DQ + 2 * k, DQ + 2 * k + 1))
    e("v_cndmask_b32 v%d, v%d, 0, s[14:15]" % (OQ + 6, OQ + 6))
    e("v_cndmask_b32 v%d, v%d, 0, s[14:15]" % (OQ + 7, OQ + 7))
    e("ds_write_b128 v12, %s" % vr(OQ, 4))
    e("ds_write_b128 v12, %s offset:1024" % vr(OQ + 4, 4))
    for k in range(4):
        e("v_pk_mov_b32 %s, 0, 0" % vr(PP + 8 + 2 * k, 2))
    for k in range(4):
        e("v_pk_mov_b32 %s, 0, 0" % vr(KVR + 56 + 2 * k, 2))
    e("v_add_f32 v%d, 1.0, v%d" % (V_G, V_G))
    e("v_rcp_f32 v%d, v%d" % (V_G, V_G))
    if OPT["early"] == 2:
        e("s_waitcnt vmcnt(0)")
        e("v_cmp_ne_u32 vcc, s4, v4")
        e("s_cmp_eq_u64 vcc, 0")
        e("s_cselect_b32 s%d, 1, 0" % S_EARLY)
        e("s_cbranch_scc0 L_a_late1")
        kv_first()
        e("s_branch L_a_j1")
        e("L_a_late1:")
        e("buffer_load_dword v4, v3, s[%d:%d], 0 offen sc1" % (SWS, SWS + 3))
        e("L_a_j1:")
    e("s_waitcnt lgkmcnt(0)")
    e("s_barrier")
    for i in range(3):
        e("ds_read_b128 %s, v%d" % (vr(QF + 8 * i, 4), 5 + i))
        e("ds_read_b128 %s, v%d offset:1024" % (vr(QF + 8 * i + 4, 4), 5 + i))
    for i in range(4):
        mfma(OA + 16 * i, PP + 8, PP + 8, None)
    stamp(2)
    if OPT["early"] == 2:
        e("s_cmp_lg_u32 s%d, 0" % S_EARLY)
        e("s_cbranch_scc1 L_a_go")
    if OPT["early"]:
        e("s_waitcnt vmcnt(0)")
        e("v_cmp_ne_u32 vcc, s4, v4")
        e("s_cmp_eq_u64 vcc, 0")
        e("s_cbranch_scc1 L_pollok_kv")
    if OPT["agg"]:
        e("v_not_b32 v4, s4")
        e("s_mov_b32 s5, 0")
        if OPT["agprio"] != 3:
            e("s_setprio %d" % OPT["agprio"])
        e("L_a_ag:")
        e("s_and_b32 s6, s5, 7")
        e("s_cmp_eq_u32 s6, 7")
        e("s_cselect_b64 exec, 3, 1")
        e("buffer_load_dword v4, v3, s[%d:%d], 0 offen sc1" % (SWS, SWS + 3))
        e("s_mov_b64 exec, -1")
        e("s_add_u32 s5, s5, 1")
        e("s_waitcnt vmcnt(0)")
        e("v_cmp_eq_u32 vcc, s4, v4")
        e("s_cmp_lg_u64 vcc, 0")
        e("s_cbranch_scc1 L_a_agok")
        if OPT["agsleep"]:
            e("s_sleep %d" % OPT["agsleep"])
        e("s_cmp_lt_u32 s5, %d" % OPT["spin"])
        e("s_cbranch_scc1 L_a_ag")
        e("L_a_agok:")
        stamp(9)
        kv_first()
    elif OPT["split16"]:
        e("s_mov_b64 exec, 0xffff")
        poll("kv0", 3, 4, sleep=OPT["kvsleep"])
        kv_first()
        e("s_mov_b32 exec_lo, 0xffff0000")
        poll("kv", 3, 4, sleep=OPT["kvsleep"])
    else:
        poll("kv", 3, 4, sleep=OPT["kvsleep"])
        kv_first()
    e("L_a_go:")
    e("s_cmp_lg_u32 s3, 0")
    e("s_cbranch_scc1 L_a_noalive")
    e("s_lshl_b32 s5, s2, 7")
    e("s_add_u32 s5, s5, 0x%x" % ALIVE)
    flag_store(5, 13)
    e("L_a_noalive:")
    e("s_cmp_lg_u32 s%d, 0" % S_HEAD)
    e("s_cbranch_scc1 L_a_nog")
    e("s_lshl_b32 s5, s%d, 8" % S_TT)
    e("s_add_u32 s5, s5, 0x%x" % (G1 - 256))
    e("v_lshlrev_b32 v14, 3, v1")
    e("v_sub_f32 v12, 1.0, v%d" % V_G)
    e("v_mov_b32 v13, s4")
    e("s_mov_b32 exec_lo, 0")
    e("buffer_store_dwordx2 v[12:13], v14, s[%d:%d], s5 offen sc1" % (SWS, SWS + 3))
    e("s_mov_b32 exec_lo, -1")
    e("L_a_nog:")
    stamp(3)
    e("s_setprio %d" % OPT["aprio"])
    e("s_waitcnt vmcnt(12) lgkmcnt(0)")
    stamp(8)
    cstamp(22)
    mfma(SS, Kf(0, 0), QF, None)
    mfma(SS, Kf(0, 1), QF + 4, SS)

    def M1(n, bi):
        mfma(SS + 16 * (n & 1), Kf(bi[0], 0), QF + 8 * bi[1], None)

    def step(n, prev, nx1, nx2, X):
        S = SS + 16 * (n & 1)
        Sn = SS + 16 * ((n + 1) & 1)
        P = PP + 8 * (n & 1)
        Pp = PP + 8 * ((n - 1) & 1)

        def ex(a, b_):
            for r in range(a, b_):
                e("v_exp_f32 v%d, v%d" % (S + r, S + r))

        def cv(a, b_):
            for k in range(a, b_):
                e("v_cvt_pk_bf16_f32 v%d, v%d, v%d" % (P + k, S + 2 * k, S + 2 * k + 1))

        def xx(k):
            for f in X.get(k, ()):
                f() if callable(f) else e(f)

        xx(0)
        ex(0, 4)
        mfma(OA + 16 * prev[1], Vf(prev[0], 0), Pp, OA + 16 * prev[1])
        xx(1)
        ex(4, 8)
        cv(0, 2)
        if nx1:
            mfma(Sn, Kf(nx1[0], 1), QF + 8 * nx1[1] + 4, Sn)
        xx(2)
        ex(8, 12)
        cv(2, 4)
        mfma(OA + 16 * prev[1], Vf(prev[0], 1), Pp + 4, OA + 16 * prev[1])
        xx(3)
        ex(12, 16)
        cv(4, 8)
        xx(4)
        if nx2:
            M1(n, nx2)

    BI = lambda n: ((n >> 2) & 3, n & 3)
    e("s_mov_b32 s11, 0")
    e("s_nop 9")
    M1(1, BI(1))
    if OPT["apad"] >= 0:
        e(".p2align 6")
        for k in range(OPT["apad"]):
            e("s_nop 0")
    e("L_attn:")
    for n in range(16):
        X = {}
        so = "s%d" % S_OFF
        if n % 4 == 1:
            vb = ((n >> 2) + 3) & 3
            X = {0: ["s_waitcnt vmcnt(10)"], 1: [lambda: ld(Vf(vb, 0), so, 2048)], 2: [lambda: ld(Vf(vb, 1), so, 3072)],
                 3: ["s_add_u32 s%d, s%d, 4096" % (S_OFF, S_OFF)]}
        if n % 4 == 2:
            X = {3: ["s_waitcnt vmcnt(10)"]}
        if n % 4 == 3:
            kb = (n >> 2) & 3
            X = {0: [lambda: ld(Kf(kb, 0), so, 0)], 1: [lambda: ld(Kf(kb, 1), so, 1024)]}
            if n == 15:
                X[3] = ["s_cmp_lt_u32 s%d, %d" % (S_OFF, 4096 * 15)]
        if OPT["grp"]:
            if n == 0:
                X = {1: ["s_add_u32 s11, s11, 128", "s_mov_b64 exec, 3",
                         "buffer_load_dword v4, v3, s[%d:%d], s11 offen sc1" % (SWS, SWS + 3), "s_mov_b64 exec, -1"]}
            if n == 2:
                X = {3: ["s_waitcnt vmcnt(2)", "v_cmp_eq_u32 vcc, s4, v4"]}
            if n == 3:
                X[0] = ["s_cmp_eq_u64 vcc, 0", "s_cbranch_scc1 L_a_wait", "L_a_back:"] + X[0]
        if OPT["itst"] and n % 4 == 0:
            X = dict(X)
            X[0] = ["s_memtime s[96:97]", "s_lshr_b32 m0, s13, 12", "s_add_u32 m0, m0, 37", "s_waitcnt lgkmcnt(0)", "v_writelane_b32 v0, s96, m0"] + list(X.get(0, []))
        step(n, BI(n - 1), BI(n + 1), BI(n + 2), X)
    e("s_cbranch_scc1 L_attn")
    SEQ = [(0, 0), (0, 1), (1, 0), (1, 1), (2, 0), (2, 1), (3, 0), (3, 1)] + [(b, 2) for b in range(4)] + [(b, 3) for b in range(4)]

    def wr(sl, q):
        return "ds_write_b128 v%d, %s offset:%d" % (8 + sl, vr(OA + 16 * sl + 4 * q, 4), q * 1024)

    def rd(k):
        return "ds_read_b128 %s, v11 offset:%d" % (vr(OA + 4 * k, 4), k * 1024)

    def pa(d, a_):
        return "v_pk_add_f32 %s, %s, %s" % (vr(d, 2), vr(d, 2), vr(a_, 2))

    def hint():
        flag_store(7, 7, "")

    so = "s%d" % S_OFF
    XP = {n: {} for n in range(16)}
    XP[0] = {4: ["s_waitcnt vmcnt(8)"]}
    XP[1] = {1: [lambda: ld(Vf(3, 0), so, 2048)], 2: [lambda: ld(Vf(3, 1), so, 3072)]}
    XP[2] = {4: ["s_waitcnt vmcnt(6)"]}
    XP[4] = {4: ["s_waitcnt vmcnt(2)"]}
    XP[7] = {0: ["s_waitcnt vmcnt(0)"]}
    XP[5] = {0: ["s_lshl_b32 s5, s%d, 4" % S_TT, "s_add_u32 s5, s5, s%d" % S_HEAD], 1: ["s_lshl_b32 s6, s5, 11", "s_add_u32 s6, s6, 0x%x" % OW],
             2: ["s_lshl_b32 s7, s5, 7", "s_add_u32 s7, s7, 0x%x" % FLAG_O], 3: ["s_and_b32 s5, s4, 0xbfff0000", "s_mov_b32 s10, 0x07060100", "s_mov_b32 s11, 0x07060302"]}
    XP[6] = {0: ["v_mov_b32 v40, s5", "v_mov_b32 v41, 0x03020100"], 1: ["v_mov_b32 v42, 0x07060100", "v_mov_b32 v43, 0x07060302"],
             2: ["v_cndmask_b32 v41, v41, v42, s[14:15]"], 3: ["v_cndmask_b32 v42, v42, v43, s[14:15]"]}
    XP[8] = {k + 1: [wr(0, k)] for k in range(4)}
    XP[9] = {k + 1: [wr(1, k)] for k in range(4)}
    XP[13] = {1: [wr(2, 0), wr(2, 1)], 2: [wr(2, 2), wr(2, 3)], 4: ["s_waitcnt lgkmcnt(0)", "s_barrier"] + ([hint] if OPT["hintpos"] == 1 else [])}
    XP[14] = {0: [rd(0), rd(4), rd(1), rd(5)], 1: [rd(2), rd(6), rd(3), rd(7)], 2: [rd(8), rd(9), rd(10), rd(11)],
              4: ["s_waitcnt lgkmcnt(4)"] + [pa(OA + 2 * k, OA + 16 + 2 * k) for k in range(4)]}
    XP[15] = {0: ([hint] if OPT["hintpos"] == 3 else []) + [pa(OA + 2 * k, OA + 16 + 2 * k) for k in range(4, 8)],
              1: ["s_waitcnt lgkmcnt(0)"] + [pa(OA + 2 * k, OA + 32 + 2 * k) for k in range(4)],
              2: [pa(OA + 2 * k, OA + 32 + 2 * k) for k in range(4, 8)],
              3: ["s_mov_b32 s12, 0x%x" % f32(2.0 ** -60), "s_mov_b32 s13, 0x%x" % f32(2.0 ** 60)]}
    for n in range(16):
        if OPT["itst"] and n % 4 == 0:
            cstamp(52 + n // 4)
        if OPT["itst"] and n == 13:
            XP[13][4] = [lambda: cstamp(56)] + XP[13][4] + [lambda: cstamp(57)]
        step(n, SEQ[n - 1] if n else (3, 3), SEQ[n + 1] if n < 15 else None, SEQ[n + 2] if n < 14 else None, XP[n])
    mfma(OO, Vf(3, 0), PP + 8, OO)
    mfma(OO, Vf(3, 1), PP + 12, OO)
    if OPT["hintpos"] == 4:
        hint()
    cstamp(23)
    stamp(4)
    for k in range(8):
        e(pa(OO + 2 * k, OA + 2 * k))
    e("v_pk_mul_f32 v[4:5], %s, 0" % vr(OO, 2))
    for k in range(1, 8):
        e("v_pk_fma_f32 v[4:5], %s, 0, v[4:5]" % vr(OO + 2 * k, 2))
    e("v_cmp_nle_f32 s[72:73], s12, v%d" % (OO + 12))
    e("v_cmp_nge_f32 s[74:75], s13, v%d" % (OO + 12))
    e("v_cmp_u_f32 vcc, v4, v5")
    e("s_or_b32 s73, s73, s75")
    e("s_or_b32 s73, s73, vcc_hi")
    e("s_or_b32 s73, s73, vcc_lo")
    if OPT["force_fb"]:
        e("s_mov_b32 s73, 1")
    e("s_cmp_lg_u32 s73, 0")
    e("s_cbranch_scc1 L_fb")
    e("L_fin:")
    e("v_rcp_f32 v4, v%d" % (OO + 12))
    e("v_mul_f32 v4, v4, v%d" % V_G)
    e("v_mov_b32 v5, v4")
    e("v_permlane32_swap_b32 v5, v4")
    for k in (3, 5, 7, 6, 0, 1, 2, 4):
        e("v_pk_mul_f32 %s, %s, v[4:5] op_sel_hi:[1,0]" % (vr(OO + 2 * k, 2), vr(OO + 2 * k, 2)))
    for k in (3, 7):
        e("v_cvt_pk_bf16_f32 v%d, v%d, v%d" % (32 + k, OO + 2 * k, OO + 2 * k + 1))
    e("v_perm_b32 v44, v39, v35, s11")
    e("v_cvt_pk_bf16_f32 v38, v%d, v%d" % (OO + 12, OO + 13))
    e("v_mov_b32 v45, v44")
    for k in (0, 1):
        e("v_cvt_pk_bf16_f32 v%d, v%d, v%d" % (32 + k, OO + 2 * k, OO + 2 * k + 1))
    e("v_permlane32_swap_b32 v45, v44")
    for k in (2, 4, 5):
        e("v_cvt_pk_bf16_f32 v%d, v%d, v%d" % (32 + k, OO + 2 * k, OO + 2 * k + 1))
    e("v_cndmask_b32 v38, v38, v45, s[14:15]")
    e("v_cndmask_b32 v39, v39, v45, s[14:15]")
    e("v_perm_b32 v38, v35, v38, v41")
    e("v_perm_b32 v35, v40, v35, s10")
    e("v_perm_b32 v39, v40, v39, v42")
    e("buffer_store_dwordx4 v[32:35], v2, s[%d:%d], s6 offen" % (SWS, SWS + 3))
    e("buffer_store_dwordx4 v[36:39], v2, s[%d:%d], s6 offen offset:1024" % (SWS, SWS + 3))
    if OPT["hintpos"] == 2 and not OPT["nonear"]:
        flag_store(7, 7, "")
    e("s_add_u32 s6, s6, 0x%x" % (OW2 - OW))
    e("s_add_u32 s7, s7, 0x%x" % (FLAG_O2 - FLAG_O))
    if OPT["nofar"] == 2:
        e("s_waitcnt vmcnt(0)")
    if OPT["nofar"] != 1:
        e("buffer_store_dwordx4 v[32:35], v2, s[%d:%d], s6 offen sc1" % (SWS, SWS + 3))
        e("buffer_store_dwordx4 v[36:39], v2, s[%d:%d], s6 offen offset:1024 sc1" % (SWS, SWS + 3))
        flag_store(7, 7)
    stamp(5)
    cstamp(30)
    dbg_stamp(256, 264, 0, True)
    stamp_flush()
    e("s_endpgm")

    if OPT["grp"]:
        e("L_a_wait:")
        e("s_mov_b32 s5, 0")
        e("L_a_wait1:")
        e("s_mov_b64 exec, 3")
        e("buffer_load_dword v4, v3, s[%d:%d], s11 offen sc1" % (SWS, SWS + 3))
        e("s_mov_b64 exec, -1")
        e("s_add_u32 s5, s5, 1")
        e("s_waitcnt vmcnt(0)")
        e("v_cmp_eq_u32 vcc, s4, v4")
        e("s_cmp_lg_u64 vcc, 0")
        e("s_cbranch_scc1 L_a_back")
        e("s_cmp_lt_u32 s5, %d" % OPT["spin"])
        e("s_cbranch_scc1 L_a_wait1")
        e("s_branch L_a_back")

    SALL = 76
    e("L_fb:")
    srd(SALL, P_WS, 262144, "0x%x" % KV)
    e("v_mov_b32 v7, 0xff800000")
    e("s_mov_b32 s12, 0")
    e("L_fb1:")
    e("buffer_load_dwordx4 v[192:195], v2, s[%d:%d], s12 offen sc1" % (SALL, SALL + 3))
    e("buffer_load_dwordx4 v[196:199], v2, s[%d:%d], s12 offen offset:1024 sc1" % (SALL, SALL + 3))
    e("s_waitcnt vmcnt(0)")
    mfma(SS, 192, OQ, None)
    mfma(SS, 196, OQ + 4, SS)
    for k in range(8):
        e("v_max3_f32 v7, v7, v%d, v%d" % (SS + 2 * k, SS + 2 * k + 1))
    e("s_add_u32 s12, s12, 4096")
    e("s_cmp_lt_u32 s12, 262144")
    e("s_cbranch_scc1 L_fb1")
    e("v_mov_b32 v8, v7")
    e("v_permlane32_swap_b32 v8, v7")
    e("v_max_f32 v7, v7, v8")
    for k in range(16):
        e("v_mov_b32 v%d, 0" % (OO + k))
    e("s_mov_b32 s12, 0")
    e("L_fb2:")
    for k in range(4):
        e("buffer_load_dwordx4 %s, v2, s[%d:%d], s12 offen offset:%d sc1" % (vr(192 + 4 * k, 4), SALL, SALL + 3, 1024 * k))
    e("s_waitcnt vmcnt(0)")
    mfma(SS, 192, OQ, None)
    mfma(SS, 196, OQ + 4, SS)
    for k in range(16):
        e("v_sub_f32 v%d, v%d, v7" % (SS + k, SS + k))
    for k in range(16):
        e("v_exp_f32 v%d, v%d" % (SS + k, SS + k))
    for k in range(8):
        e("v_cvt_pk_bf16_f32 v%d, v%d, v%d" % (PP + k, SS + 2 * k, SS + 2 * k + 1))
    mfma(OO, 200, PP, OO)
    mfma(OO, 204, PP + 4, OO)
    e("s_add_u32 s12, s12, 4096")
    e("s_cmp_lt_u32 s12, 262144")
    e("s_cbranch_scc1 L_fb2")
    e("s_nop 8")
    e("s_branch L_fin")


S_STG = 16896
S_INB1 = 16896
S_WL = 49664
S_PX = 67584
KR0, KR1, XC0 = 0, 7680, 15360
XCS = 4160
L_CPX = 48640
S_OF, S_G1, S_OT = 0, 32768, 40960


def cmul(d, x, m, t):
    e("v_pk_mul_f32 %s, %s, %s op_sel_hi:[1,0]" % (vr(t, 2), vr(x, 2), vr(m, 2)))
    e("v_pk_fma_f32 %s, %s, %s, %s op_sel:[1,1,0] op_sel_hi:[0,1,1] neg_lo:[1,0,0]" % (vr(d, 2), vr(x, 2), vr(m, 2), vr(t, 2)))


def role_s():
    S_ID, S_J, S_CP = 8, 9, 15
    SW, SWO, SOUT = 60, 64, 68
    vE = 10
    PRM = 240
    XTR = 128

    def xt_flag(tag):
        e("s_cmp_ge_u32 s84, 0x%x" % (FLAG_XT + 7 * 64 * 128))
        e("s_cbranch_scc1 L_s_noxf%s" % tag)
        e("s_waitcnt vmcnt(0)")
        flag_store(84, 14)
        e("L_s_noxf%s:" % tag)

    def alive(tag):
        e("s_cmp_lg_u32 s3, 3")
        e("s_cbranch_scc1 L_s_al%s" % tag)
        e("s_lshl_b32 s5, s2, 7")
        e("s_add_u32 s5, s5, 0x%x" % ALIVE)
        flag_store(5, 13)
        e("L_s_al%s:" % tag)

    S_TT, S_CG, S_OB, S_H, S_V, S_P, S_TAG, S_F, S_U, S_CB = 11, 12, 80, 76, 77, 78, 75, 79, 84, 85
    SWT, S_WF = 88, 86
    WO = 128

    def job_decode():
        rest = [(a_, c_) for a_ in range(8) for c_ in range(3) if not (a_ >= 4 and c_ == a_ - 4)]
        job = rest[:16] + [(a_, 3) for a_ in range(7)] + rest[16:] + [(4 + g_, g_) for g_ in range(4)]
        assert sorted(job) == sorted((a_, c_) for a_ in range(8) for c_ in range(4))
        tab = [sum((job[4 * d + k][0] | job[4 * d + k][1] << 4) << (8 * k) for k in range(4)) for d in range(8)]
        e("s_lshr_b32 s5, s%d, 2" % S_J)
        e("s_mov_b32 s6, 0x%x" % tab[0])
        for d in range(1, 8):
            e("s_cmp_eq_u32 s5, %d" % d)
            e("s_cselect_b32 s6, 0x%x, s6" % tab[d])
        e("s_and_b32 s5, s%d, 3" % S_J)
        e("s_lshl_b32 s5, s5, 3")
        e("s_lshr_b32 s6, s6, s5")
        e("s_and_b32 s5, s6, 7")
        e("s_add_u32 s%d, s10, s5" % S_TT)
        e("s_bfe_u32 s%d, s6, 0x20004" % S_CG)
        e("s_cmp_eq_u32 s%d, 3" % S_CG)
        e("s_cselect_b32 s5, 1, 3")
        e("s_and_b32 s%d, s3, s5" % S_CB)
        e("s_lshl_b32 s5, s%d, 2" % S_CG)
        e("s_add_u32 s5, s5, s%d" % S_CB)
        e("s_lshl_b32 s%d, s5, 10" % S_WF)
        e("s_add_u32 s%d, s%d, 0x%x" % (S_WF, S_WF, FLAG_W))
        e("s_lshl_b32 s5, s5, 15")
        e("s_add_u32 s5, s5, 0x%x" % WT)
        srd(SWT, P_WS, 32768, "s5")

    LFL = 81408

    def lds_flags_clear():
        if OPT["prog"]:
            e("v_and_b32 v6, 3, v1")
            e("v_lshlrev_b32 v6, 2, v6")
            e("v_add_u32 v6, %d, v6" % LFL)
            e("v_mov_b32 v7, 0")
            e("ds_write_b32 v6, v7")

    def wld(k, st=False):
        so = 4096 * (k >> 2)
        if so > 64:
            e("s_movk_i32 s6, 0x%x" % so) if so < 32768 else None
        e("buffer_%s_dwordx4 %s, v%d, s[%d:%d], %s offen offset:%d sc1" % ("store" if st else "load", vr(WO + 4 * k, 4), 5, SWT, SWT + 3, "s6" if so else "0", 1024 * (k & 3)))

    if OPT["spad"] >= 0:
        e(".p2align %d" % OPT["sal"])
        for k in range(OPT["spad"]):
            e("s_nop 0")
    e("L_roleS:")
    e("s_setprio 3")
    e("s_mov_b32 s%d, s2" % S_ID)
    e("s_lshr_b32 s%d, s%d, 3" % (S_J, S_ID))
    M = OPT["kvmask"]
    assert bin(M).count("1") == 16
    if M != 0xffff0000:
        e("s_bfm_b32 s5, s%d, 0" % S_J)
        e("s_bitcmp1_b32 0x%x, s%d" % (M, S_J))
        e("s_cselect_b32 s6, 0x%x, 0x%x" % (M, M) if False else "s_cselect_b32 s6, 0, -1")
        e("s_cselect_b32 s7, 16, 0")
        e("s_xor_b32 s6, s6, 0x%x" % M)
        e("s_and_b32 s5, s5, s6")
        e("s_bcnt1_i32_b32 s5, s5")
        e("s_add_u32 s%d, s5, s7" % S_J)
    e("s_and_b32 s10, s%d, 7" % S_ID)
    e("s_mul_i32 s%d, s10, 28" % S_CP)
    e("s_add_u32 s%d, s%d, s%d" % (S_CP, S_CP, S_J))
    vXg, vXr0, vXr1, vL16, vWr = 2, 3, 4, 5, 6
    S_TAU, S_KIND = 11, 12
    e("v_lshrrev_b32 v13, 2, v1")
    e("v_mul_u32_u24 v%d, 896, v13" % vXg)
    e("v_lshrrev_b32 v13, 4, v1")
    e("v_xor_b32 v13, v13, v1")
    e("v_and_b32 v13, 3, v13")
    e("v_lshl_add_u32 v%d, v13, 4, v%d" % (vXg, vXg))
    e("v_lshlrev_b32 v%d, 4, v1" % vL16)
    e("s_lshl_b32 s10, s10, 3")
    e("s_sub_u32 s5, s%d, 16" % S_J)
    e("s_lshr_b32 s5, s5, 1")
    e("s_add_u32 s%d, s10, s5" % S_TAU)
    e("s_and_b32 s%d, s%d, 1" % (S_KIND, S_J))
    e("s_lshl_b32 s5, s3, 13")
    e("s_add_u32 s5, s5, 16896")
    e("s_cmp_eq_u32 s3, 0")
    e("s_cselect_b32 s13, 8192, s5")
    e("s_mul_i32 s14, s3, 7232")
    e("s_add_u32 s14, s14, %d" % S_WL)
    e("s_mul_i32 s5, s%d, 28672" % S_TAU)
    e("s_lshl_b32 s6, s3, 8")
    e("s_add_u32 s5, s5, s6")
    e("s_add_u32 s6, s5, 14336")
    e("s_mov_b32 m0, s13")
    e("s_mov_b32 s%d, %d" % (SW + 2, 448 * 56))
    e("s_mov_b32 s%d, 0x20000" % (SW + 3))
    e("s_mov_b32 s%d, 0x%x" % (SX + 2, 2048 * 896))
    e("s_mov_b32 s%d, 0x20000" % (SX + 3))
    e("s_cmp_lt_u32 s%d, 28" % S_J)
    e("s_cselect_b32 s7, s%d, 0" % S_CP)
    e("s_lshl_b32 s74, s7, 2")
    e("s_cmp_lt_u32 s%d, 16" % S_J)
    e("s_waitcnt lgkmcnt(0)")
    if OPT["timing"]:
        e("v_writelane_b32 v0, s96, 0")
    stamp(20)
    e("s_load_dword s4, s[%d:%d], %d" % (P_WS, P_WS + 1, NONCE_OFF))
    e("s_load_dword s72, s[%d:%d], s74" % (P_LDT, P_LDT + 1))
    e("s_load_dword s73, s[%d:%d], s74" % (P_DSK, P_DSK + 1))
    e("s_cbranch_scc1 L_s_nokv1")
    e("s_mov_b32 s%d, s%d" % (SX, P_X))
    e("s_mov_b32 s%d, s%d" % (SX + 1, P_X + 1))
    e("s_cmp_eq_u32 s%d, 0" % S_KIND)
    e("s_cselect_b32 s%d, s%d, s%d" % (SW, P_WK, P_WV))
    e("s_cselect_b32 s%d, s%d, s%d" % (SW + 1, P_WK + 1, P_WV + 1))
    for pp in range(4):
        for rh in range(2):
            e("buffer_load_dwordx4 v%d, s[%d:%d], s%d offen lds" % (vXg, SX, SX + 3, 6 if rh else 5))
            e("s_add_u32 m0, m0, 1024")
            if pp < 3:
                e("s_add_u32 s%d, s%d, 64" % (6 if rh else 5, 6 if rh else 5))
    e("s_mul_i32 s5, s3, 7168")
    e("s_mov_b32 m0, s14")
    e("s_add_u32 s6, s5, 4096")
    for m in range(4):
        e("buffer_load_dwordx4 v%d, s[%d:%d], s5 offen offset:%d lds" % (vL16, SW, SW + 3, 1024 * m))
    e("s_add_u32 m0, m0, 4096")
    for m in range(3):
        e("buffer_load_dwordx4 v%d, s[%d:%d], s6 offen offset:%d lds" % (vL16, SW, SW + 3, 1024 * m))
    e("L_s_nokv1:")
    e("s_lshl_b32 s5, s7, 10")
    e("s_lshl_b32 s6, s3, 8")
    e("s_add_u32 s5, s5, s6")
    e("v_lshlrev_b32 v7, 2, v1")
    e("v_add_u32 v7, s5, v7")
    for k, p in enumerate((P_ARE, P_AIM, P_BRE, P_BIM, P_CRE, P_CIM)):
        e("global_load_dword v%d, v7, s[%d:%d]" % (PRM + k, p, p + 1))
    srd(SWS, P_WS, WS_BYTES)
    srd(SWO, P_WO, 448 * 896)
    NPF = 0
    if OPT["wopf"]:
        e("s_mul_i32 s5, s10, %d" % (7 * 896))
        e("s_lshl_b32 s6, s%d, 8" % S_J)
        e("s_add_u32 s5, s5, s6")
        e("s_lshl_b32 s6, s3, 6")
        e("s_add_u32 s5, s5, s6")
        e("s_sub_u32 s5, s5, %d" % (28 * 256))
        e("s_cmp_lt_u32 s%d, 28" % S_J)
        e("s_cselect_b32 s5, 0x%x, s5" % (448 * 896))
        e("v_min_u32 v8, 55, v1")
        e("v_mul_u32_u24 v8, 896, v8")
        e("buffer_load_dword v%d, v8, s[%d:%d], s5 offen" % (PRM + 6, SWO, SWO + 3))
        NPF += 1
    if OPT["touch"]:
        e("v_lshlrev_b32 v8, 16, v1")
        e("v_add_u32 v8, 0x8000, v8")
        e("buffer_load_dword v%d, v8, s[%d:%d], 0 offen sc1" % (PRM + 7, SWS, SWS + 3))
        e("v_add_u32 v8, 0x400000, v8")
        e("buffer_load_dword v%d, v8, s[%d:%d], 0 offen sc1" % (PRM + 8, SWS, SWS + 3))
        NPF += 2
    e("s_cmp_lt_u32 s%d, 16" % S_J)
    e("s_cbranch_scc1 L_s_nokv2")
    e("v_and_b32 v13, 31, v1")
    e("v_lshlrev_b32 v%d, 6, v13" % vXr0)
    e("v_lshrrev_b32 v13, 2, v1")
    e("v_lshrrev_b32 v14, 5, v1")
    e("v_xor_b32 v13, v13, v14")
    e("v_and_b32 v13, 3, v13")
    e("v_lshl_add_u32 v%d, v13, 4, v%d" % (vXr0, vXr0))
    e("v_xor_b32 v%d, 32, v%d" % (vXr1, vXr0))
    tr_addr(vWr, 8, 56, 13, 14)
    e("v_add_u32 v%d, s14, v%d" % (vWr, vWr))
    e("v_add_u32 v%d, s13, v%d" % (vXr0, vXr0))
    e("v_add_u32 v%d, s13, v%d" % (vXr1, vXr1))
    e("s_lshl_b32 s5, s3, 11")
    e("v_add_u32 v8, s5, v%d" % vL16)
    e("s_lshl_b32 s5, s%d, 12" % S_KIND)
    e("s_add_u32 s5, s5, s13")
    e("v_lshrrev_b32 v13, 5, v1")
    e("v_lshlrev_b32 v20, 11, v13")
    e("v_bfe_u32 v13, v1, 2, 2")
    e("v_lshl_add_u32 v20, v13, 6, v20")
    e("v_and_b32 v13, 1, v1")
    e("v_lshl_add_u32 v20, v13, 3, v20")
    e("v_add_u32 v20, s5, v20")
    e("v_bfe_u32 v13, v1, 4, 1")
    e("v_bfe_u32 v14, v1, 1, 1")
    e("v_lshl_add_u32 v13, v13, 1, v14")
    for m in range(4):
        e("v_xor_b32 v14, %d, v13" % m)
        e("v_lshl_add_u32 v%d, v14, 4, v20" % (16 + m))
    e("s_lshl_b32 s5, s3, 1")
    e("s_add_u32 s5, s5, s%d" % S_KIND)
    e("s_lshl_b32 s84, s5, 6")
    e("s_add_u32 s84, s84, s%d" % S_TAU)
    e("s_lshl_b32 s84, s84, 7")
    e("s_add_u32 s84, s84, 0x%x" % FLAG_XT)
    e("s_lshl_b32 s5, s5, 10")
    e("s_mul_i32 s85, s%d, %d" % (S_TAU, 4 * 7168))
    e("s_add_u32 s85, s85, s5")
    e("s_add_u32 s85, s85, 0x%x" % XT)
    def kv_masks():
        e("s_cmp_eq_u32 s%d, 0" % S_KIND)
        e("s_cselect_b32 s74, 0, 0xe0000000")
        e("s_mov_b32 s75, s74")
        e("s_mov_b32 s76, s74")
        e("s_cselect_b32 s78, 0, 0x10000000")
        e("s_mov_b32 s79, s78")
        e("s_cselect_b32 s5, -1, 0")
        e("s_cmp_eq_u32 s3, 1")
        e("s_cselect_b32 s5, s5, 0")
        e("s_or_b32 s77, s74, s5")
        e("v_mov_b32 v9, 0x3f803f80")

    XF, WF, DK = 64, 96, 48
    if OPT["kvf"]:
        kv_masks()
        e("v_cndmask_b32 v21, -1, 0, s[74:75]")
        e("v_cndmask_b32 v22, -1, 0, s[76:77]")
        e("v_cndmask_b32 v23, 0, v9, s[78:79]")
        e("v_cndmask_b32 v21, v21, 0, s[78:79]")
        e("v_cndmask_b32 v22, v22, 0, s[78:79]")
    e("s_waitcnt vmcnt(%d) lgkmcnt(0)" % (6 + NPF))
    stamp(1)
    if OPT["kvst"]:
        cstamp(40)
    e("s_add_u32 s4, s4, 0x%x" % NONCE_ADD)
    for s in range(8):
        e("ds_read_b128 %s, v%d offset:%d" % (vr(XF + 4 * s, 4), vXr1 if s & 1 else vXr0, (s >> 1) * 2048))
        for q in range(2):
            e("ds_read_b64_tr_b16 %s, v%d offset:%d" % (vr(WF + 4 * s + 2 * q, 2), vWr, s * 896 + q * 224))
    if OPT["kvst"]:
        cstamp(41)
    e("s_cmp_eq_u32 s%d, 0" % S_KIND)
    e("s_cbranch_scc0 L_s_kind1")
    def xtr(m):
        e("ds_read_b64_tr_b16 %s, v%d offset:%d" % (vr(XTR + 2 * m, 2), 16 + (m & 3), 256 * (m & 3) + 1024 * (m >> 2)))

    def chain(kind):
        nt = 0
        for s in range(8):
            e("s_waitcnt lgkmcnt(%d)" % min(15, 21 - 3 * s + nt))
            if kind == 0:
                mfma(DK, WF + 4 * s, XF + 4 * s, None if s == 0 else DK)
            else:
                mfma(DK, XF + 4 * s, WF + 4 * s, None if s == 0 else DK)
            if OPT["kvf"] and 2 <= s <= 5:
                xtr(nt)
                xtr(nt + 1)
                nt += 2

    chain(0)
    e("s_branch L_s_kindj")
    e("L_s_kind1:")
    chain(1)
    e("L_s_kindj:")
    if OPT["kvst"]:
        cstamp(42)
    if not OPT["kvf"]:
        for m in range(8):
            xtr(m)
    if not OPT["kvf"]:
        kv_masks()
    for q in range(4):
        e("ds_write_b128 v8, %s offset:%d" % (vr(DK + 4 * q, 4), (q >> 1) * S_INB1 + (q & 1) * 1024))
    if OPT["kvst"]:
        cstamp(43)
    e("s_waitcnt lgkmcnt(0)")
    e("s_barrier")
    if OPT["kvst"]:
        cstamp(44)
    e("s_cmp_ge_u32 s3, 2")
    e("s_cbranch_scc1 L_s_kvdone")
    e("s_mul_i32 s5, s3, %d" % S_INB1)
    e("v_add_u32 v8, s5, v%d" % vL16)
    for k in range(8):
        e("ds_read_b128 %s, v8 offset:%d" % (vr(64 + 4 * k, 4), k * 1024))
    if OPT["grp"]:
        e("s_bfe_u32 s6, s%d, 0x20001" % S_TAU)
        e("s_lshl_b32 s6, s6, 2")
        e("s_lshr_b32 s6, 0x%x, s6" % OPT["gperm"])
        e("s_and_b32 s6, s6, 3")
        e("s_lshl_b32 s6, s6, 2")
        e("s_and_b32 s5, s%d, 0x31" % S_TAU)
        e("s_add_u32 s5, s5, s6")
        e("s_bfe_u32 s6, s%d, 0x10003" % S_TAU)
        e("s_lshl_b32 s6, s6, 1")
        e("s_add_u32 s5, s5, s6")
        e("s_lshl_b32 s5, s5, 1")
    else:
        e("s_lshl_b32 s5, s%d, 1" % S_TAU)
    e("s_add_u32 s5, s5, s%d" % S_KIND)
    e("s_lshl_b32 s5, s5, 1")
    e("s_add_u32 s5, s5, s3")
    e("s_lshl_b32 s6, s5, 10")
    e("s_add_u32 s6, s6, 0x%x" % KV)
    e("s_lshl_b32 s7, s5, 7")
    e("s_add_u32 s7, s7, 0x%x" % FLAG_KV)
    if OPT["kvst"]:
        cstamp(45)
    e("s_waitcnt lgkmcnt(4)")
    for k in range(4):
        e("v_pk_add_f32 %s, %s, %s" % (vr(64 + 2 * k, 2), vr(64 + 2 * k, 2), vr(72 + 2 * k, 2)))
    e("s_waitcnt lgkmcnt(0)")
    for k in range(4):
        e("v_pk_add_f32 %s, %s, %s" % (vr(80 + 2 * k, 2), vr(80 + 2 * k, 2), vr(88 + 2 * k, 2)))
    for k in range(4):
        e("v_pk_add_f32 %s, %s, %s" % (vr(64 + 2 * k, 2), vr(64 + 2 * k, 2), vr(80 + 2 * k, 2)))
    for k in range(4):
        e("v_cvt_pk_bf16_f32 v%d, v%d, v%d" % (72 + k, 64 + 2 * k, 65 + 2 * k))
    if OPT["kvf"]:
        for k in range(4):
            e("v_and_or_b32 v%d, v%d, v%d, v23" % (72 + k, 72 + k, 21 if k < 2 else 22))
    else:
        for k in range(4):
            e("v_cndmask_b32 v%d, v%d, 0, %s" % (72 + k, 72 + k, "s[74:75]" if k < 2 else "s[76:77]"))
        for k in range(4):
            e("v_cndmask_b32 v%d, v%d, v9, s[78:79]" % (72 + k, 72 + k))
    if OPT["kvst"]:
        cstamp(46)
    stamp(17)
    if OPT["kasync"]:
        e("s_waitcnt vmcnt(0)")
    e("buffer_store_dwordx4 v[72:75], v%d, s[%d:%d], s6 offen sc1" % (vL16, SWS, SWS + 3))
    if OPT["kasync"]:
        e("s_mov_b32 s82, s7")
        e("s_mov_b32 s83, s85")
        e("s_cmp_lt_u32 s%d, 28" % S_J)
        e("s_cbranch_scc1 L_s_kgen")
    e("s_waitcnt vmcnt(0)")
    stamp(18)
    flag_store(7, 9)
    if OPT["timing"]:
        e("s_waitcnt vmcnt(0)")
    stamp(26)
    e("L_s_kvdone:")
    e("s_setprio %d" % OPT["kprio"])
    e("s_waitcnt vmcnt(%d)" % NPF)
    e("s_cmp_ge_u32 s84, 0x%x" % (FLAG_XT + 7 * 64 * 128))
    e("s_cbranch_scc1 L_s_noxt")
    for q in range(4):
        e("buffer_store_dwordx4 %s, v%d, s[%d:%d], s85 offen sc1" % (vr(XTR + 4 * q, 4), vL16, SWS, SWS + 3))
        if q < 3:
            e("s_add_u32 s85, s85, 7168")
    e("L_s_noxt:")
    stamp(2)
    e("s_mov_b32 s82, 0")
    e("s_cmp_lt_u32 s%d, 28" % S_J)
    e("s_cbranch_scc1 L_s_kgen")
    alive("i")
    job_decode()
    e("s_cmp_lg_u32 s3, s%d" % S_CB)
    e("s_cbranch_scc1 L_s_nodma")
    e("v_lshrrev_b32 v13, 2, v1")
    e("v_mul_u32_u24 v8, 896, v13")
    e("v_and_b32 v13, 3, v1")
    e("v_lshl_add_u32 v8, v13, 4, v8")
    e("s_mul_i32 s5, s10, %d" % (7 * 896))
    e("s_lshl_b32 s6, s%d, 8" % S_CG)
    e("s_add_u32 s5, s5, s6")
    e("s_lshl_b32 s6, s3, 6")
    e("s_add_u32 s5, s5, s6")
    e("s_mov_b32 m0, s13")
    for m in range(4):
        e("buffer_load_dwordx4 v8, s[%d:%d], s5 offen lds" % (SWO, SWO + 3))
        if m < 3:
            e("s_add_u32 m0, m0, 1024")
            e("s_add_u32 s5, s5, %d" % (896 * (12 if m & 1 else 16)))
    e("L_s_nodma:")
    e("v_bfe_u32 v13, v1, 4, 1")
    e("v_and_b32 v14, 3, v1")
    e("v_lshl_add_u32 v13, v13, 2, v14")
    e("v_lshlrev_b32 v13, 3, v13")
    e("v_add_u32 v13, s13, v13")
    e("v_bfe_u32 v14, v1, 2, 2")
    e("v_lshl_add_u32 v16, v14, 6, v13")
    e("v_lshrrev_b32 v15, 5, v1")
    e("v_lshl_add_u32 v9, v15, 8, v16")
    e("v_lshlrev_b32 v15, 3, v14")
    e("s_mov_b32 s5, 0x1b1b0f0b")
    e("v_lshrrev_b32 v15, v15, s5")
    e("v_and_b32 v15, 0xff, v15")
    e("v_lshl_add_u32 v13, v15, 6, v13")
    e("v_add_u32 v10, %d, v9" % (24 * 64))
    e("s_mov_b32 s72, 0")
    e("s_mov_b32 s73, -1")
    e("v_cndmask_b32 v10, v10, v13, s[72:73]")
    lds_flags_clear()
    xt_flag("a")
    if OPT["agg"]:
        e("s_cmp_lg_u32 s3, 2")
        e("s_cbranch_scc1 L_s_noag")
        e("s_sub_u32 s13, s%d, 28" % S_J)
        if OPT["grp"]:
            e("s_lshl_b32 s5, s13, 11")
            e("s_add_u32 s5, s5, 0x%x" % FLAG_KV)
            e("v_lshrrev_b32 v13, 4, v1")
            e("v_and_b32 v14, 15, v1")
            e("v_lshl_add_u32 v13, v13, 6, v14")
            e("v_lshlrev_b32 v13, 7, v13")
        else:
            e("s_lshl_b32 s5, s13, 13")
            e("s_add_u32 s5, s5, 0x%x" % FLAG_KV)
            e("v_lshlrev_b32 v13, 7, v1")
        e("v_add_u32 v13, s5, v13")
        e("s_lshr_b32 s14, s10, 1")
        e("s_add_u32 s14, s14, s13")
        e("s_lshl_b32 s14, s14, 7")
        e("s_add_u32 s14, s14, 0x%x" % FLAG_AG)
        poll("ag", 13, 14)
        flag_store(14, 13, "")
        e("s_add_u32 s14, s14, 0x%x" % (FLAG_AG2 - FLAG_AG))
        flag_store(14, 13)
        stamp(27)
        e("L_s_noag:")
    e("s_cmp_lg_u32 s3, s%d" % S_CB)
    e("s_cbranch_scc1 L_s_nostage")
    e("s_waitcnt vmcnt(0)")
    for hd in range(2):
        for q in range(3):
            e("ds_read_b64_tr_b16 %s, v9 offset:%d" % (vr(WO + 8 * hd + 2 * q, 2), 2048 * hd + 512 * q))
        e("ds_read_b64_tr_b16 %s, v10 offset:%d" % (vr(WO + 8 * hd + 6, 2), 2048 * hd))
    e("s_lshl_b32 s6, s10, 9")
    e("s_lshl_b32 s7, s10, 4")
    e("s_add_u32 s7, s7, s%d" % S_WF)
    e("s_waitcnt lgkmcnt(0)")
    for k in range(4):
        e("v_and_b32 v%d, 0xffff, v%d" % (WO + 4 * k + 3, WO + 4 * k + 3))
    for k in range(4):
        e("buffer_store_dwordx4 %s, v%d, s[%d:%d], s6 offen offset:%d sc1" % (vr(WO + 4 * k, 4), vL16, SWT, SWT + 3, 1024 * k))
    e("s_waitcnt vmcnt(0)")
    flag_store(7, 13)
    stamp(29)
    e("s_barrier")
    e("s_branch L_s_wfb")
    e("L_s_nostage:")
    e("s_waitcnt lgkmcnt(0)")
    e("s_barrier")
    e("s_add_u32 s5, s10, s3")
    e("s_cmp_lg_u32 s5, %d" % (56 + 3))
    e("s_cbranch_scc1 L_s_wo")
    e("v_lshlrev_b32 v21, 7, v1")
    e("v_add_u32 v21, 0x%x, v21" % ALIVE)
    poll("alive", 21, 40, sleep=8, n=8, step=8192)
    e("s_mov_b32 s5, %d" % NONCE_OFF)
    flag_store(5, 21)
    e("s_branch L_s_wo")
    e("L_s_nokv2:")
    e("s_setprio %d" % OPT["knprio"])
    e("s_mov_b32 s84, -1")
    e("s_mov_b32 s82, 0")
    e("s_waitcnt vmcnt(%d) lgkmcnt(0)" % NPF)
    e("s_add_u32 s4, s4, 0x%x" % NONCE_ADD)
    e("L_s_kgen:")
    alive("k")
    job_decode()
    stamp(11)
    e("s_lshr_b32 s5, s3, 1")
    e("s_lshl_b32 s5, s5, 4")
    e("s_lshr_b32 s72, s72, s5")
    e("s_lshl_b32 s72, s72, 16")
    e("s_lshr_b32 s73, s73, s5")
    e("s_lshl_b32 s73, s73, 16")
    c_hi = struct.unpack("<f", struct.pack("<I", f32(LOG2E) & 0xFFFFFF00))[0]
    c_lo = (LOG2E - c_hi) * math.log(2.0)
    e("v_mov_b32 v8, s72")
    e("v_mul_f32 v9, 0x%x, v8" % f32(c_hi))
    e("v_exp_f32 v9, v9")
    e("v_mul_f32 v8, 0x%x, v8" % f32(c_lo))
    e("v_fma_f32 v9, v9, v8, v9")
    e("v_cvt_pk_bf16_f32 v9, v9, v9")
    e("v_and_b32 v9, 0xffff0000, v9")
    ZR, ZI = (16, 17), (18, 19)
    E1, E8, EG, WW, TT, XX = (20, 22), (24, 26), (28, 30), (32, 34), (36, 38), (40, 42)
    R2, R4, R6 = (44, 46), (48, 50), (52, 54)
    OUT = 56

    def unp(d, src, m):
        if m == 0:
            e("v_lshlrev_b32 v%d, 16, v%d" % (d, src))
        else:
            e("v_and_b32 v%d, 0xffff0000, v%d" % (d, src))

    for m in range(2):
        unp(ZR[m], PRM + 0, m)
        unp(ZI[m], PRM + 1, m)
    for m in range(2):
        e("v_mul_f32 v%d, v9, v%d" % (ZR[m], ZR[m]))
        e("v_mul_f32 v%d, v9, v%d" % (ZI[m], ZI[m]))
    for m in range(2):
        e("v_mul_f32 v%d, 0x%x, v%d" % (ZR[m], f32(LOG2E), ZR[m]))
        e("v_mul_f32 v%d, 0x%x, v%d" % (ZI[m], f32(1.0 / (2 * math.pi)), ZI[m]))

    def cexp(dst, mult, conj):
        for m in range(2):
            if mult != 1:
                e("v_mul_f32 v%d, 0x%x, v%d" % (TT[m], f32(mult), ZR[m]))
                e("v_mul_f32 v%d, 0x%x, v%d" % (TT[m] + 1, f32(mult), ZI[m]))
                e("v_fract_f32 v%d, v%d" % (TT[m] + 1, TT[m] + 1))
            else:
                e("v_mov_b32 v%d, v%d" % (TT[m], ZR[m]))
                e("v_fract_f32 v%d, v%d" % (TT[m] + 1, ZI[m]))
        for m in range(2):
            e("v_exp_f32 v%d, v%d" % (TT[m], TT[m]))
            e("v_cos_f32 v%d, v%d" % (dst[m], TT[m] + 1))
            e("v_sin_f32 v%d, v%d" % (dst[m] + 1, TT[m] + 1))
        for m in range(2):
            e("v_pk_mul_f32 %s, %s, %s op_sel_hi:[1,0]%s" % (vr(dst[m], 2), vr(dst[m], 2), vr(TT[m], 2), " neg_hi:[1,0]" if conj else ""))

    def kv_flag():
        e("s_cmp_eq_u32 s82, 0")
        e("s_cbranch_scc1 L_s_nokf")
        e("s_waitcnt vmcnt(0)")
        stamp(18)
        flag_store(82, 14)
        e("s_setprio %d" % OPT["kprio"])
        for q in range(4):
            e("buffer_store_dwordx4 %s, v%d, s[%d:%d], s83 offen sc1" % (vr(XTR + 4 * q, 4), vL16, SWS, SWS + 3))
            if q < 3:
                e("s_add_u32 s83, s83, 7168")
        e("L_s_nokf:")

    if OPT["kasync"] == 2:
        kv_flag()
    cexp(E8, 8, True)
    e("s_mul_i32 s13, s3, %d" % S_STG)
    e("v_lshlrev_b32 v8, 3, v1")
    e("v_add_u32 v8, s13, v8")
    e("v_and_b32 v11, 31, v1")
    e("v_mul_u32_u24 v11, 528, v11")
    e("v_lshrrev_b32 v12, 5, v1")
    e("v_lshl_add_u32 v11, v12, 4, v11")
    e("v_add_u32 v11, s13, v11")
    ring = [0]

    def put(row, src):
        o = OUT + 2 * (ring[0] & 3)
        ring[0] += 1
        for m in range(2):
            e("v_cvt_pk_bf16_f32 v%d, v%d, v%d" % (o + m, src[m], src[m] + 1))
        e("ds_write_b64 v8, %s offset:%d" % (vr(o, 2), row * 528))

    e("v_mov_b32 v%d, 0x3f80" % OUT)
    e("v_mov_b32 v%d, 0x3f80" % (OUT + 1))
    e("ds_write_b64 v8, %s" % vr(OUT, 2))
    ring[0] = 1
    put(1, E8)
    if OPT["kasync"] == 1:
        kv_flag()
    for j in range(2, 8 if OPT["kloop"] else 32):
        src = E8 if j == 2 else XX
        if OPT["kloop"] and j == 4:
            if OPT["kasync"] == 3:
                kv_flag()
            e("s_mov_b32 s7, 0")
            e("L_s_kl:")
        for m in range(2):
            e("v_pk_mul_f32 %s, %s, %s op_sel_hi:[1,0]" % (vr(TT[m], 2), vr(src[m], 2), vr(E8[m], 2)))
        for m in range(2):
            e("v_pk_fma_f32 %s, %s, %s, %s op_sel:[1,1,0] op_sel_hi:[0,1,1] neg_lo:[1,0,0]" % (vr(XX[m], 2), vr(src[m], 2), vr(E8[m], 2), vr(TT[m], 2)))
        put(j, XX)
        if j == OPT["xtrow"] and not OPT["kloop"]:
            xt_flag("b")
    if OPT["kloop"]:
        e("v_add_u32 v8, %d, v8" % (4 * 528))
        e("s_cmp_lg_u32 s7, %d" % OPT["xtit"])
        e("s_cbranch_scc1 L_s_kl1")
        xt_flag("b")
        e("L_s_kl1:")
        e("s_add_u32 s7, s7, 1")
        e("s_cmp_lt_u32 s7, 7")
        e("s_cbranch_scc1 L_s_kl")
        e("v_subrev_u32 v8, %d, v8" % (28 * 528))
    BF, AF, DD = 64, 128, 192
    stamp(12)
    for s in range(16):
        e("ds_read_b128 %s, v11 offset:%d" % (vr(BF + 4 * s, 4), s * 32))
    stamp(13)
    cexp(E1, 1, False)
    cexp(EG, 256, False)

    def mul2(dst, src, mu):
        for m in range(2):
            e("v_pk_mul_f32 %s, %s, %s op_sel_hi:[1,0]" % (vr(TT[m], 2), vr(src[m], 2), vr(mu[m], 2)))
        for m in range(2):
            e("v_pk_fma_f32 %s, %s, %s, %s op_sel:[1,1,0] op_sel_hi:[0,1,1] neg_lo:[1,0,0]" % (vr(dst[m], 2), vr(src[m], 2), vr(mu[m], 2), vr(TT[m], 2)))

    for m in range(2):
        unp(XX[m], PRM + 2, m)
        unp(XX[m] + 1, PRM + 3, m)
        unp(R2[m], PRM + 4, m)
        unp(R2[m] + 1, PRM + 5, m)
    for m in range(2):
        e("v_mul_f32 v%d, v9, v%d" % (XX[m], XX[m]))
        e("v_mul_f32 v%d, v9, v%d" % (XX[m] + 1, XX[m] + 1))
    mul2(WW, R2, XX)
    put(0, WW)
    mul2(XX, WW, E1); put(1, XX)
    mul2(R2, XX, E1); put(2, R2)
    mul2(XX, R2, E1); put(3, XX)
    mul2(R4, XX, E1); put(4, R4)
    mul2(XX, R4, E1); put(5, XX)
    mul2(R6, XX, E1); put(6, R6)
    mul2(XX, R6, E1); put(7, XX)
    for row in (8, 12, 9, 13, 10, 14, 11, 15):
        mul2(WW, WW, EG); put(row, WW)
    mul2(R2, R2, EG); put(16, R2)
    mul2(R4, R4, EG); put(17, R4)
    mul2(R6, R6, EG); put(18, R6)
    mul2(R4, R4, EG); put(20, R4)
    mul2(R4, R4, EG); put(19, R4)
    stamp(14)
    for s in range(16):
        e("ds_read_b128 %s, v11 offset:%d" % (vr(AF + 4 * s, 4), s * 32))
    e("s_mul_i32 s5, s3, 3072")
    e("s_add_u32 s5, s5, %d" % S_PX)
    e("v_add_u32 v12, s5, v%d" % vL16)
    e("s_xor_b32 s6, s3, 1")
    e("s_mul_i32 s6, s6, 3072")
    e("s_add_u32 s6, s6, %d" % S_PX)
    e("v_add_u32 v13, s6, v%d" % vL16)
    for s in range(16):
        e("s_waitcnt lgkmcnt(%d)" % (15 - s))
        mfma(DD, AF + 4 * s, BF + 4 * s, None if s == 0 else DD)
    stamp(15)
    e("s_lshr_b32 s5, s3, 1")
    e("s_mul_i32 s14, s5, %d" % KR1)
    e("v_sub_u32 v14, 223, v1")
    e("v_lshrrev_b32 v15, 1, v14")
    e("v_mul_u32_u24 v15, 48, v15")
    e("v_and_b32 v14, 1, v14")
    e("v_lshl_add_u32 v14, v14, 4, v15")
    e("v_add_u32 v14, s14, v14")
    e("v_mov_b32 v16, 0")
    e("v_mov_b32 v17, 0")
    e("v_mov_b32 v18, 0")
    e("v_mov_b32 v19, 0")
    e("v_add_u32 v15, s14, v%d" % vL16)
    e("s_mov_b32 s74, 0")
    e("s_mov_b32 s75, -1")
    e("s_mov_b32 s76, 0xaaaaaaaa")
    e("s_mov_b32 s77, 0xaaaaaaaa")
    for q in range(3):
        e("ds_write_b128 v12, %s offset:%d" % (vr(DD + 4 * q, 4), q * 1024))
    e("s_waitcnt lgkmcnt(0)")
    e("s_barrier")
    stamp(3)
    e("s_setprio %d" % OPT["cprio"])
    for q in range(3):
        e("ds_read_b128 %s, v13 offset:%d" % (vr(64 + 4 * q, 4), q * 1024))
    e("s_waitcnt lgkmcnt(0)")
    for k in range(6):
        e("v_pk_add_f32 %s, %s, %s" % (vr(DD + 2 * k, 2), vr(DD + 2 * k, 2), vr(64 + 2 * k, 2)))
    D = lambda r: DD + r

    def nxt(dst, r):
        if r < 7:
            e("v_mov_b32_dpp v%d, v%d wave_rol:1 row_mask:0xf bank_mask:0xf" % (dst, D(r + 1)))
        e("v_mov_b32_dpp v%d, v%d wave_shl:1 row_mask:0xf bank_mask:0xf" % (dst, D(r)))

    def pk(d, lo, hi):
        e("v_cvt_pk_bf16_f32 v%d, v%d, v%d" % (d, lo, hi))

    e("s_bitcmp1_b32 s3, 0")
    e("s_cbranch_scc1 L_s_expB")
    e("ds_write_b128 v15, v[16:19] offset:6144")
    e("v_mov_b32 v32, s73")
    e("v_cmp_eq_u32 vcc, 0, v1")
    e("v_cndmask_b32 v32, 0, v32, vcc")
    e("v_add_f32 v%d, v%d, v32" % (D(0), D(0)))
    e("v_and_b32 v33, 31, v1")
    e("v_sub_u32 v33, 255, v33")
    e("v_lshrrev_b32 v34, 1, v33")
    e("v_mul_u32_u24 v34, 48, v34")
    e("v_and_b32 v33, 1, v33")
    e("v_lshl_add_u32 v33, v33, 4, v34")
    e("v_add_u32 v33, s14, v33")
    e("v_add_u32 v34, 8, v33")
    e("v_cndmask_b32 v33, v34, v33, s[74:75]")
    pk(36, D(3), D(2))
    pk(37, D(1), D(0))
    e("ds_write_b64 v33, v[36:37]")
    nxt(40, 4)
    e("v_cndmask_b32 v41, v%d, v40, s[74:75]" % D(10))
    e("v_cndmask_b32 v42, v%d, v%d, s[74:75]" % (D(9), D(8)))
    e("v_cndmask_b32 v43, v%d, v%d, s[74:75]" % (D(8), D(4)))
    pk(44, 40, 41)
    pk(45, 42, 42)
    pk(46, 42, 43)
    pk(47, D(4), D(4))
    e("ds_write_b128 v14, v[44:47]")
    e("s_branch L_s_expJ")
    e("L_s_expB:")
    e("v_subrev_u32 v14, 3072, v14")
    nxt(40, 5)
    e("v_cndmask_b32 v41, v%d, v40, s[76:77]" % D(5))
    e("v_cndmask_b32 v42, v%d, v40, s[74:75]" % D(11))
    e("v_cndmask_b32 v41, v%d, v41, s[74:75]" % D(11))
    e("v_cndmask_b32 v43, v%d, v%d, s[74:75]" % (D(11), D(5)))
    pk(44, 40, 40)
    pk(45, 42, 41)
    pk(46, 43, D(5))
    pk(47, D(5), D(5))
    e("ds_write_b128 v14, v[44:47] offset:1536")
    for r in (6, 7):
        o = 48 if r == 6 else 56
        nxt(o, r)
        e("v_cndmask_b32 v%d, v%d, v%d, s[76:77]" % (o + 1, D(r), o))
        pk(o + 4, o, o)
        pk(o + 5, o, o + 1)
        pk(o + 6, D(r), D(r))
        pk(o + 7, D(r), D(r))
        if r == 6:
            e("ds_write_b128 v14, %s" % vr(o + 4, 4))
        else:
            e("v_subrev_u32 v14, 1536, v14")
            e("s_mov_b32 exec_hi, 0")
            e("ds_write_b128 v14, %s" % vr(o + 4, 4))
            e("s_mov_b32 exec_hi, -1")
    e("L_s_expJ:")
    for k in range(OPT["dummy"]):
        e("v_add_u32 v%d, 1, v%d" % (200 + (k & 7), 200 + (k & 7)))
    stamp(21)
    e("s_lshr_b32 s5, s%d, 5" % S_CP)
    e("s_lshl_b32 s5, s5, 13")
    e("s_add_u32 s5, s5, 0x%x" % FLAG_XT)
    e("v_lshlrev_b32 v13, 7, v1")
    e("v_add_u32 v13, s5, v13")
    e("v_lshrrev_b32 v10, 1, v1")
    e("v_and_b32 v11, 1, v1")
    e("v_mul_u32_u24 v12, 7168, v10")
    e("v_lshl_add_u32 v12, v11, 4, v12")
    e("s_mul_i32 s74, s3, %d" % (64 * 7168))
    e("s_lshl_b32 s5, s%d, 5" % S_CP)
    e("s_add_u32 s74, s74, s5")
    e("s_add_u32 s74, s74, 0x%x" % XT)
    e("s_add_u32 s75, s74, %d" % (32 * 7168))
    e("v_mul_u32_u24 v15, %d, v11" % (4 * XCS))
    e("v_lshl_add_u32 v15, v10, 4, v15")
    e("s_lshl_b32 s5, s3, 10")
    e("s_add_u32 s5, s5, %d" % XC0)
    e("v_add_u32 v15, s5, v15")
    e("s_cmp_lg_u32 s3, 0")
    e("s_cbranch_scc1 L_s_nohead")
    for k in range(4):
        e("v_mov_b32 v%d, 0" % (16 + k))
    e("v_bfe_u32 v22, v1, 2, 3")
    e("v_mul_u32_u24 v22, %d, v22" % XCS)
    e("v_and_b32 v23, 3, v1")
    e("v_lshl_add_u32 v22, v23, 4, v22")
    e("ds_write_b128 v22, v[16:19] offset:%d" % XC0)
    e("L_s_nohead:")
    poll("xt", 13, 14, sleep=2)
    stamp(19)
    e("s_setprio %d" % OPT["cprio"])
    e("buffer_load_dwordx4 v[16:19], v12, s[%d:%d], s74 offen sc1" % (SWS, SWS + 3))
    e("buffer_load_dwordx4 v[20:23], v12, s[%d:%d], s75 offen sc1" % (SWS, SWS + 3))
    e("v_and_b32 v13, 7, v1")
    e("v_lshlrev_b32 v13, 7, v13")
    e("buffer_load_dword v14, v13, s[%d:%d], s%d offen sc1" % (SWS, SWS + 3, S_WF))
    e("v_add_u32 v24, %d, v15" % (XCS + 60))
    e("v_add_u32 v25, %d, v15" % (3 * XCS + 56))
    e("v_add_u32 v26, %d, v15" % (2 * XCS + 56))
    for i in range(0 if OPT["xxc"] else 2):
        r = 16 + 4 * i
        o = 512 * i
        e("s_waitcnt vmcnt(%d)" % (2 - i))
        for k in range(3):
            e("v_alignbit_b32 v%d, v%d, v%d, 16" % (28 + k, r + k + 1, r + k))
        for a in (24, 25):
            e("ds_write2_b32 v%d, v%d, v%d offset0:%d offset1:%d" % (a, r, r + 1, o // 4, o // 4 + 1))
            e("ds_write2_b32 v%d, v%d, v%d offset0:%d offset1:%d" % (a, r + 2, r + 3, o // 4 + 2, o // 4 + 3))
        for a, b0 in ((15, 62), (26, 2)):
            e("ds_write_b16 v%d, v%d offset:%d" % (a, r, o + b0))
            e("ds_write2_b32 v%d, v28, v29 offset0:%d offset1:%d" % (a, (o + b0 + 2) // 4, (o + b0 + 2) // 4 + 1))
            e("ds_write_b32 v%d, v30 offset:%d" % (a, o + b0 + 10))
            e("ds_write_b16_d16_hi v%d, v%d offset:%d" % (a, r + 3, o + b0 + 14))
    vX, vK = 8, 9
    if OPT["c32"]:
        e("v_and_b32 v10, 3, v1")
        e("v_mul_u32_u24 v%d, %d, v10" % (vX, XCS))
        e("v_bfe_u32 v10, v1, 2, 2")
        e("v_lshl_add_u32 v%d, v10, 3, v%d" % (vX, vX))
        e("v_lshrrev_b32 v12, 5, v1")
        e("v_lshl_add_u32 v%d, v12, 4, v%d" % (vX, vX))
        e("v_bfe_u32 v10, v1, 4, 1")
        e("v_lshl_add_u32 v%d, v10, 9, v%d" % (vX, vX))
        e("v_and_b32 v11, 31, v1")
        e("v_sub_u32 v11, 31, v11")
        e("v_mul_u32_u24 v%d, 48, v11" % vK)
        e("v_lshl_add_u32 v%d, v12, 4, v%d" % (vK, vK))
        e("s_lshr_b32 s5, s3, 1")
        e("s_mul_i32 s5, s5, %d" % (4 * XCS))
        e("s_add_u32 s5, s5, %d" % (XC0 + 32))
        e("v_add_u32 v%d, s5, v%d" % (vX, vX))
        e("v_add_u32 v%d, s14, v%d" % (vK, vK))
        e("v_and_b32 v11, 15, v1")
        e("v_lshl_add_u32 v11, v12, 4, v11")
        e("v_lshlrev_b32 v11, 4, v11")
        e("v_lshl_add_u32 v3, v10, 10, v11")
        e("s_lshr_b32 s5, s3, 1")
        e("s_lshl_b32 s5, s5, 14")
        e("s_add_u32 s5, s5, %d" % L_CPX)
        e("v_add_u32 v3, s5, v3")
        e("v_lshl_add_u32 v2, v10, 13, v3")
    else:
        e("v_and_b32 v10, 3, v1")
        e("v_mul_u32_u24 v%d, %d, v10" % (vX, XCS))
        e("v_bfe_u32 v10, v1, 2, 2")
        e("v_lshl_add_u32 v%d, v10, 3, v%d" % (vX, vX))
        e("v_lshrrev_b32 v10, 4, v1")
        e("v_lshl_add_u32 v%d, v10, 4, v%d" % (vX, vX))
        e("v_and_b32 v11, 15, v1")
        e("v_sub_u32 v11, 15, v11")
        e("v_lshrrev_b32 v12, 5, v1")
        e("v_add_u32 v11, v11, v12")
        e("v_mul_u32_u24 v%d, 48, v11" % vK)
        e("v_and_b32 v10, 1, v10")
        e("v_lshl_add_u32 v%d, v10, 4, v%d" % (vK, vK))
        e("s_lshr_b32 s5, s3, 1")
        e("s_mul_i32 s5, s5, %d" % (4 * XCS))
        e("s_add_u32 s5, s5, %d" % (XC0 + 32))
        e("s_and_b32 s6, s3, 1")
        e("s_lshl_b32 s7, s6, 8")
        e("s_add_u32 s5, s5, s7")
        e("v_add_u32 v%d, s5, v%d" % (vX, vX))
        e("s_mul_i32 s7, s6, 384")
        e("s_add_u32 s7, s7, s14")
        e("v_add_u32 v%d, s7, v%d" % (vK, vK))
    Y0 = 16
    FA = lambda st, d: 48 + 64 * st + 4 * d
    FB = lambda st, q: 80 + 64 * st + 4 * q
    e("s_waitcnt vmcnt(0)")
    e("v_cmp_ne_u32 vcc, s4, v14")
    e("s_cmp_eq_u64 vcc, 0")
    e("s_cselect_b32 s87, 1, 0")
    e("s_cselect_b32 s%d, 32768, 0" % (SWT + 2))
    e("s_cmp_lg_u32 s3, s%d" % S_CB)
    e("s_cselect_b32 s87, 1, s87")
    e("s_cselect_b32 s%d, 0, s%d" % (SWT + 2, SWT + 2))
    e("s_waitcnt lgkmcnt(0)")
    e("s_barrier")
    stamp(4)

    def frag_reads(g):
        st = g & 1
        R = []
        for k in range(8):
            R.append("ds_read_b128 %s, v%d offset:%d" % (vr(FA(st, k), 4), vK, 96 * g + 768 * (7 - k)))
            R.append("ds_read_b64 %s, v%d offset:%d" % (vr(FB(st, k), 2), vX, 512 * k + 64 * g))
            R.append("ds_read_b64 %s, v%d offset:%d" % (vr(FB(st, k) + 2, 2), vX, 512 * k + 64 * g + 8))
        return R

    def conv32(half):
        G = [(0, 0, 0), (0, 3, 1), (1, 2, 1), (2, 1, 1), (3, 0, 1)] if half == 0 else [(0, 1, 0), (0, 2, 1), (1, 0, 0), (1, 1, 1), (2, 0, 1)]
        nf = 4 - half

        def reads(c):
            st = 48 + 32 * (c & 1)
            R = []
            for k in range(nf):
                R.append("ds_read_b128 %s, v%d offset:%d" % (vr(st + 4 * k, 4), vK, 768 * (6 - 2 * k) + 48 * c))
                R.append("ds_read_b64 %s, v%d offset:%d" % (vr(st + 16 + 4 * k, 2), vX, 1024 * k + 32 * c))
                R.append("ds_read_b64 %s, v%d offset:%d" % (vr(st + 18 + 4 * k, 2), vX, 1024 * k + 32 * c + 8))
            return R

        for r in reads(0):
            e(r)
        e("s_setprio %d" % OPT["mprio"])
        for c in range(16):
            st = 48 + 32 * (c & 1)
            nx = reads(c + 1) if c < 15 else []
            e("s_waitcnt lgkmcnt(0)")
            seen = set()
            for n, (e_, m_, t_) in enumerate(G):
                acc = 16 + 16 * t_
                mfma(acc, st + 4 * e_, st + 16 + 4 * m_, None if (c == 0 and t_ not in seen) else acc)
                seen.add(t_)
                for r in nx[3 * n:3 * n + 3]:
                    e(r)
                if n in (1, 3):
                    wld(2 * c + (n >> 1))
        e("s_setprio %d" % OPT["cprio"])
        S0 = (0, 3) if half == 0 else (1, 2)
        for t_ in range(2):
            for jq in range(4):
                if half == 0 and t_ == 1 and jq == 2:
                    e("s_mov_b32 exec_lo, 0xffff0000")
                    e("s_mov_b32 exec_hi, 0xffff0000")
                    for k in range(4):
                        e("v_pk_mov_b32 %s, 0, 0" % vr(40 + 2 * k, 2))
                    e("s_mov_b64 exec, -1")
                wrap = half == 0 and t_ == 1 and jq >= 2
                e("ds_write_b128 v%d, %s offset:%d" % (3 if wrap else 2, vr(16 + 16 * t_ + 4 * jq, 4), (2 * S0[t_] + (jq >> 1)) * 1024 + (jq & 1) * 512))

    if OPT["c32"]:
        e("s_bitcmp1_b32 s3, 0")
        e("s_cbranch_scc1 L_s_c1")
        conv32(0)
        e("s_branch L_s_cj")
        e("L_s_c1:")
        conv32(1)
        e("L_s_cj:")
    elif not OPT["xconv"]:
        for r in frag_reads(0):
            e(r)
        e("s_setprio %d" % OPT["mprio"])
        if OPT["cpad"] >= 0:
            e(".p2align 6")
            for k in range(OPT["cpad"]):
                e("s_nop 0")
        for g in range(4):
            st = g & 1
            nxt_reads = frag_reads(g + 1) if g < 3 else []
            e("s_waitcnt lgkmcnt(0)")
            n = 0
            for q in range(8):
                for j in range(q, 8):
                    c = "0" if (g == 0 and q == 0) else vr(Y0 + 4 * j, 4)
                    e("v_mfma_f32_16x16x32_bf16 %s, %s, %s, %s" % (vr(Y0 + 4 * j, 4), vr(FA(st, j - q), 4), vr(FB(st, q), 4), c))
                    n += 1
                    if n <= len(nxt_reads):
                        e(nxt_reads[n - 1])
                    if n % 7 == OPT["wpos"]:
                        wld(12 + 5 * g + n // 7)
    e("s_setprio %d" % OPT["cprio"])
    stamp(5)
    e("s_lshl_b32 s5, s3, 13")
    e("s_add_u32 s5, s5, %d" % L_CPX)
    e("v_add_u32 v10, s5, v%d" % vL16)
    e("s_lshl_b32 s7, s3, 11")
    e("s_add_u32 s7, s7, %d" % L_CPX)
    e("v_add_u32 v11, s7, v%d" % vL16)
    e("s_mul_i32 s5, s3, %d" % (16 * 224))
    e("s_add_u32 s5, s5, s%d" % S_CP)
    e("s_lshl_b32 s5, s5, 7")
    e("s_add_u32 s13, s5, 0x%x" % B2)
    e("v_lshrrev_b32 v12, 5, v1")
    e("v_mul_u32_u24 v12, %d, v12" % (4 * 224 * 128))
    e("v_and_b32 v13, 31, v1")
    e("v_lshl_add_u32 v12, v13, 2, v12")
    for k in range(0 if OPT["c32"] else 8):
        e("ds_write_b128 v10, %s offset:%d" % (vr(Y0 + 4 * k, 4), k * 1024))
    for k in range(0 if OPT["c32"] else 12):
        wld(k)
    lds_flags_clear()
    e("s_waitcnt lgkmcnt(0)")
    e("s_barrier")
    for w in range(4):
        for q in range(2):
            e("ds_read_b128 %s, v11 offset:%d" % (vr(48 + 8 * w + 4 * q, 4), w * 8192 + q * 1024))
    e("s_lshl_b32 s7, s%d, 2" % S_CP)
    e("s_add_u32 s7, s7, s3")
    e("s_lshl_b32 s7, s7, 7")
    e("s_add_u32 s7, s7, 0x%x" % FLAG_B)
    e("s_waitcnt lgkmcnt(0)")
    for k in range(4):
        e("v_pk_add_f32 %s, %s, %s" % (vr(48 + 2 * k, 2), vr(48 + 2 * k, 2), vr(56 + 2 * k, 2)))
        e("v_pk_add_f32 %s, %s, %s" % (vr(64 + 2 * k, 2), vr(64 + 2 * k, 2), vr(72 + 2 * k, 2)))
    for k in range(8):
        e("v_cvt_pk_bf16_f32 v%d, v%d, v%d" % (80 + k, 48 + k, 64 + k))
    for k in range(4):
        e("v_permlane16_swap_b32 v%d, v%d" % (80 + 2 * k, 81 + 2 * k))
    order = sorted(range(8), key=lambda k: 8 * (k >> 2) + 2 * (k & 1) + ((k >> 1) & 1))
    prev = 0
    for k in order:
        tt = 8 * (k >> 2) + 2 * (k & 1) + ((k >> 1) & 1)
        if tt != prev:
            e("s_add_u32 s13, s13, %d" % ((tt - prev) * 28672))
            prev = tt
        e("buffer_store_dword v%d, v12, s[%d:%d], s13 offen sc1" % (80 + k, SWS, SWS + 3))
    e("s_waitcnt vmcnt(0)")
    flag_store(7, 13)
    stamp(6)
    e("s_cmp_lg_u32 s87, 0")
    e("s_cbranch_scc1 L_s_wo")
    e("L_s_wfb:")
    e("v_and_b32 v13, 7, v1")
    e("v_lshlrev_b32 v13, 7, v13")
    e("v_add_u32 v13, s%d, v13" % S_WF)
    poll("w", 13, 14, sleep=4)
    e("s_mov_b32 s%d, 32768" % (SWT + 2))
    for k in range(32):
        wld(k)
    e("L_s_wo:")
    srd(SOUT, P_OUT, 2048 * 896)
    vFA, vOA, vOW = 11, 12, 20
    e("s_lshl_b32 s5, s%d, 4" % S_TT)
    e("s_lshl_b32 s6, s3, 2")
    e("s_add_u32 s5, s5, s6")
    e("s_lshl_b32 s%d, s5, 11" % S_OB)
    e("s_add_u32 s%d, s%d, 0x%x" % (S_OB, S_OB, OW))
    e("s_add_u32 s%d, s%d, 4096" % (S_OB + 1, S_OB))
    e("s_lshl_b32 s5, s5, 7")
    e("s_add_u32 s5, s5, 0x%x" % FLAG_O)
    e("v_and_b32 v13, 3, v1")
    e("v_lshlrev_b32 v16, 7, v13")
    e("v_bfe_u32 v13, v1, 2, 1")
    e("v_mul_u32_u24 v13, 0x%x, v13" % (FLAG_O2 - FLAG_O))
    e("v_add3_u32 v%d, s5, v16, v13" % vFA)
    e("s_lshl_b32 s5, s3, 13")
    e("v_add_u32 v%d, s5, v%d" % (vOW, vL16))
    e("v_and_b32 v14, 31, v1")
    e("v_lshrrev_b32 v15, 5, v1")
    e("v_mul_u32_u24 v%d, 896, v14" % vOA)
    e("v_lshl_add_u32 v%d, v15, 4, v%d" % (vOA, vOA))
    e("s_mul_i32 s74, s%d, 28672" % S_TT)
    e("s_lshl_b32 s5, s%d, 8" % S_CG)
    e("s_add_u32 s74, s74, s5")
    e("s_lshl_b32 s5, s%d, 6" % S_CB)
    e("s_add_u32 s74, s74, s5")
    e("s_lshr_b32 s%d, s4, 16" % S_TAG)
    e("s_and_b32 s%d, s%d, 0xbfff" % (S_TAG, S_TAG))
    e("s_lshl_b32 s87, s%d, 6" % S_CG)
    e("s_lshl_b32 s5, s%d, 4" % S_CB)
    e("s_add_u32 s87, s87, s5")
    e("s_lshr_b32 s5, s%d, 4" % S_TT)
    e("s_lshl_b32 s6, s87, 2")
    e("s_add_u32 s5, s5, s6")
    e("s_lshl_b32 s5, s5, 7")
    e("s_add_u32 s5, s5, 0x%x" % FLAG_B)
    e("v_and_b32 v13, 15, v1")
    e("v_lshlrev_b32 v13, 9, v13")
    e("v_add_u32 v21, s5, v13")
    e("v_lshlrev_b32 v16, 8, v15")
    e("v_lshl_add_u32 v16, v14, 2, v16")
    e("v_lshlrev_b32 v17, 3, v14")
    e("s_mul_i32 s5, s%d, 224" % S_TT)
    e("s_add_u32 s87, s5, s87")
    e("s_lshl_b32 s87, s87, 7")
    e("s_add_u32 s87, s87, 0x%x" % B2)
    e("s_lshl_b32 s15, s%d, 8" % S_TT)
    e("s_add_u32 s15, s15, 0x%x" % G1)
    stamp(16)
    poll("b", 21, 14, sleep=OPT["bsleep"])
    BB, OL, DO, OF = 24, 32, 64, 80
    for q in range(4):
        for p in range(2):
            e("buffer_load_dword v%d, v16, s[%d:%d], s87 offen offset:%d sc1" % (BB + 2 * q + p, SWS, SWS + 3, (4 * q + p) * 128))
    e("buffer_load_dwordx2 v[18:19], v17, s[%d:%d], s15 offen sc1" % (SWS, SWS + 3))
    e("s_mov_b32 s5, 0")
    e("s_branch L_s_g1w")
    e("L_s_g1:")
    e("buffer_load_dwordx2 v[18:19], v17, s[%d:%d], s15 offen sc1" % (SWS, SWS + 3))
    e("L_s_g1w:")
    e("s_waitcnt vmcnt(0)")
    e("v_cmp_ne_u32 vcc, s4, v19")
    e("s_cmp_eq_u64 vcc, 0")
    e("s_cbranch_scc1 L_s_g1ok")
    e("s_add_u32 s5, s5, 1")
    e("s_cmp_lt_u32 s5, %d" % OPT["spin"])
    e("s_cbranch_scc1 L_s_g1")
    e("L_s_g1ok:")
    for k in range(8):
        e("v_lshlrev_b32 v%d, 16, v%d" % (DO + 2 * k, BB + k))
        e("v_and_b32 v%d, 0xffff0000, v%d" % (DO + 2 * k + 1, BB + k))
    for k in range(8):
        e("v_pk_mul_f32 %s, %s, v[18:19] op_sel_hi:[1,0]" % (vr(DO + 2 * k, 2), vr(DO + 2 * k, 2)))
    e("v_not_b32 v14, s4")
    S_D, S_R = 82, 83
    RING = (16, 24, 28, 20)
    if OPT["prog"]:
        e("v_mov_b32 v15, v%d" % vOW)
        vOW = 15
        e("s_lshl_b32 s5, s3, 2")
        e("s_add_u32 s5, s5, %d" % LFL)
        e("v_mov_b32 v8, s5")
        e("v_mov_b32 v9, 1")
        e("s_cmp_lg_u32 s3, s%d" % S_CB)
        e("s_cselect_b32 s%d, 15, 0" % S_D)
    stamp(8)
    e("s_setprio %d" % OPT["oprio"])
    e("s_mov_b32 s%d, 0" % S_H)
    e("s_mov_b32 s%d, 0" % S_V)
    e("s_mov_b32 s%d, 0" % S_F)
    e("s_mov_b32 s%d, 0" % S_U)
    e("s_mov_b32 s15, 0")
    if OPT["timing"] and OPT["pollcnt"]:
        e("s_mov_b32 s90, 0")
        e("s_mov_b32 s91, -1")
        e("s_mov_b32 s92, -1")
    e("L_or:")
    if OPT["dthr"] < 5:
        e("s_bcnt1_i32_b32 s5, s%d" % (S_H if OPT["dh"] else S_V))
        e("s_cmp_ge_u32 s5, %d" % OPT["dthr"])
        e("s_cselect_b32 s5, 15, s%d" % S_H)
        e("s_andn2_b32 s%d, s5, s%d" % (S_P, S_V))
    else:
        e("s_andn2_b32 s%d, s%d, s%d" % (S_P, S_H, S_V))
    e("s_cbranch_scc0 L_ol3")
    for t in range(4):
        e("s_bitcmp1_b32 s%d, %d" % (S_P, t))
        e("s_cbranch_scc0 L_ol%d" % t)
        e("s_bitcmp1_b32 s%d, %d" % (S_U, t))
        e("s_cselect_b32 s5, 0x%x, 0" % (OW2 - OW))
        e("s_add_u32 s5, s5, s%d" % (S_OB + (t >> 1)))
        for c in range(2):
            e("buffer_load_dwordx4 %s, v%d, s[%d:%d], s5 offen offset:%d%s" % (vr(OL + 8 * t + 4 * c, 4), vL16, SWS, SWS + 3, (t & 1) * 2048 + c * 1024, ["", " sc1", " sc0", " nt"][OPT["tscope"]]))
        e("L_ol%d:" % t)
    e("s_and_b32 s5, s15, 7")
    e("s_cmp_eq_u32 s5, 7")
    e("s_cselect_b32 exec_lo, 0xff, 15")
    e("s_mov_b32 exec_hi, 0")
    e("buffer_load_dword v14, v%d, s[%d:%d], 0 offen sc1" % (vFA, SWS, SWS + 3))
    e("s_mov_b64 exec, -1")
    if OPT["prog"]:
        if OPT["gp0"]:
            e("s_cmp_lg_u32 s%d, 0" % S_P)
            e("s_cbranch_scc1 L_gv")
        e("L_grp:")
        e("ds_read_b32 v10, v6")
        e("s_waitcnt lgkmcnt(0)")
        e("v_cmp_eq_u32 vcc, 1, v10")
        e("s_andn2_b32 s%d, vcc_lo, s%d" % (S_R, S_D))
        e("s_and_b32 s%d, s%d, 15" % (S_R, S_R))
        e("s_cbranch_scc0 L_g3")
        for g in range(4):
            e("s_bitcmp1_b32 s%d, %d" % (S_R, g))
            e("s_cbranch_scc0 L_g%d%s" % (g, "" if g == 3 or not OPT["gone"] else "n"))
            for k in range(3):
                e("ds_read_b128 %s, v%d offset:%d" % (vr(RING[k], 4), vL16, (8 * g + k) * 1024))
            e("s_bitset1_b32 s%d, %d" % (S_D, g))
            for k in range(8):
                if k + 3 < 8:
                    e("ds_read_b128 %s, v%d offset:%d" % (vr(RING[(k + 3) & 3], 4), vL16, (8 * g + k + 3) * 1024))
                e("s_waitcnt lgkmcnt(%d)" % min(3, 7 - k))
                mfma(DO + 16 * g, WO + 4 * (8 * g + k), RING[k & 3], DO + 16 * g if (g == 0 or k) else None)
            if OPT["gone"] and g < 3:
                e("s_branch L_g3")
                e("L_g%dn:" % g)
            else:
                e("L_g%d:" % g)
        e("s_cmp_lg_u32 s%d, 15" % S_V)
        e("s_cbranch_scc1 L_gv")
        e("s_cmp_eq_u32 s%d, 15" % S_D)
        e("s_cbranch_scc1 L_od")
        if OPT["gsleep"]:
            e("s_sleep %d" % OPT["gsleep"])
        e("s_add_u32 s15, s15, 1")
        e("s_cmp_lt_u32 s15, %d" % (8 * OPT["spin"]))
        e("s_cbranch_scc1 L_grp")
        e("s_branch L_od")
        e("L_gv:")
    e("s_cmp_eq_u32 s%d, 0" % S_P)
    e("s_waitcnt vmcnt(0)")
    e("v_cmp_eq_u32 vcc, s4, v14")
    e("s_mov_b32 s%d, vcc_lo" % S_H)
    e("s_cbranch_scc1 L_oc3")
    for t in range(4):
        e("s_bitcmp1_b32 s%d, %d" % (S_P, t))
        e("s_cbranch_scc0 L_oc%d" % t)
        e("v_cmp_ne_u32_sdwa vcc, v%d, s%d src0_sel:WORD_1 src1_sel:DWORD" % (OL + 8 * t + 3, S_TAG))
        e("v_cmp_ne_u32_sdwa s[6:7], v%d, s%d src0_sel:WORD_1 src1_sel:DWORD" % (OL + 8 * t + 7, S_TAG))
        e("s_or_b64 vcc, vcc, s[6:7]")
        e("s_cbranch_scc1 L_oc%d" % t)
        e("ds_write_b128 v%d, %s offset:%d" % (vOW, vr(OL + 8 * t, 4), 2048 * t))
        e("ds_write_b128 v%d, %s offset:%d" % (vOW, vr(OL + 8 * t + 4, 4), 2048 * t + 1024))
        e("s_bitset1_b32 s%d, %d" % (S_V, t))
        e("L_oc%d:" % t)
    e("s_andn2_b32 s5, s%d, s%d" % (S_P, S_V))
    e("s_or_b32 s%d, s%d, s5" % (S_F, S_F))
    e("s_lshr_b32 s6, s%d, 4" % S_H)
    e("s_orn2_b32 s5, s%d, s%d" % (S_F, S_H))
    e("s_and_b32 s%d, s6, s5" % S_U)
    e("s_or_b32 s%d, s%d, s6" % (S_H, S_H))
    e("s_and_b32 s%d, s%d, 15" % (S_H, S_H))
    if OPT["timing"] and OPT["pollcnt"]:
        e("s_andn2_b32 s5, s%d, s%d" % (S_P, S_V))
        e("s_bcnt1_i32_b32 s5, s5")
        e("s_add_u32 s90, s90, s5")
        e("s_memrealtime s[96:97]")
        e("s_waitcnt lgkmcnt(0)")
        e("s_cmp_eq_u32 s%d, 15" % S_H)
        e("s_cselect_b32 s5, s96, -1")
        e("s_min_u32 s91, s91, s5")
        e("s_cmp_lg_u32 s%d, 0" % S_H)
        e("s_cselect_b32 s5, s96, -1")
        e("s_min_u32 s92, s92, s5")
        e("v_writelane_b32 v0, s90, 27")
        e("v_writelane_b32 v0, s91, 25")
        e("v_writelane_b32 v0, s92, 28")
        e("v_writelane_b32 v0, s15, 24")
        e("s_min_u32 s5, s15, 15")
        e("s_lshl_b32 s5, s5, 1")
        e("s_add_u32 m0, s5, 32")
        e("s_lshl_b32 s5, s%d, 8" % S_V)
        e("s_or_b32 s5, s5, s%d" % S_P)
        e("s_lshl_b32 s6, s%d, 16" % S_H)
        e("s_or_b32 s5, s5, s6")
        e("v_writelane_b32 v0, s96, m0")
        e("s_add_u32 m0, m0, 1")
        e("s_nop 3")
        e("v_writelane_b32 v0, s5, m0")
    e("s_cmp_eq_u32 s%d, 15" % S_V)
    e("s_cbranch_scc1 %s" % ("L_ov" if OPT["prog"] else "L_od"))
    e("s_andn2_b32 s5, s%d, s%d" % (S_H, S_V))
    e("s_cbranch_scc1 L_ob")
    if OPT["dthr"] < 5 and not OPT["dsleep"]:
        e("s_cmp_lg_u32 s%d, 0" % S_V)
        e("s_cbranch_scc1 L_ob")
    if OPT["osleep"]:
        e("s_sleep %d" % OPT["osleep"])
    e("L_ob:")
    e("s_add_u32 s15, s15, 1")
    e("s_cmp_lt_u32 s15, %d" % OPT["spin"])
    e("s_cbranch_scc1 L_or")
    if OPT["prog"]:
        e("s_mov_b32 s%d, 15" % S_V)
        e("L_ov:")
        e("s_setprio 3")
        e("s_waitcnt lgkmcnt(0)")
        e("s_mov_b64 exec, 1")
        e("ds_write_b32 v8, v9")
        e("s_mov_b64 exec, -1")
        stamp(9)
        e("s_cmp_lg_u32 s3, s%d" % S_CB)
        e("s_cbranch_scc1 L_s_fin")
        e("s_branch L_grp")
        e("L_od:")
        stamp(7)
        e("s_waitcnt vmcnt(0)")
        e("s_nop 7")
        e("s_nop 3")
        for (d, a_) in ((0, 1), (2, 3), (0, 2)):
            for k in range(8):
                e("v_pk_add_f32 %s, %s, %s" % (vr(DO + 16 * d + 2 * k, 2), vr(DO + 16 * d + 2 * k, 2), vr(DO + 16 * a_ + 2 * k, 2)))
    else:
        e("L_od:")
        e("s_setprio 3")
        e("s_waitcnt lgkmcnt(0)")
        stamp(9)
        e("s_barrier")
        stamp(7)
        cstamp(58)
        e("s_cmp_lg_u32 s3, s%d" % S_CB)
        e("s_cbranch_scc1 L_s_fin")
        for k in range(7):
            e("ds_read_b128 %s, v%d offset:%d" % (vr(OF + 4 * k, 4), vL16, k * 1024))
        for k in range(32):
            if k + 7 < 32:
                e("ds_read_b128 %s, v%d offset:%d" % (vr(OF + 4 * ((k + 7) & 7), 4), vL16, (k + 7) * 1024))
            e("s_waitcnt lgkmcnt(%d)" % min(7, 31 - k))
            mfma(DO, WO + 4 * k, OF + 4 * (k & 7), DO)
    cstamp(59)
    for k in range(8):
        e("v_cvt_pk_bf16_f32 v%d, v%d, v%d" % (48 + k, DO + 2 * k, DO + 2 * k + 1))
    for (x_, y_) in ((48, 50), (49, 51), (52, 54), (53, 55)):
        e("v_permlane32_swap_b32 v%d, v%d" % (x_, y_))
    e("buffer_store_dwordx4 v[48:51], v%d, s[%d:%d], s74 offen" % (vOA, SOUT, SOUT + 3))
    e("buffer_store_dwordx4 v[52:55], v%d, s[%d:%d], s74 offen offset:32" % (vOA, SOUT, SOUT + 3))
    cstamp(60)
    e("L_s_fin:")
    if OPT["timing"]:
        e("s_waitcnt vmcnt(0)")
    cstamp(61)
    stamp(10)
    dbg_stamp(248, 256, 8, False)
    stamp_flush()
    e("L_end:")
    e("s_endpgm")


prologue()
if OPT["sfirst"]:
    role_s()
    if OPT["aal"]:
        e(".p2align %d" % OPT["aal"])
    e("L_roleA:")
    role_a()
else:
    role_a()
    role_s()
if OPT["cpf"]:
    e("L_last:")
    e("s_endpgm")

lines, nops = asmcheck.fix_hazards(L, verbose=bool(OPT.get("v", 0)))
errs = asmcheck.check_waitcnt(lines)
for er in errs:
    print("WAITCNT?", er, file=sys.stderr)
print("instructions: %d, wait states inserted: %d" % (len(lines), nops), file=sys.stderr)

ref = open("cdna_kernels/%s.s.ref" % NAME).read()
head = ref[: ref.index("; Override launch")]
text = head + """; Override launch geometry by editing the next line (default: block=256,
; grid=ceil(out_elems/256), lds=0). Harness parses it; keep it on one line.
; @launch grid=(512,1,1) block=(256,1,1) lds=81920
.amdgcn_target "amdgcn-amd-amdhsa--gfx950"
.text
.globl %s_kernel
%s.p2align 8
.type %s_kernel,@function
%s_kernel:
""" % (NAME, ".p2align %d\n" % OPT["pal"] if OPT["pal"] else "", NAME, NAME) + "\n".join(lines) + """
.section .rodata,"a"
.p2align 6
.amdhsa_kernel %s_kernel
  .amdhsa_next_free_vgpr 256
  .amdhsa_next_free_sgpr 102
  .amdhsa_accum_offset 256
  .amdhsa_group_segment_fixed_size 0
  .amdhsa_kernarg_size 144
  .amdhsa_user_sgpr_count 2
  .amdhsa_user_sgpr_kernarg_segment_ptr 1
  .amdhsa_system_sgpr_workgroup_id_x 1
.end_amdhsa_kernel
""" % NAME
open(sys.argv[1], "w").write(text)
```
